```python
import torch

def _softmax(x, axis=-1):
    return torch.softmax(x, dim=axis)
def _gelu(x):
    return torch.nn.functional.gelu(x, approximate="tanh")
def _silu(x):
    return torch.nn.functional.silu(x)
def _sigmoid(x):
    return torch.sigmoid(x)
def _layernorm(x, axis=-1, eps=1e-5):
    m = x.mean(dim=axis, keepdim=True)
    v = x.var(dim=axis, keepdim=True, unbiased=False)
    return (x - m) / torch.sqrt(v + eps)
def _scatter_add(tgt, idx, src, axis=0):
    return tgt.clone().index_add_(axis, idx, src)
def _segment_sum(src, seg, n):
    out = torch.zeros((n,) + src.shape[1:], dtype=src.dtype)
    return out.index_add_(0, seg, src)
def _pad(x, pw):
    flat = tuple(v for pair in reversed(pw) for v in pair)
    return torch.nn.functional.pad(x, flat)

kernel_name = 'standalone__weight_only_int_quip__prompt'

def setup_inputs():

    _w = (lambda a: (lambda t: t.to(torch.bfloat16) if t.is_floating_point() else t)(torch.as_tensor(a)))
    B, S, D, F = 1, 2048, 512, 1376
    G = 128 if 128 > 0 else D
    D = (D // G) * G
    ng = D // G
    bits = 4 if 4 > 0 else 4
    qmax = 1 << bits
    qw = torch.randint(0, qmax, (D, F)).to(torch.int32)
    U, _ = (lambda *_a, **_k: torch.linalg.qr(*[torch.as_tensor(_x).float() for _x in _a], **_k))((lambda *s: torch.randn(*s, dtype=torch.bfloat16) * 0.05)(D, D))
    V, _ = (lambda *_a, **_k: torch.linalg.qr(*[torch.as_tensor(_x).float() for _x in _a], **_k))((lambda *s: torch.randn(*s, dtype=torch.bfloat16) * 0.05)(F, F))
    return {
        "x": _w((lambda *s: torch.randn(*s, dtype=torch.bfloat16) * 0.05)(B, S, D)),
        "qw": _w(qw),
        "scales": _w(torch.abs((lambda *s: torch.randn(*s, dtype=torch.bfloat16) * 0.05)(ng, F)) * 0.02 + 0.005),
        "zeros": _w(torch.full((ng, F), qmax / 2.0, dtype=float)),
        "U": _w(U.to(float)),
        "V": _w(V.to(float)),
    }

def reference(x, qw, scales, zeros, U, V):
    B, S, D = x.shape
    ng, F = scales.shape
    G = D // ng
    s = (lambda x, n, axis: torch.repeat_interleave(x, n, dim=axis))(scales, G, axis=0)
    z = (lambda x, n, axis: torch.repeat_interleave(x, n, dim=axis))(zeros, G, axis=0)
    wq = ((lambda x, dt: x.to(dt))(qw, x.dtype) - z) * s
    xr = torch.einsum("bsd,de->bse", x, U)
    h  = torch.einsum("bse,ef->bsf", xr, wq)
    y  = torch.einsum("bsf,fg->bsg", h, V)
    return y
```

```python
import sys

NAME = "standalone__weight_only_int_quip__prompt"
M, D, F = 2048, 512, 1376
WQF_OFF, WQF_SZ = 0x000000, 32 * 44 * 1024
XF_OFF, XF_SZ = 0x200000, 128 * 16 * 1024
TF_OFF, TF_SZ = 0x400000, 86 * 16 * 1024

class A:
    def __init__(s):
        s.l = []
    def __call__(s, x):
        s.l.append("  " + x)
    def lab(s, x):
        s.l.append(x + ":")
    def c(s, x):
        s.l.append("  ; " + x)
    def text(s):
        return "\n".join(s.l) + "\n"

S_X, S_QW, S_SC, S_ZR, S_U, S_V, S_OUT, S_WQF, S_XF, S_TF = 8, 12, 16, 20, 24, 28, 32, 36, 40, 44
def srd(i): return f"s[{i}:{i+3}]"

def prologue(a, need):
    a("s_load_dwordx16 s[48:63], s[0:1], 0")
    a("s_load_dwordx2 s[64:65], s[0:1], 64")
    a("s_waitcnt lgkmcnt(0)")
    tbl = {"x": (S_X, 48, M*D*2), "qw": (S_QW, 50, D*F*4), "sc": (S_SC, 52, 4*F*2), "zr": (S_ZR, 54, 4*F*2),
           "u": (S_U, 56, D*D*2), "v": (S_V, 58, F*F*2), "out": (S_OUT, 60, M*F*2)}
    for n in need:
        if n in tbl:
            r, p, sz = tbl[n]
            a(f"s_mov_b32 s{r}, s{p}")
            a(f"s_and_b32 s{r+1}, s{p+1}, 0xffff")
            a(f"s_mov_b32 s{r+2}, {sz}")
            a(f"s_mov_b32 s{r+3}, 0x20000")
        else:
            r, off, sz = {"wqf": (S_WQF, WQF_OFF, WQF_SZ), "xf": (S_XF, XF_OFF, XF_SZ), "tf": (S_TF, TF_OFF, TF_SZ)}[n]
            a(f"s_add_u32 s{r}, s64, {off}")
            a(f"s_addc_u32 s{r+1}, s65, 0")
            a(f"s_and_b32 s{r+1}, s{r+1}, 0xffff")
            a(f"s_mov_b32 s{r+2}, {sz}")
            a(f"s_mov_b32 s{r+3}, 0x20000")

def wave_id(a, sreg):
    a("v_lshrrev_b32 v1, 6, v0")
    a("s_nop 0")
    a(f"v_readfirstlane_b32 s{sreg}, v1")
    a("v_and_b32 v0, 63, v0")

def role_prep(a, s_unit):
    a(f"s_mul_hi_u32 s70, s{s_unit}, {(1<<32)//22+1}")
    a("s_mul_i32 s71, s70, 22")
    a(f"s_sub_u32 s71, s{s_unit}, s71")
    a("v_lshrrev_b32 v1, 3, v0")
    a("v_and_b32 v2, 7, v0")
    a("v_mul_u32_u24 v3, 5504, v1")
    a("v_lshl_add_u32 v3, v2, 4, v3")
    a("v_lshlrev_b32 v4, 3, v2")
    a("s_cmp_eq_u32 s71, 21")
    a("s_cselect_b32 s72, 0x40000000, 128")
    a("s_cselect_b32 s73, 0x40000000, 64")
    a("v_add_u32 v5, s72, v3")
    a("v_add_u32 v6, s73, v4")
    a("s_mul_i32 s74, s70, 88064")
    a("s_lshl_b32 s75, s71, 8")
    a("s_add_u32 s74, s74, s75")
    a("s_add_u32 s75, s74, 44032")
    a("s_lshr_b32 s76, s70, 3")
    a("s_mul_i32 s76, s76, 2752")
    a("s_lshl_b32 s77, s71, 7")
    a("s_add_u32 s76, s76, s77")
    a(f"buffer_load_dwordx4 v[8:11], v3, {srd(S_QW)}, s74 offen")
    a(f"buffer_load_dwordx4 v[12:15], v5, {srd(S_QW)}, s74 offen")
    a(f"buffer_load_dwordx4 v[16:19], v3, {srd(S_QW)}, s75 offen")
    a(f"buffer_load_dwordx4 v[20:23], v5, {srd(S_QW)}, s75 offen")
    a(f"buffer_load_dwordx2 v[24:25], v4, {srd(S_SC)}, s76 offen")
    a(f"buffer_load_dwordx2 v[26:27], v6, {srd(S_SC)}, s76 offen")
    a(f"buffer_load_dwordx2 v[28:29], v4, {srd(S_ZR)}, s76 offen")
    a(f"buffer_load_dwordx2 v[30:31], v6, {srd(S_ZR)}, s76 offen")
    a("v_lshrrev_b32 v7, 2, v2")
    a("v_lshlrev_b32 v7, 10, v7")
    a("v_and_b32 v32, 3, v2")
    a("v_lshl_add_u32 v7, v32, 8, v7")
    a("v_lshl_add_u32 v7, v1, 4, v7")
    a("s_mul_i32 s78, s70, 44")
    a("s_lshl_b32 s79, s71, 1")
    a("s_add_u32 s78, s78, s79")
    a("s_lshl_b32 s78, s78, 10")
    a("s_mov_b32 s79, 0xffff0000")
    a("s_waitcnt vmcnt(0)")
    for i in range(4):
        a(f"v_lshlrev_b32 v{32+2*i}, 16, v{24+i}")
        a(f"v_and_b32 v{33+2*i}, s79, v{24+i}")
        a(f"v_lshlrev_b32 v{40+2*i}, 16, v{28+i}")
        a(f"v_and_b32 v{41+2*i}, s79, v{28+i}")
    for rh in range(2):
        q = 8 + 8 * rh
        for i in range(8):
            a(f"v_cvt_f32_i32 v{q+i}, v{q+i}")
        for i in range(8):
            a(f"v_sub_f32 v{q+i}, v{q+i}, v{40+i}")
        for i in range(4):
            a(f"v_cvt_pk_bf16_f32 v{48+i}, v{q+2*i}, v{q+2*i+1}")
        for i in range(4):
            a(f"v_lshlrev_b32 v{q+2*i}, 16, v{48+i}")
            a(f"v_and_b32 v{q+2*i+1}, s79, v{48+i}")
        for i in range(8):
            a(f"v_mul_f32 v{q+i}, v{q+i}, v{32+i}")
        o = 52 + 4 * rh
        for i in range(4):
            a(f"v_cvt_pk_bf16_f32 v{o+i}, v{q+2*i}, v{q+2*i+1}")
        a(f"buffer_store_dwordx4 v[{o}:{o+3}], v7, {srd(S_WQF)}, s78 offen offset:{128*rh}")

def role_xr(a, s_eb, s_mb8, s_w):
    SWE, SWM = 70, 71
    a(f"s_and_b32 s{SWE}, s{s_w}, 1")
    a(f"s_lshr_b32 s{SWM}, s{s_w}, 1")
    a("v_lshrrev_b32 v1, 4, v0")
    a("v_and_b32 v2, 15, v0")
    a("v_lshlrev_b32 v3, 1, v1")
    a("v_xor_b32 v4, v2, v3")
    a("v_xor_b32 v5, 8, v4")
    a("v_lshlrev_b32 v6, 10, v1")
    a("v_lshl_add_u32 v10, v4, 4, v6")
    a("v_lshl_add_u32 v11, v5, 4, v6")
    a("v_lshrrev_b32 v1, 3, v0")
    a("v_and_b32 v2, 7, v0")
    a("v_lshrrev_b32 v3, 1, v1")
    a("v_xor_b32 v4, v2, v3")
    a("v_xor_b32 v5, 4, v4")
    a("v_lshlrev_b32 v6, 10, v1")
    a("v_lshl_add_u32 v12, v4, 4, v6")
    a("v_lshl_add_u32 v13, v5, 4, v6")
    a(f"s_lshl_b32 s72, s{s_w}, 14")
    a(f"s_lshl_b32 s73, s{s_eb}, 8")
    a("s_add_u32 s72, s72, s73")
    a(f"s_lshl_b32 s73, s{s_mb8}, 17")
    a(f"s_lshl_b32 s74, s{s_w}, 15")
    a("s_add_u32 s73, s73, s74")
    a(f"s_lshl_b32 s74, s{s_w}, 12")
    def issue(st):
        slot = st % 4
        for aa in range(4):
            a(f"s_add_u32 m0, s74, {slot*32768 + aa*1024}")
            a(f"s_add_u32 s75, s72, {st*65536 + aa*4096}")
            a(f"buffer_load_dwordx4 v{10 + (aa>>1)}, {srd(S_U)}, s75 offen lds")
        for bb in range(4):
            a(f"s_add_u32 m0, s74, {slot*32768 + 16384 + bb*1024}")
            a(f"s_add_u32 s75, s73, {st*128 + bb*8192}")
            a(f"buffer_load_dwordx4 v{12 + (bb&1)}, {srd(S_X)}, s75 offen lds")
    for st in range(4):
        issue(st)
    a("v_lshrrev_b32 v1, 4, v0")
    a("v_bfe_u32 v2, v0, 2, 2")
    a("v_and_b32 v3, 3, v0")
    a("v_lshl_add_u32 v4, v1, 3, v2")
    a("v_lshlrev_b32 v4, 8, v4")
    a("v_and_b32 v5, 1, v1")
    a("v_lshlrev_b32 v5, 3, v5")
    a("v_lshl_add_u32 v5, v2, 1, v5")
    a("v_lshrrev_b32 v6, 1, v3")
    a(f"s_lshl_b32 s75, s{SWE}, 3")
    a("v_or_b32 v6, s75, v6")
    a("v_xor_b32 v5, v5, v6")
    a("v_lshl_add_u32 v4, v5, 4, v4")
    a("v_and_b32 v6, 1, v3")
    a("v_lshl_add_u32 v4, v6, 3, v4")
    for i in range(4):
        a(f"v_xor_b32 v{16+i}, {i<<5}, v4")
        a(f"v_add_u32 v{20+i}, 0x10000, v{16+i}")
    a("v_and_b32 v2, 15, v0")
    a("v_lshrrev_b32 v3, 1, v2")
    a("v_xor_b32 v3, v3, v1")
    a("v_lshlrev_b32 v4, 7, v2")
    a("v_lshl_add_u32 v4, v3, 4, v4")
    a(f"s_lshl_b32 s75, s{SWM}, 13")
    a("s_add_u32 s75, s75, 16384")
    a("v_add_u32 v24, s75, v4")
    a("v_xor_b32 v25, 64, v24")
    a("v_add_u32 v26, 0x10000, v24")
    a("v_add_u32 v27, 0x10000, v25")
    ACC = 64
    for r in range(64):
        a(f"v_mov_b32 v{ACC+r}, 0")
    def reads(st, h2, buf):
        slot = st % 4
        hi = slot >> 1
        so = (slot & 1) * 32768
        FA = 128 + 32 * buf
        FB = 144 + 32 * buf
        for i in range(4):
            for q in range(2):
                a(f"ds_read_b64_tr_b16 v[{FA+4*i+2*q}:{FA+4*i+2*q+1}], v{16+4*hi+i} offset:{so + h2*8192 + q*1024}")
        for j in range(4):
            a(f"ds_read_b128 v[{FB+4*j}:{FB+4*j+3}], v{24+2*hi+h2} offset:{so + j*2048}")
    def mfmas(buf):
        FA = 128 + 32 * buf
        FB = 144 + 32 * buf
        for i in range(4):
            for j in range(4):
                c = ACC + 16*i + 4*j
                a(f"v_mfma_f32_16x16x32_bf16 v[{c}:{c+3}], v[{FA+4*i}:{FA+4*i+3}], v[{FB+4*j}:{FB+4*j+3}], v[{c}:{c+3}]")
    for st in range(8):
        n_after = min(st + 2, 7) - st if st >= 1 else 3
        a(f"s_waitcnt vmcnt({8*n_after})")
        a("s_barrier")
        if 1 <= st <= 4:
            issue(st + 3)
        reads(st, 0, 0)
        reads(st, 1, 1)
        a("s_waitcnt lgkmcnt(12)")
        mfmas(0)
        a("s_waitcnt lgkmcnt(0)")
        mfmas(1)
    a("s_nop 7")
    a("s_nop 1")
    a("v_lshlrev_b32 v1, 4, v0")
    a(f"s_lshl_b32 s75, s{s_mb8}, 7")
    a(f"s_lshl_b32 s76, s{SWM}, 6")
    a("s_add_u32 s75, s75, s76")
    a(f"s_lshl_b32 s76, s{s_eb}, 2")
    a("s_add_u32 s75, s75, s76")
    a(f"s_lshl_b32 s76, s{SWE}, 1")
    a("s_add_u32 s75, s75, s76")
    a("s_lshl_b32 s75, s75, 10")
    for j in range(4):
        a(f"s_add_u32 s76, s75, {j*16*1024}")
        for sh in range(2):
            t0 = ACC + 16*(2*sh) + 4*j
            t1 = ACC + 16*(2*sh+1) + 4*j
            o = 128 + 4*(2*j+sh)
            a(f"v_cvt_pk_bf16_f32 v{o}, v{t0}, v{t0+1}")
            a(f"v_cvt_pk_bf16_f32 v{o+1}, v{t0+2}, v{t0+3}")
            a(f"v_cvt_pk_bf16_f32 v{o+2}, v{t1}, v{t1+1}")
            a(f"v_cvt_pk_bf16_f32 v{o+3}, v{t1+2}, v{t1+3}")
            a(f"buffer_store_dwordx4 v[{o}:{o+3}], v1, {srd(S_XF)}, s76 offen offset:{sh*1024}")

def role_T(a, s_rb, s_cb, s_w):
    NSL = 10
    a("v_lshrrev_b32 v1, 3, v0")
    a("v_and_b32 v2, 7, v0")
    a("v_bfe_u32 v3, v1, 1, 1")
    a("v_lshlrev_b32 v3, 2, v3")
    a("v_xor_b32 v2, v2, v3")
    a("v_mul_u32_u24 v10, 2752, v1")
    a("v_lshl_add_u32 v10, v2, 4, v10")
    a(f"s_mul_i32 s70, s{s_w}, 11")
    a(f"s_lshl_b32 s71, s{s_cb}, 7")
    a(f"s_mul_i32 s72, s{s_w}, {NSL*4096}")
    def issueV(i):
        slot = i % NSL
        a(f"s_add_u32 s73, s70, {i}")
        a("s_lshr_b32 s74, s73, 1")
        a("s_lshl_b32 s74, s74, 6")
        a("s_and_b32 s73, s73, 1")
        a("s_lshl_b32 s73, s73, 4")
        a("s_add_u32 s73, s73, s74")
        a("s_mul_i32 s73, s73, 2752")
        a("s_add_u32 s73, s73, s71")
        for p, ro in enumerate((0, 8, 32, 40)):
            a(f"s_add_u32 m0, s72, {slot*4096 + p*1024}")
            a(f"s_add_u32 s74, s73, {ro*2752}")
            a(f"buffer_load_dwordx4 v10, {srd(S_V)}, s74 offen lds")
    for i in range(NSL):
        issueV(i)
    a("v_lshrrev_b32 v1, 4, v0")
    a("v_bfe_u32 v2, v0, 2, 2")
    a("v_and_b32 v3, 3, v0")
    a("v_lshl_add_u32 v4, v1, 2, v2")
    a("v_lshlrev_b32 v4, 7, v4")
    a("v_lshl_add_u32 v4, v3, 4, v4")
    a("v_lshrrev_b32 v5, 1, v2")
    a("v_lshl_add_u32 v4, v5, 6, v4")
    a("v_add_u32 v11, s72, v4")
    a("v_xor_b32 v12, 64, v11")
    a("v_lshlrev_b32 v13, 4, v0")
    a(f"s_mul_i32 s75, s{s_rb}, {4*44}")
    a("s_add_u32 s75, s75, s70")
    a("s_lshl_b32 s75, s75, 10")
    def trreads(i):
        slot = i % NSL
        for j in range(4):
            pp, ab = j >> 1, j & 1
            for q in range(2):
                r = 16*i + 4*j + 2*q
                a(f"ds_read_b64_tr_b16 a[{r}:{r+1}], v{11+pp} offset:{slot*4096 + q*2048 + ab*8}")
    for i in range(NSL):
        a(f"s_waitcnt vmcnt({4*(NSL-1-i) + (4 if i >= 1 else 0)})")
        trreads(i)
        if i == 0:
            a("s_waitcnt lgkmcnt(0)")
            issueV(10)
    WB = 64
    for i in range(11):
        for d in range(4):
            a(f"s_add_u32 s76, s75, {(d*44 + i)*1024}")
            r = WB + 16*i + 4*d
            a(f"buffer_load_dwordx4 v[{r}:{r+3}], v13, {srd(S_WQF)}, s76 offen")
    a("s_waitcnt vmcnt(44)")
    trreads(10)
    ACC = 176
    for r in range(64):
        a(f"v_accvgpr_write_b32 a{ACC+r}, 0")
    a("s_waitcnt lgkmcnt(0)")
    for i in range(11):
        a(f"s_waitcnt vmcnt({4*(10-i)})")
        for d in range(4):
            for j in range(4):
                c = ACC + 16*d + 4*j
                ra = WB + 16*i + 4*d
                rb_ = 16*i + 4*j
                a(f"v_mfma_f32_16x16x32_bf16 a[{c}:{c+3}], v[{ra}:{ra+3}], a[{rb_}:{rb_+3}], a[{c}:{c+3}]")
    a("s_nop 7")
    a("s_barrier")
    a("v_lshlrev_b32 v14, 4, v0")
    for w in range(4):
        a(f"s_cmp_eq_u32 s{s_w}, {w}")
        a(f"s_cbranch_scc0 T_red_w{w}_skip")
        for o in range(4):
            if o == w: continue
            rank = (w - o - 1) % 4
            sh, jh = o >> 1, o & 1
            tl = 0
            for d in (2*sh, 2*sh+1):
                for j in (2*jh, 2*jh+1):
                    c = ACC + 16*d + 4*j
                    a(f"ds_write_b128 v14, a[{c}:{c+3}] offset:{o*12288 + (rank*4+tl)*1024}")
                    tl += 1
        sh, jh = w >> 1, w & 1
        tl = 0
        for d in (2*sh, 2*sh+1):
            for j in (2*jh, 2*jh+1):
                c = ACC + 16*d + 4*j
                for r in range(4):
                    a(f"v_accvgpr_read_b32 v{16+4*tl+r}, a{c+r}")
                tl += 1
        a.lab(f"T_red_w{w}_skip")
    a("s_waitcnt lgkmcnt(0)")
    a("s_barrier")
    a(f"s_mul_i32 s76, s{s_w}, 12288")
    a("v_add_u32 v15, s76, v14")
    for k in range(12):
        a(f"ds_read_b128 v[{32+4*k}:{32+4*k+3}], v15 offset:{k*1024}")
    for rank in range(3):
        a(f"s_waitcnt lgkmcnt({8-4*rank})")
        for r in range(16):
            a(f"v_add_f32 v{16+r}, v{16+r}, v{32+16*rank+r}")
    a(f"s_lshr_b32 s76, s{s_w}, 1")
    a(f"s_and_b32 s77, s{s_w}, 1")
    a(f"s_lshl_b32 s78, s{s_cb}, 2")
    a("s_lshl_b32 s77, s77, 1")
    a("s_add_u32 s78, s78, s77")
    a("s_lshl_b32 s78, s78, 4")
    a(f"s_lshl_b32 s77, s{s_rb}, 1")
    a("s_add_u32 s78, s78, s77")
    a("s_add_u32 s78, s78, s76")
    a("s_lshl_b32 s78, s78, 10")
    a("s_add_u32 s79, s78, 16384")
    for jj in range(2):
        t0, t1, o = 16 + 4*jj, 16 + 4*(2+jj), 80 + 4*jj
        a(f"v_cvt_pk_bf16_f32 v{o}, v{t0}, v{t0+1}")
        a(f"v_cvt_pk_bf16_f32 v{o+1}, v{t0+2}, v{t0+3}")
        a(f"v_cvt_pk_bf16_f32 v{o+2}, v{t1}, v{t1+1}")
        a(f"v_cvt_pk_bf16_f32 v{o+3}, v{t1+2}, v{t1+3}")
        a(f"buffer_store_dwordx4 v[{o}:{o+3}], v14, {srd(S_TF)}, s{78+jj} offen")

def role_y(a, s_mb8, s_nbk, s_w):
    a("v_lshlrev_b32 v10, 4, v0")
    a(f"s_mul_i32 s70, s{s_nbk}, {6*16*1024}")
    a(f"s_lshl_b32 s71, s{s_w}, 10")
    a(f"s_lshl_b32 s72, s{s_mb8}, 17")
    a(f"s_lshl_b32 s73, s{s_w}, 15")
    a("s_add_u32 s72, s72, s73")
    for w in range(4):
        a(f"s_cmp_eq_u32 s{s_w}, {w}")
        a(f"s_cbranch_scc0 Y_ld_w{w}_skip")
        for grp in range(4):
            for k in range(6):
                idx = grp*24 + 4*k + w
                s, j = divmod(idx, 6)
                a(f"s_mov_b32 m0, {idx*1024}")
                a(f"s_add_u32 s74, s70, {(j*16+s)*1024}")
                a(f"buffer_load_dwordx4 v10, {srd(S_TF)}, s74 offen lds")
            for s in range(4*grp, 4*grp+4):
                for i in range(2):
                    r = 32*i + 0
                    reg = 8*s + 4*i
                    a(f"s_add_u32 s74, s72, {(i*16+s)*1024}")
                    a(f"buffer_load_dwordx4 a[{reg}:{reg+3}], v10, {srd(S_XF)}, s74 offen")
        a.lab(f"Y_ld_w{w}_skip")
    ACC = 16
    for r in range(48):
        a(f"v_mov_b32 v{ACC+r}, 0")
    FA = 64
    def reads(s, buf):
        for j in range(6):
            r = FA + 24*buf + 4*j
            a(f"ds_read_b128 v[{r}:{r+3}], v10 offset:{((s*6+j)*1024) & 0xffff}" if (s*6+j) < 64 else
              f"ds_read_b128 v[{r}:{r+3}], v11 offset:{((s*6+j-64)*1024)}")
    a("v_add_u32 v11, 0x10000, v10")
    def mf(s, buf):
        for j in range(6):
            for i in range(2):
                c = ACC + 8*j + 4*i
                ra = FA + 24*buf + 4*j
                rb_ = 8*s + 4*i
                a(f"v_mfma_f32_16x16x32_bf16 v[{c}:{c+3}], v[{ra}:{ra+3}], a[{rb_}:{rb_+3}], v[{c}:{c+3}]")
    for grp in range(4):
        a(f"s_waitcnt vmcnt({14*(3-grp)})")
        a("s_barrier")
        s0 = 4*grp
        reads(s0, 0)
        for s in range(s0, s0+4):
            if s + 1 < s0 + 4:
                reads(s+1, (s+1) & 1)
                a("s_waitcnt lgkmcnt(6)")
            else:
                a("s_waitcnt lgkmcnt(0)")
            mf(s, s & 1)
    a("s_nop 7")
    a("s_nop 1")
    a("v_and_b32 v1, 15, v0")
    a("v_lshrrev_b32 v2, 4, v0")
    a("v_mul_u32_u24 v3, 2752, v1")
    a("v_lshl_add_u32 v3, v2, 4, v3")
    a(f"s_lshl_b32 s74, s{s_mb8}, 7")
    a(f"s_lshl_b32 s75, s{s_w}, 5")
    a("s_add_u32 s74, s74, s75")
    a("s_mul_i32 s74, s74, 2752")
    a(f"s_mul_i32 s75, s{s_nbk}, 192")
    a("s_add_u32 s74, s74, s75")
    a(f"s_add_u32 s75, s74, {16*2752}")
    for p in range(3):
        if p == 1:
            a(f"s_cmp_eq_u32 s{s_nbk}, 14")
            a("s_cbranch_scc1 Y_done")
        for i in range(2):
            t0 = ACC + 8*(2*p) + 4*i
            t1 = ACC + 8*(2*p+1) + 4*i
            o = 112 + 4*(2*p+i)
            a(f"v_cvt_pk_bf16_f32 v{o}, v{t0}, v{t0+1}")
            a(f"v_cvt_pk_bf16_f32 v{o+1}, v{t0+2}, v{t0+3}")
            a(f"v_cvt_pk_bf16_f32 v{o+2}, v{t1}, v{t1+1}")
            a(f"v_cvt_pk_bf16_f32 v{o+3}, v{t1+2}, v{t1+3}")
            a(f"buffer_store_dwordx4 v[{o}:{o+3}], v3, {srd(S_OUT)}, s{74+i} offen offset:{64*p}")
    a.lab("Y_done")

def kd(name, vgpr, accum, sgpr=96):
    return f""".p2align 6
.amdhsa_kernel {name}
  .amdhsa_next_free_vgpr {vgpr}
  .amdhsa_next_free_sgpr {sgpr}
  .amdhsa_accum_offset {accum}
  .amdhsa_group_segment_fixed_size 0
  .amdhsa_kernarg_size 72
  .amdhsa_user_sgpr_count 2
  .amdhsa_user_sgpr_kernarg_segment_ptr 1
  .amdhsa_system_sgpr_workgroup_id_x 1
.end_amdhsa_kernel
"""

HEADER = open("cdna_kernels/" + NAME + ".s.ref").read().split("; Override launch")[0]

def build():
    a = A()
    out = HEADER
    out += "; @launch kernel=k1_kernel grid=(240,1,1) block=(256,1,1) lds=131072\n"
    out += "; @launch kernel=k2_kernel grid=(192,1,1) block=(256,1,1) lds=163840\n"
    out += "; @launch kernel=k3_kernel grid=(240,1,1) block=(256,1,1) lds=98304\n"
    out += '.amdgcn_target "amdgcn-amd-amdhsa--gfx950"\n.text\n'
    a.l.append(".globl k1_kernel\n.p2align 8\n.type k1_kernel,@function\nk1_kernel:")
    a("s_cmp_ge_u32 s2, 240")
    a("s_cbranch_scc1 K1_end")
    prologue(a, ["x", "u", "xf", "qw", "sc", "zr", "wqf"])
    wave_id(a, 66)
    a("s_cmp_ge_u32 s2, 64")
    a("s_cbranch_scc1 K1_prep")
    a("s_and_b32 s67, s2, 7")
    a("s_lshr_b32 s68, s2, 3")
    a("s_and_b32 s69, s67, 1")
    a("s_lshl_b32 s69, s69, 1")
    a("s_and_b32 s80, s68, 1")
    a("s_add_u32 s80, s80, s69")
    a("s_lshr_b32 s69, s67, 1")
    a("s_lshl_b32 s69, s69, 2")
    a("s_lshr_b32 s81, s68, 1")
    a("s_add_u32 s81, s81, s69")
    role_xr(a, 80, 81, 66)
    a("s_endpgm")
    a.lab("K1_prep")
    a("s_sub_u32 s67, s2, 64")
    a("s_lshl_b32 s67, s67, 2")
    a("s_add_u32 s67, s67, s66")
    role_prep(a, 67)
    a.lab("K1_end")
    a("s_endpgm")
    a.l.append(".globl k2_kernel\n.p2align 8\n.type k2_kernel,@function\nk2_kernel:")
    a("s_cmp_ge_u32 s2, 192")
    a("s_cbranch_scc1 K2_end")
    a("s_and_b32 s67, s2, 7")
    a("s_lshr_b32 s68, s2, 3")
    a("s_and_b32 s69, s67, 1")
    a("s_lshl_b32 s69, s69, 2")
    a("s_and_b32 s80, s68, 3")
    a("s_add_u32 s80, s80, s69")
    a("s_lshr_b32 s68, s68, 2")
    a("s_lshr_b32 s67, s67, 1")
    a("s_and_b32 s69, s67, 1")
    a("s_sub_u32 s69, 6, s69")
    a("s_cmp_ge_u32 s68, s69")
    a("s_cbranch_scc1 K2_end")
    a("s_mul_i32 s81, s67, 11")
    a("s_add_u32 s81, s81, 1")
    a("s_lshr_b32 s81, s81, 1")
    a("s_add_u32 s81, s81, s68")
    prologue(a, ["v", "wqf", "tf"])
    wave_id(a, 66)
    role_T(a, 80, 81, 66)
    a.lab("K2_end")
    a("s_endpgm")
    a.l.append(".globl k3_kernel\n.p2align 8\n.type k3_kernel,@function\nk3_kernel:")
    a("s_cmp_ge_u32 s2, 240")
    a("s_cbranch_scc1 K3_end")
    a("s_and_b32 s67, s2, 7")
    a("s_lshr_b32 s68, s2, 3")
    a("s_and_b32 s80, s68, 1")
    a("s_lshl_b32 s67, s67, 1")
    a("s_add_u32 s80, s80, s67")
    a("s_lshr_b32 s81, s68, 1")
    prologue(a, ["xf", "tf", "out"])
    wave_id(a, 66)
    role_y(a, 80, 81, 66)
    a.lab("K3_end")
    a("s_endpgm")
    out += a.text()
    out += '.section .rodata,"a"\n'
    out += kd("k1_kernel", 192, 192)
    out += kd("k2_kernel", 512, 256)
    out += kd("k3_kernel", 136 + 128, 136)
    return out

if __name__ == "__main__":
    dst = sys.argv[1] if len(sys.argv) > 1 else "cdna_kernels/" + NAME + ".s"
    open(dst, "w").write(build())
    print("wrote", dst)
```

```python
import sys

NAME = "standalone__weight_only_int_quip__prompt"
M, D, F = 2048, 512, 1376
WQF_OFF, WQF_SZ = 0x000000, 32 * 44 * 1024
XF_OFF, XF_SZ = 0x200000, 128 * 16 * 1024
TF_OFF, TF_SZ = 0x400000, 86 * 16 * 1024
FL_OFF, FL_SZ = 0x600000, 0x4000
F1_B, F2_B, F3_B = 0x0000, 0x1000, 0x2000
STAMPS = False
SPIN_MAX = 200000
LDSC = ' sc1'


class A:
    def __init__(s):
        s.l = []
        s.vm = []
        s.nst = 0
        s.uid = 0
    def __call__(s, x):
        s.l.append("  " + x)
    def lab(s, x):
        s.l.append(x + ":")
    def text(s):
        return "\n".join(s.l) + "\n"
    def vmem(s, x, tag):
        s(x); s.vm.append(tag)
    def wait(s, tag, extra=""):
        idx = [i for i, t in enumerate(s.vm) if t == tag]
        if not idx:
            return
        n = len(s.vm) - 1 - idx[-1]
        assert n <= 63, n
        s(f"s_waitcnt vmcnt({n}){extra}")
        s.vm = s.vm[idx[-1] + 1:]
    def waitall(s):
        s("s_waitcnt vmcnt(0)"); s.vm = []
    def new(s, p):
        s.uid += 1
        return f"{p}_{s.uid}"
    def stamp(s):
        if not STAMPS: return
        i = s.nst; s.nst += 1
        assert i < 24, i
        s("s_memrealtime s[100:101]")
        s("s_waitcnt lgkmcnt(0)")
        s(f"s_mov_b32 s{76+i}, s100")

S_X, S_QW, S_SC, S_ZR, S_U, S_V, S_OUT, S_WQF, S_XF, S_TF, S_FL, S_DBG = [8 + 4*i for i in range(12)]
S_W, S_NONCE, S_A, S_B, S_MB8, S_NBK = 56, 57, 58, 59, 60, 61
T0 = 62
def srd(i): return f"s[{i}:{i+3}]"

def prologue(a):
    a("s_load_dwordx16 s[76:91], s[0:1], 0")
    a("s_load_dwordx2 s[92:93], s[0:1], 64")
    a("v_lshrrev_b32 v1, 6, v0")
    a("v_and_b32 v0, 63, v0")
    a(f"v_readfirstlane_b32 s{S_W}, v1")
    a("s_waitcnt lgkmcnt(0)")
    tbl = [(S_X, 76, M*D*2), (S_QW, 78, D*F*4), (S_SC, 80, 4*F*2), (S_ZR, 82, 4*F*2),
           (S_U, 84, D*D*2), (S_V, 86, F*F*2), (S_OUT, 88, M*F*2), (S_DBG, 90, 256)]
    for r, p, sz in tbl:
        a(f"s_mov_b32 s{r}, s{p}")
        a(f"s_and_b32 s{r+1}, s{p+1}, 0xffff")
        a(f"s_mov_b32 s{r+2}, {sz}")
        a(f"s_mov_b32 s{r+3}, 0x20000")
    for r, off, sz in [(S_WQF, WQF_OFF, WQF_SZ), (S_XF, XF_OFF, XF_SZ), (S_TF, TF_OFF, TF_SZ), (S_FL, FL_OFF, FL_SZ)]:
        a(f"s_add_u32 s{r}, s92, {off}")
        a(f"s_addc_u32 s{r+1}, s93, 0")
        a(f"s_and_b32 s{r+1}, s{r+1}, 0xffff")
        a(f"s_mov_b32 s{r+2}, {sz}")
        a(f"s_mov_b32 s{r+3}, 0x20000")

def stamp_flush(a):
    if not STAMPS: return
    a.stamp()
    a("s_waitcnt vmcnt(0)")
    a.stamp()
    n = a.nst
    a("s_load_dwordx2 s[62:63], s[0:1], 64")
    a("s_waitcnt lgkmcnt(0)")
    a("s_add_u32 s8, s62, 0x800000")
    a("s_addc_u32 s9, s63, 0")
    a("s_and_b32 s9, s9, 0xffff")
    a("s_mov_b32 s10, 0x100000")
    a("s_mov_b32 s11, 0x20000")
    a("s_lshl_b32 s64, s2, 2")
    a(f"s_add_u32 s64, s64, s{S_W}")
    a("s_lshl_b32 s64, s64, 7")
    a("s_mov_b64 exec, 1")
    a("v_mov_b32 v3, 0")
    for i in range(n):
        a(f"v_mov_b32 v4, s{76+i}")
        a(f"buffer_store_dword v4, v3, s[8:11], s64 offen offset:{4*i}")
        a("s_nop 1")

def nonce_get(a, vreg, after_issue=None):
    a.vmem(f"buffer_load_dword v{vreg}, off, {srd(S_DBG)}, 0 sc1", "N")

def nonce_check(a, vreg):
    L, Dn = a.new("NC"), a.new("ND")
    a(f"v_readfirstlane_b32 s{S_NONCE}, v{vreg}")
    a(f"s_mov_b32 s{T0}, {SPIN_MAX}")
    a.lab(L)
    a(f"s_cmp_lg_u32 s{S_NONCE}, 0")
    a(f"s_cbranch_scc1 {Dn}")
    a(f"s_sub_u32 s{T0}, s{T0}, 1")
    a(f"s_cbranch_scc1 {Dn}")
    a("s_sleep 2")
    a(f"buffer_load_dword v{vreg}, off, {srd(S_DBG)}, 0 sc1")
    a("s_waitcnt vmcnt(0)")
    a(f"v_readfirstlane_b32 s{S_NONCE}, v{vreg}")
    a(f"s_branch {L}")
    a.lab(Dn)

def poll_issue(a, vreg, voff, soff, tag):
    a.vmem(f"buffer_load_dword v{vreg}, v{voff}, {srd(S_FL)}, {soff} offen sc1", tag)

def poll_check(a, regs, voffs, soff):
    L, Dn = a.new("PL"), a.new("PD")
    a(f"s_mov_b32 s{T0}, {SPIN_MAX}")
    a.lab(L)
    a(f"v_cmp_ne_u32 s[{T0+2}:{T0+3}], s{S_NONCE}, v{regs[0]}")
    for r in regs[1:]:
        a(f"v_cmp_ne_u32 s[{T0+4}:{T0+5}], s{S_NONCE}, v{r}")
        a(f"s_or_b64 s[{T0+2}:{T0+3}], s[{T0+2}:{T0+3}], s[{T0+4}:{T0+5}]")
    a(f"s_cmp_eq_u64 s[{T0+2}:{T0+3}], 0")
    a(f"s_cbranch_scc1 {Dn}")
    a(f"s_sub_u32 s{T0}, s{T0}, 1")
    a(f"s_cbranch_scc1 {Dn}")
    a("s_sleep 1")
    for r, vo in zip(regs, voffs):
        a(f"buffer_load_dword v{r}, v{vo}, {srd(S_FL)}, {soff} offen sc1")
    a("s_waitcnt vmcnt(0)")
    a(f"s_branch {L}")
    a.lab(Dn)

def flag_store(a, soff, vtmp, vzero):
    a(f"v_mov_b32 v{vtmp}, s{S_NONCE}")
    a("s_mov_b64 exec, 1")
    a.vmem(f"buffer_store_dword v{vtmp}, off, {srd(S_FL)}, {soff} sc1", "F")
    a("s_mov_b64 exec, -1")

def prep_issue(a, s_db, s_kb, V):
    t = T0
    a(f"v_lshrrev_b32 v{V+1}, 3, v0")
    a(f"v_and_b32 v{V+2}, 7, v0")
    a(f"v_mul_u32_u24 v{V+3}, 5504, v{V+1}")
    a(f"v_lshl_add_u32 v{V+3}, v{V+2}, 4, v{V+3}")
    a(f"v_lshlrev_b32 v{V+4}, 3, v{V+2}")
    a(f"s_cmp_eq_u32 s{s_kb}, 21")
    a(f"s_cselect_b32 s{t}, 0x40000000, 128")
    a(f"s_cselect_b32 s{t+1}, 0x40000000, 64")
    a(f"v_add_u32 v{V+5}, s{t}, v{V+3}")
    a(f"v_add_u32 v{V+6}, s{t+1}, v{V+4}")
    a(f"s_mul_i32 s{t+2}, s{s_db}, 88064")
    a(f"s_lshl_b32 s{t+3}, s{s_kb}, 8")
    a(f"s_add_u32 s{t+2}, s{t+2}, s{t+3}")
    a(f"s_add_u32 s{t+3}, s{t+2}, 44032")
    a(f"s_lshr_b32 s{t+4}, s{s_db}, 3")
    a(f"s_mul_i32 s{t+4}, s{t+4}, 2752")
    a(f"s_lshl_b32 s{t+5}, s{s_kb}, 7")
    a(f"s_add_u32 s{t+4}, s{t+4}, s{t+5}")
    a.vmem(f"buffer_load_dwordx4 v[{V+8}:{V+11}], v{V+3}, {srd(S_QW)}, s{t+2} offen", "P")
    a.vmem(f"buffer_load_dwordx4 v[{V+12}:{V+15}], v{V+5}, {srd(S_QW)}, s{t+2} offen", "P")
    a.vmem(f"buffer_load_dwordx4 v[{V+16}:{V+19}], v{V+3}, {srd(S_QW)}, s{t+3} offen", "P")
    a.vmem(f"buffer_load_dwordx4 v[{V+20}:{V+23}], v{V+5}, {srd(S_QW)}, s{t+3} offen", "P")
    a.vmem(f"buffer_load_dwordx2 v[{V+24}:{V+25}], v{V+4}, {srd(S_SC)}, s{t+4} offen", "P")
    a.vmem(f"buffer_load_dwordx2 v[{V+26}:{V+27}], v{V+6}, {srd(S_SC)}, s{t+4} offen", "P")
    a.vmem(f"buffer_load_dwordx2 v[{V+28}:{V+29}], v{V+4}, {srd(S_ZR)}, s{t+4} offen", "P")
    a.vmem(f"buffer_load_dwordx2 v[{V+30}:{V+31}], v{V+6}, {srd(S_ZR)}, s{t+4} offen", "P")
    a(f"v_lshrrev_b32 v{V+7}, 2, v{V+2}")
    a(f"v_lshlrev_b32 v{V+7}, 10, v{V+7}")
    a(f"v_and_b32 v{V+32}, 3, v{V+2}")
    a(f"v_lshl_add_u32 v{V+7}, v{V+32}, 8, v{V+7}")
    a(f"v_lshl_add_u32 v{V+7}, v{V+1}, 4, v{V+7}")

def prep_finish(a, s_db, s_kb, V):
    t = T0
    a(f"s_mul_i32 s{t}, s{s_db}, 44")
    a(f"s_lshl_b32 s{t+1}, s{s_kb}, 1")
    a(f"s_add_u32 s{t}, s{t}, s{t+1}")
    a(f"s_lshl_b32 s{t}, s{t}, 10")
    a(f"s_mov_b32 s{t+1}, 0xffff0000")
    for i in range(4):
        a(f"v_lshlrev_b32 v{V+32+2*i}, 16, v{V+24+i}")
        a(f"v_and_b32 v{V+33+2*i}, s{t+1}, v{V+24+i}")
        a(f"v_lshlrev_b32 v{V+40+2*i}, 16, v{V+28+i}")
        a(f"v_and_b32 v{V+41+2*i}, s{t+1}, v{V+28+i}")
    for rh in range(2):
        q = V + 8 + 8 * rh
        for i in range(8):
            a(f"v_cvt_f32_i32 v{q+i}, v{q+i}")
        for i in range(8):
            a(f"v_sub_f32 v{q+i}, v{q+i}, v{V+40+i}")
        for i in range(4):
            a(f"v_cvt_pk_bf16_f32 v{V+48+i}, v{q+2*i}, v{q+2*i+1}")
        for i in range(4):
            a(f"v_lshlrev_b32 v{q+2*i}, 16, v{V+48+i}")
            a(f"v_and_b32 v{q+2*i+1}, s{t+1}, v{V+48+i}")
        for i in range(8):
            a(f"v_mul_f32 v{q+i}, v{q+i}, v{V+32+i}")
        o = V + 52 + 4 * rh
        for i in range(4):
            a(f"v_cvt_pk_bf16_f32 v{o+i}, v{q+2*i}, v{q+2*i+1}")
        a.vmem(f"buffer_store_dwordx4 v[{o}:{o+3}], v{V+7}, {srd(S_WQF)}, s{t} offen offset:{128*rh} sc1", "S")

def role_xr(a, s_eb, s_mb8, s_rot):
    s_w = S_W
    SWE, SWM, UB, XB, LB, TT = 64, 65, 66, 67, 68, 69
    a(f"s_and_b32 s{SWE}, s{s_w}, 1")
    a(f"s_lshr_b32 s{SWM}, s{s_w}, 1")
    a("v_lshrrev_b32 v1, 4, v0")
    a("v_and_b32 v2, 15, v0")
    a("v_lshlrev_b32 v3, 1, v1")
    a("v_xor_b32 v4, v2, v3")
    a("v_xor_b32 v5, 8, v4")
    a("v_lshlrev_b32 v6, 10, v1")
    a("v_lshl_add_u32 v10, v4, 4, v6")
    a("v_lshl_add_u32 v11, v5, 4, v6")
    a("v_lshrrev_b32 v1, 3, v0")
    a("v_and_b32 v2, 7, v0")
    a("v_lshrrev_b32 v3, 1, v1")
    a("v_xor_b32 v4, v2, v3")
    a("v_xor_b32 v5, 4, v4")
    a("v_lshlrev_b32 v6, 10, v1")
    a("v_lshl_add_u32 v12, v4, 4, v6")
    a("v_lshl_add_u32 v13, v5, 4, v6")
    a(f"s_lshl_b32 s{UB}, s{s_w}, 14")
    a(f"s_lshl_b32 s{TT}, s{s_eb}, 8")
    a(f"s_add_u32 s{UB}, s{UB}, s{TT}")
    a(f"s_lshl_b32 s{XB}, s{s_mb8}, 17")
    a(f"s_lshl_b32 s{TT}, s{s_w}, 15")
    a(f"s_add_u32 s{XB}, s{XB}, s{TT}")
    a(f"s_lshl_b32 s{LB}, s{s_w}, 12")
    NSL = 4
    def issue(st):
        slot = st % NSL
        a(f"s_add_u32 s70, s{s_rot}, {st}")
        a("s_and_b32 s70, s70, 7")
        a("s_lshl_b32 s71, s70, 16")
        a(f"s_add_u32 s71, s71, s{UB}")
        a("s_lshl_b32 s72, s70, 7")
        a(f"s_add_u32 s72, s72, s{XB}")
        for aa in range(4):
            a(f"s_add_u32 m0, s{LB}, {slot*32768 + aa*1024}")
            a(f"s_add_u32 s{TT}, s71, {aa*4096}")
            a.vmem(f"buffer_load_dwordx4 v{10 + (aa>>1)}, {srd(S_U)}, s{TT} offen lds", f"X{st}")
        for bb in range(4):
            a(f"s_add_u32 m0, s{LB}, {slot*32768 + 16384 + bb*1024}")
            a(f"s_add_u32 s{TT}, s72, {bb*8192}")
            a.vmem(f"buffer_load_dwordx4 v{12 + (bb&1)}, {srd(S_X)}, s{TT} offen lds", f"X{st}")
    for st in range(3):
        issue(st)
    a.stamp()
    a("v_lshrrev_b32 v1, 4, v0")
    a("v_bfe_u32 v2, v0, 2, 2")
    a("v_and_b32 v3, 3, v0")
    a("v_lshl_add_u32 v4, v1, 3, v2")
    a("v_lshlrev_b32 v4, 8, v4")
    a("v_and_b32 v5, 1, v1")
    a("v_lshlrev_b32 v5, 3, v5")
    a("v_lshl_add_u32 v5, v2, 1, v5")
    a("v_lshrrev_b32 v6, 1, v3")
    a(f"s_lshl_b32 s{TT}, s{SWE}, 3")
    a(f"v_or_b32 v6, s{TT}, v6")
    a("v_xor_b32 v5, v5, v6")
    a("v_lshl_add_u32 v4, v5, 4, v4")
    a("v_and_b32 v6, 1, v3")
    a("v_lshl_add_u32 v4, v6, 3, v4")
    for i in range(4):
        a(f"v_xor_b32 v{16+i}, {i<<5}, v4")
        a(f"v_add_u32 v{20+i}, 0x10000, v{16+i}")
    a("v_and_b32 v2, 15, v0")
    a("v_lshrrev_b32 v3, 1, v2")
    a("v_xor_b32 v3, v3, v1")
    a("v_lshlrev_b32 v4, 7, v2")
    a("v_lshl_add_u32 v4, v3, 4, v4")
    a(f"s_lshl_b32 s{TT}, s{SWM}, 13")
    a(f"s_add_u32 s{TT}, s{TT}, 16384")
    a(f"v_add_u32 v24, s{TT}, v4")
    a("v_xor_b32 v25, 64, v24")
    a("v_add_u32 v26, 0x10000, v24")
    a("v_add_u32 v27, 0x10000, v25")
    ACC = 64
    for r in range(64):
        a(f"v_mov_b32 v{ACC+r}, 0")
    def reads(st, h2, buf):
        slot = st % NSL
        hi = slot >> 1
        so = (slot & 1) * 32768
        FA = 128 + 32 * buf
        FB = 144 + 32 * buf
        for j in range(4):
            a(f"ds_read_b128 v[{FB+4*j}:{FB+4*j+3}], v{24+2*hi+h2} offset:{so + j*2048}")
        for i in range(4):
            for q in range(2):
                a(f"ds_read_b64_tr_b16 v[{FA+4*i+2*q}:{FA+4*i+2*q+1}], v{16+4*hi+i} offset:{so + h2*8192 + q*1024}")
    def mfmas(buf):
        FA = 128 + 32 * buf
        FB = 144 + 32 * buf
        for i in range(4):
            for j in range(4):
                c = ACC + 16*i + 4*j
                a(f"v_mfma_f32_16x16x32_bf16 v[{c}:{c+3}], v[{FA+4*i}:{FA+4*i+3}], v[{FB+4*j}:{FB+4*j+3}], v[{c}:{c+3}]")
    for st in range(8):
        a.wait(f"X{st}")
        a("s_barrier")
        if st == 0: a.stamp()
        reads(st, 0, 0)
        reads(st, 1, 1)
        if st + 3 < 8:
            issue(st + 3)
        if st == 4:
            nonce_get(a, 28)
        a("s_waitcnt lgkmcnt(12)")
        mfmas(0)
        a("s_waitcnt lgkmcnt(0)")
        mfmas(1)
    a("s_nop 7")
    a("s_nop 1")
    a.stamp()
    a("v_lshlrev_b32 v1, 4, v0")
    a(f"s_lshl_b32 s70, s{s_mb8}, 7")
    a(f"s_lshl_b32 s71, s{SWM}, 6")
    a("s_add_u32 s70, s70, s71")
    a(f"s_lshl_b32 s71, s{s_eb}, 2")
    a("s_add_u32 s70, s70, s71")
    a(f"s_lshl_b32 s71, s{SWE}, 1")
    a("s_add_u32 s70, s70, s71")
    a("s_lshl_b32 s70, s70, 10")
    for j in range(4):
        a(f"s_add_u32 s71, s70, {j*16*1024}")
        for sh in range(2):
            t0 = ACC + 16*(2*sh) + 4*j
            t1 = ACC + 16*(2*sh+1) + 4*j
            o = 128 + 4*(2*j+sh)
            a(f"v_cvt_pk_bf16_f32 v{o}, v{t0}, v{t0+1}")
            a(f"v_cvt_pk_bf16_f32 v{o+1}, v{t0+2}, v{t0+3}")
            a(f"v_cvt_pk_bf16_f32 v{o+2}, v{t1}, v{t1+1}")
            a(f"v_cvt_pk_bf16_f32 v{o+3}, v{t1+2}, v{t1+3}")
            a.vmem(f"buffer_store_dwordx4 v[{o}:{o+3}], v1, {srd(S_XF)}, s71 offen offset:{sh*1024} sc1", "S")
    a.wait("S")
    nonce_check(a, 28)
    a(f"s_lshl_b32 s70, s{s_mb8}, 6")
    a(f"s_lshl_b32 s71, s{s_eb}, 4")
    a("s_add_u32 s70, s70, s71")
    a(f"s_lshl_b32 s71, s{s_w}, 2")
    a("s_add_u32 s70, s70, s71")
    a(f"s_add_u32 s70, s70, {F3_B}")
    flag_store(a, "s70", 2, None)
    a("s_barrier")
    a.stamp()

def role_T(a, s_rb, s_cb, s_rot):
    s_w = S_W
    NSL = 10
    TB, CBO, LB, WBASE, DBS = 64, 65, 66, 67, 68
    a(f"s_lshl_b32 s{DBS}, s{s_rb}, 2")
    a(f"s_add_u32 s{DBS}, s{DBS}, s{s_w}")
    PV = 160
    prep_issue(a, DBS, s_cb, PV)
    a("v_lshrrev_b32 v1, 3, v0")
    a("v_and_b32 v2, 7, v0")
    a("v_bfe_u32 v3, v1, 1, 1")
    a("v_lshlrev_b32 v3, 2, v3")
    a("v_xor_b32 v2, v2, v3")
    a("v_mul_u32_u24 v10, 2752, v1")
    a("v_lshl_add_u32 v10, v2, 4, v10")
    TB, CBO, LB, WBASE = 69, 70, 71, 72
    a(f"s_mul_i32 s73, s{s_w}, 11")
    a(f"s_add_u32 s{TB}, s{s_rot}, s73")
    a(f"s_lshl_b32 s{CBO}, s{s_cb}, 7")
    a(f"s_mul_i32 s{LB}, s{s_w}, {NSL*4096}")
    def step_t(i, dst):
        a(f"s_add_u32 s{dst}, s{TB}, {i}")
        a(f"s_cmp_ge_u32 s{dst}, 44")
        a(f"s_cselect_b32 s75, 44, 0")
        a(f"s_sub_u32 s{dst}, s{dst}, s75")
    def issueV(i):
        slot = i % NSL
        step_t(i, 73)
        a("s_lshr_b32 s74, s73, 1")
        a("s_lshl_b32 s74, s74, 6")
        a("s_and_b32 s73, s73, 1")
        a("s_lshl_b32 s73, s73, 4")
        a("s_add_u32 s73, s73, s74")
        a("s_mul_i32 s73, s73, 2752")
        a(f"s_add_u32 s73, s73, s{CBO}")
        for p, ro in enumerate((0, 8, 32, 40)):
            a(f"s_add_u32 m0, s{LB}, {slot*4096 + p*1024}")
            a(f"s_add_u32 s74, s73, {ro*2752}")
            a.vmem(f"buffer_load_dwordx4 v10, {srd(S_V)}, s74 offen lds", f"V{i}")
    NV0 = 1
    for i in range(NV0):
        issueV(i)
    a.stamp()
    a("v_lshrrev_b32 v1, 4, v0")
    a("v_bfe_u32 v2, v0, 2, 2")
    a("v_and_b32 v3, 3, v0")
    a("v_lshl_add_u32 v4, v1, 2, v2")
    a("v_lshlrev_b32 v4, 7, v4")
    a("v_lshl_add_u32 v4, v3, 4, v4")
    a("v_lshrrev_b32 v5, 1, v2")
    a("v_lshl_add_u32 v4, v5, 6, v4")
    a(f"v_add_u32 v11, s{LB}, v4")
    a("v_xor_b32 v12, 64, v11")
    a("v_lshlrev_b32 v13, 4, v0")
    a("v_lshlrev_b32 v14, 2, v0")
    a("v_add_u32 v15, 64, v0")
    a("v_min_u32 v15, 87, v15")
    a("v_lshlrev_b32 v15, 2, v15")
    a.wait("P")
    a.stamp()
    nonce_get(a, 9)
    prep_finish(a, DBS, s_cb, PV)
    NV1 = 3
    for i in range(NV0, NV1):
        issueV(i)
    a.wait("S")
    a.stamp()
    nonce_check(a, 9)
    a(f"s_mul_i32 s73, s{s_rb}, 22")
    a(f"s_add_u32 s73, s73, s{s_cb}")
    a("s_lshl_b32 s73, s73, 2")
    a(f"s_add_u32 s73, s73, s{s_w}")
    a("s_lshl_b32 s73, s73, 2")
    a(f"s_add_u32 s73, s73, {F1_B}")
    flag_store(a, "s73", 2, None)
    def trreads(i):
        slot = i % NSL
        for j in range(4):
            pp, ab = j >> 1, j & 1
            for q in range(2):
                r = 16*i + 4*j + 2*q
                a(f"ds_read_b64_tr_b16 a[{r}:{r+1}], v{11+pp} offset:{slot*4096 + q*2048 + ab*8}")
    for i in range(NV1, NSL):
        issueV(i)
    a.wait("V0")
    trreads(0)
    a("s_waitcnt lgkmcnt(0)")
    issueV(10)
    for i in range(1, NSL):
        a.wait(f"V{i}")
        trreads(i)
    a(f"s_mul_i32 s62, s{s_rb}, {22*16}")
    a(f"s_add_u32 s63, s62, {F1_B}")
    a("s_nop 0")
    poll_issue(a, 16, 14, "s63", "Q")
    poll_issue(a, 17, 15, "s63", "Q")
    a.wait("V10")
    trreads(10)
    ACC = 176
    for r in range(64):
        a(f"v_accvgpr_write_b32 a{ACC+r}, 0")
    a.wait("Q")
    a.stamp()
    a("s_mov_b32 s68, s63")
    poll_check(a, [16, 17], [14, 15], "s68")
    a.stamp()
    a(f"s_mul_i32 s{WBASE}, s{s_rb}, {4*44}")
    WB = 64
    def issueW(i):
        step_t(i, 73)
        a(f"s_add_u32 s73, s73, s{WBASE}")
        a("s_lshl_b32 s73, s73, 10")
        for d in range(4):
            a(f"s_add_u32 s74, s73, {d*44*1024}")
            r = WB + 16*i + 4*d
            a.vmem(f"buffer_load_dwordx4 v[{r}:{r+3}], v13, {srd(S_WQF)}, s74 offen{LDSC}", f"W{i}")
    PRE = 4
    for i in range(PRE):
        issueW(i)
    a("s_waitcnt lgkmcnt(0)")
    for i in range(11):
        a.wait(f"W{i}")
        if i + PRE < 11:
            issueW(i + PRE)
        for d in range(4):
            for j in range(4):
                c = ACC + 16*d + 4*j
                ra = WB + 16*i + 4*d
                rb_ = 16*i + 4*j
                a(f"v_mfma_f32_16x16x32_bf16 a[{c}:{c+3}], v[{ra}:{ra+3}], a[{rb_}:{rb_+3}], a[{c}:{c+3}]")
    a("s_nop 7")
    a.stamp()
    a("s_barrier")
    a("v_lshlrev_b32 v14, 4, v0")
    for w in range(4):
        sk = a.new("TR")
        a(f"s_cmp_eq_u32 s{s_w}, {w}")
        a(f"s_cbranch_scc0 {sk}")
        for o in range(4):
            if o == w: continue
            rank = (w - o - 1) % 4
            sh, jh = o >> 1, o & 1
            tl = 0
            for d in (2*sh, 2*sh+1):
                for j in (2*jh, 2*jh+1):
                    c = ACC + 16*d + 4*j
                    a(f"ds_write_b128 v14, a[{c}:{c+3}] offset:{o*12288 + (rank*4+tl)*1024}")
                    tl += 1
        sh, jh = w >> 1, w & 1
        tl = 0
        for d in (2*sh, 2*sh+1):
            for j in (2*jh, 2*jh+1):
                c = ACC + 16*d + 4*j
                for r in range(4):
                    a(f"v_accvgpr_read_b32 v{16+4*tl+r}, a{c+r}")
                tl += 1
        a.lab(sk)
    a("s_waitcnt lgkmcnt(0)")
    a("s_barrier")
    a(f"s_mul_i32 s73, s{s_w}, 12288")
    a("v_add_u32 v15, s73, v14")
    for k in range(12):
        a(f"ds_read_b128 v[{32+4*k}:{32+4*k+3}], v15 offset:{k*1024}")
    for rank in range(3):
        a(f"s_waitcnt lgkmcnt({8-4*rank})")
        for r in range(16):
            a(f"v_add_f32 v{16+r}, v{16+r}, v{32+16*rank+r}")
    a(f"s_lshr_b32 s62, s{s_w}, 1")
    a(f"s_and_b32 s63, s{s_w}, 1")
    a(f"s_lshl_b32 s64, s{s_cb}, 1")
    a("s_add_u32 s64, s64, s63")
    a(f"s_lshl_b32 s65, s{s_rb}, 1")
    a("s_add_u32 s65, s65, s62")
    a("s_lshl_b32 s66, s64, 5")
    a("s_add_u32 s66, s66, s65")
    a("s_lshl_b32 s66, s66, 10")
    a("s_add_u32 s67, s66, 16384")
    for jj in range(2):
        t0, t1, o = 16 + 4*jj, 16 + 4*(2+jj), 80 + 4*jj
        a(f"v_cvt_pk_bf16_f32 v{o}, v{t0}, v{t0+1}")
        a(f"v_cvt_pk_bf16_f32 v{o+1}, v{t0+2}, v{t0+3}")
        a(f"v_cvt_pk_bf16_f32 v{o+2}, v{t1}, v{t1+1}")
        a(f"v_cvt_pk_bf16_f32 v{o+3}, v{t1+2}, v{t1+3}")
        a.vmem(f"buffer_store_dwordx4 v[{o}:{o+3}], v14, {srd(S_TF)}, s{66+jj} offen sc1", "S2")
    a.wait("S2")
    a("s_lshl_b32 s64, s64, 4")
    a("s_add_u32 s64, s64, s65")
    a("s_lshl_b32 s64, s64, 2")
    a(f"s_add_u32 s64, s64, {F2_B}")
    flag_store(a, "s64", 2, None)
    a("s_barrier")
    a.stamp()

def role_y(a):
    s_w, s_mb8, s_nbk = S_W, S_MB8, S_NBK
    a.vm = []
    a("v_lshlrev_b32 v10, 4, v0")
    a("v_add_u32 v11, 0x10000, v10")
    a(f"s_and_b32 s74, s{s_mb8}, 3")
    a("s_lshl_b32 s74, s74, 2")
    a(f"s_and_b32 s63, s{s_nbk}, 7")
    a("s_lshl_b32 s63, s63, 1")
    a("s_add_u32 s74, s74, s63")
    a("v_and_b32 v12, 3, v0")
    a("v_lshlrev_b32 v12, 4, v12")
    a("v_bfe_u32 v13, v0, 2, 1")
    a("v_lshl_add_u32 v12, v13, 2, v12")
    a(f"s_lshr_b32 s63, s{s_w}, 1")
    a("s_lshl_b32 s63, s63, 3")
    a(f"s_lshl_b32 s64, s{s_mb8}, 6")
    a("s_add_u32 s63, s63, s64")
    a(f"s_add_u32 s68, s63, {F3_B}")
    a("s_nop 0")
    poll_issue(a, 14, 12, "s68", "Q3")
    a.wait("Q3")
    poll_check(a, [14], [12], "s68")
    a.stamp()
    a(f"s_lshl_b32 s69, s{s_mb8}, 17")
    a(f"s_lshl_b32 s70, s{s_w}, 15")
    a("s_add_u32 s69, s69, s70")
    for q in range(16):
        a(f"s_add_u32 s70, s74, {q}")
        a("s_and_b32 s70, s70, 15")
        a("s_lshl_b32 s70, s70, 10")
        a("s_add_u32 s70, s70, s69")
        for i in range(2):
            reg = 8*q + 4*i
            a.vmem(f"buffer_load_dwordx4 a[{reg}:{reg+3}], v10, {srd(S_XF)}, s70 offen{LDSC}" if i == 0 else
                   f"buffer_load_dwordx4 a[{reg}:{reg+3}], v10, {srd(S_XF)}, s71 offen{LDSC}", "XR")
            if i == 0:
                a("s_add_u32 s71, s70, 16384")
    a("v_min_u32 v12, 47, v0")
    a(f"s_cmp_eq_u32 s{s_nbk}, 14")
    a("s_cselect_b32 s63, 15, 47")
    a("v_min_u32 v12, s63, v12")
    a("v_lshlrev_b32 v12, 2, v12")
    a(f"s_mul_i32 s68, s{s_nbk}, {3*16*4}")
    a(f"s_add_u32 s68, s68, {F2_B}")
    a("s_nop 0")
    poll_issue(a, 14, 12, "s68", "Q2")
    ACC = 16
    for r in range(48):
        a(f"v_mov_b32 v{ACC+r}, 0")
    a.wait("Q2")
    poll_check(a, [14], [12], "s68")
    a.stamp()
    a(f"s_mul_i32 s69, s{s_nbk}, {6*16*1024}")
    NG = 8
    def issueT(g):
        a(f"s_lshr_b32 s70, s{s_w}, 1")
        a(f"s_add_u32 s70, s70, {2*g}")
        a("s_add_u32 s70, s70, s74")
        a("s_and_b32 s70, s70, 15")
        a(f"s_and_b32 s71, s{s_w}, 1")
        a("s_mul_i32 s71, s71, 48")
        a("s_add_u32 s70, s70, s71")
        a("s_lshl_b32 s70, s70, 10")
        a("s_add_u32 s70, s70, s69")
        a(f"s_mul_i32 s72, s{s_w}, 3072")
        for k in range(3):
            a(f"s_add_u32 m0, s72, {(12*g + k)*1024}")
            a(f"s_add_u32 s71, s70, {k*16384}")
            a.vmem(f"buffer_load_dwordx4 v10, {srd(S_TF)}, s71 offen{LDSC} lds", f"T{g}")
    PRE = 4
    for g in range(PRE):
        issueT(g)
    FA = 64
    def reads(q, buf):
        for j in range(6):
            r = FA + 24*buf + 4*j
            idx = q*6 + j
            if idx < 64:
                a(f"ds_read_b128 v[{r}:{r+3}], v10 offset:{idx*1024}")
            else:
                a(f"ds_read_b128 v[{r}:{r+3}], v11 offset:{(idx-64)*1024}")
    def mf(q, buf):
        for j in range(6):
            for i in range(2):
                c = ACC + 8*j + 4*i
                ra = FA + 24*buf + 4*j
                rb_ = 8*q + 4*i
                a(f"v_mfma_f32_16x16x32_bf16 v[{c}:{c+3}], v[{ra}:{ra+3}], a[{rb_}:{rb_+3}], v[{c}:{c+3}]")
    for g in range(NG):
        a.wait(f"T{g}")
        a("s_barrier")
        if g == 0: a.stamp()
        reads(2*g, 0)
        reads(2*g+1, 1)
        if g + PRE < NG:
            issueT(g + PRE)
        a("s_waitcnt lgkmcnt(6)")
        mf(2*g, 0)
        a("s_waitcnt lgkmcnt(0)")
        mf(2*g+1, 1)
    a("s_nop 7")
    a("s_nop 1")
    a.stamp()
    a("v_and_b32 v1, 15, v0")
    a("v_lshrrev_b32 v2, 4, v0")
    a("v_mul_u32_u24 v3, 2752, v1")
    a("v_lshl_add_u32 v3, v2, 4, v3")
    a(f"s_lshl_b32 s70, s{s_mb8}, 7")
    a(f"s_lshl_b32 s71, s{s_w}, 5")
    a("s_add_u32 s70, s70, s71")
    a("s_mul_i32 s70, s70, 2752")
    a(f"s_mul_i32 s71, s{s_nbk}, 192")
    a("s_add_u32 s70, s70, s71")
    a(f"s_add_u32 s71, s70, {16*2752}")
    for p in range(3):
        if p == 1:
            a(f"s_cmp_eq_u32 s{s_nbk}, 14")
            a("s_cbranch_scc1 Y_done")
        for i in range(2):
            t0 = ACC + 8*(2*p) + 4*i
            t1 = ACC + 8*(2*p+1) + 4*i
            o = 112 + 4*(2*p+i)
            a(f"v_cvt_pk_bf16_f32 v{o}, v{t0}, v{t0+1}")
            a(f"v_cvt_pk_bf16_f32 v{o+1}, v{t0+2}, v{t0+3}")
            a(f"v_cvt_pk_bf16_f32 v{o+2}, v{t1}, v{t1+1}")
            a(f"v_cvt_pk_bf16_f32 v{o+3}, v{t1+2}, v{t1+3}")
            a(f"buffer_store_dwordx4 v[{o}:{o+3}], v3, {srd(S_OUT)}, s{70+i} offen offset:{64*p}")
    a.lab("Y_done")

def kd(name, vgpr, accum, sgpr=102):
    return f""".p2align 6
.amdhsa_kernel {name}
  .amdhsa_next_free_vgpr {vgpr}
  .amdhsa_next_free_sgpr {sgpr}
  .amdhsa_accum_offset {accum}
  .amdhsa_group_segment_fixed_size 0
  .amdhsa_kernarg_size 72
  .amdhsa_user_sgpr_count 2
  .amdhsa_user_sgpr_kernarg_segment_ptr 1
  .amdhsa_system_sgpr_workgroup_id_x 1
.end_amdhsa_kernel
"""

HEADER = open("cdna_kernels/" + NAME + ".s.ref").read().split("; Override launch")[0]

def build():
    a = A()
    K = NAME + "_kernel"
    out = HEADER
    out += "; @launch grid=(256,1,1) block=(256,1,1) lds=163840\n"
    out += '.amdgcn_target "amdgcn-amd-amdhsa--gfx950"\n.text\n'
    a.l.append(f".globl {K}\n.p2align 8\n.type {K},@function\n{K}:")
    a("s_cmp_ge_u32 s2, 256")
    a("s_cbranch_scc1 K_end")
    if STAMPS:
        a("s_memrealtime s[94:95]")
    prologue(a)
    if STAMPS:
        a("s_mov_b32 s76, s94")
        a.nst = 1
    a.stamp()
    a("s_and_b32 s62, s2, 7")
    a("s_lshr_b32 s63, s2, 3")
    a("s_and_b32 s64, s62, 3")
    a("s_lshl_b32 s64, s64, 2")
    a("s_and_b32 s65, s63, 3")
    a(f"s_add_u32 s{S_MB8}, s64, s65")
    a("s_lshr_b32 s64, s62, 2")
    a("s_lshl_b32 s64, s64, 3")
    a("s_lshr_b32 s65, s63, 2")
    a(f"s_add_u32 s{S_NBK}, s64, s65")
    a("s_lshr_b32 s64, s62, 1")
    a("s_and_b32 s65, s64, 1")
    a("s_sub_u32 s65, 6, s65")
    a("s_lshl_b32 s65, s65, 2")
    a("s_cmp_lt_u32 s63, s65")
    a("s_cbranch_scc0 K_notT")
    a("s_and_b32 s66, s62, 1")
    a("s_lshl_b32 s66, s66, 2")
    a("s_and_b32 s67, s63, 3")
    a(f"s_add_u32 s{S_A}, s66, s67")
    a("s_mul_i32 s64, s64, 11")
    a("s_add_u32 s64, s64, 1")
    a("s_lshr_b32 s64, s64, 1")
    a("s_lshr_b32 s66, s63, 2")
    a(f"s_add_u32 s{S_B}, s64, s66")
    a("s_mul_i32 s67, s67, 11")
    a("s_lshr_b32 s67, s67, 2")
    a("s_lshl_b32 s66, s66, 1")
    a("s_add_u32 s75, s67, s66")
    a("s_mov_b32 s94, s75")
    nst0 = a.nst
    role_T(a, S_A, S_B, 94)
    nstT = a.nst
    a("s_branch K_y")
    a.lab("K_notT")
    a("s_sub_u32 s63, s63, s65")
    a("s_cmp_lt_u32 s63, 8")
    a("s_cbranch_scc0 K_spare")
    a("s_and_b32 s64, s62, 1")
    a("s_lshl_b32 s64, s64, 1")
    a("s_and_b32 s65, s63, 1")
    a(f"s_add_u32 s{S_A}, s64, s65")
    a("s_lshr_b32 s64, s62, 1")
    a("s_lshl_b32 s64, s64, 2")
    a("s_lshr_b32 s65, s63, 1")
    a(f"s_add_u32 s{S_B}, s64, s65")
    a("s_mov_b32 s73, s63")
    a.vm = []
    a.nst = nst0
    role_xr(a, S_A, S_B, 73)
    while STAMPS and a.nst < nstT:
        a.stamp()
    a("s_branch K_y")
    a.lab("K_spare")
    a.vm = []
    a.nst = nst0
    a("s_cmp_eq_u32 s2, 250")
    a("s_cbranch_scc0 K_sp2")
    a(f"s_cmp_eq_u32 s{S_W}, 0")
    a("s_cbranch_scc0 K_sp2")
    a("s_memrealtime s[62:63]")
    a("s_waitcnt lgkmcnt(0)")
    a("s_or_b32 s62, s62, 1")
    a("v_mov_b32 v2, s62")
    a("s_mov_b64 exec, 1")
    a(f"buffer_store_dword v2, off, {srd(S_DBG)}, 0 sc1")
    a("s_mov_b64 exec, -1")
    a.lab("K_sp2")
    nonce_get(a, 9)
    a.wait("N")
    nonce_check(a, 9)
    while STAMPS and a.nst < nstT:
        a.stamp()
    a.lab("K_y")
    a.nst = nstT
    a(f"s_cmp_ge_u32 s{S_NBK}, 15")
    a("s_cbranch_scc1 K_fin")
    role_y(a)
    a.lab("K_fin")
    stamp_flush(a)
    a.lab("K_end")
    a("s_endpgm")
    out += a.text()
    out += '.section .rodata,"a"\n'
    out += kd(K, 512, 256)
    return out

if __name__ == "__main__":
    if "--plain" in sys.argv:
        LDSC = ""
        sys.argv.remove("--plain")
    if "--stamps" in sys.argv:
        STAMPS = True
        sys.argv.remove("--stamps")
    dst = sys.argv[1] if len(sys.argv) > 1 else "cdna_kernels/" + NAME + ".s"
    open(dst, "w").write(build())
    print("wrote", dst)
```

```python
import sys

NAME = "standalone__weight_only_int_quip__prompt"
M, D, F = 2048, 512, 1376
WQF_OFF, WQF_SZ = 0x000000, 32 * 44 * 1024
XF_OFF, XF_SZ = 0x200000, 128 * 16 * 1024
TF_OFF, TF_SZ = 0x400000, 86 * 16 * 1024
FL_OFF, FL_SZ = 0x600000, 0x4000
F1_B, F2_B, F3_B = 0x0000, 0x1000, 0x2000
STAMPS = False
SPIN_MAX = 200000
LDSC = ' sc1'


class A:
    def __init__(s):
        s.l = []
        s.vm = []
        s.nst = 0
        s.uid = 0
    def __call__(s, x):
        s.l.append("  " + x)
    def lab(s, x):
        s.l.append(x + ":")
    def text(s):
        return "\n".join(s.l) + "\n"
    def vmem(s, x, tag):
        s(x); s.vm.append(tag)
    def wait(s, tag, extra=""):
        idx = [i for i, t in enumerate(s.vm) if t == tag]
        if not idx:
            return
        n = len(s.vm) - 1 - idx[-1]
        assert n <= 63, n
        s(f"s_waitcnt vmcnt({n}){extra}")
        s.vm = s.vm[idx[-1] + 1:]
    def waitall(s):
        s("s_waitcnt vmcnt(0)"); s.vm = []
    def new(s, p):
        s.uid += 1
        return f"{p}_{s.uid}"
    def stamp(s):
        if not STAMPS: return
        i = s.nst; s.nst += 1
        assert i < 24, i
        s("s_memrealtime s[100:101]")
        s("s_waitcnt lgkmcnt(0)")
        s(f"s_mov_b32 s{76+i}, s100")

S_X, S_QW, S_SC, S_ZR, S_U, S_V, S_OUT, S_WQF, S_XF, S_TF, S_FL, S_DBG = [8 + 4*i for i in range(12)]
S_W, S_NONCE, S_A, S_B, S_MB8, S_NBK = 56, 57, 58, 59, 60, 61
T0 = 62
def srd(i): return f"s[{i}:{i+3}]"

def prologue(a):
    a("s_load_dwordx16 s[76:91], s[0:1], 0")
    a("s_load_dwordx2 s[92:93], s[0:1], 64")
    a("v_lshrrev_b32 v1, 6, v0")
    a("v_and_b32 v0, 63, v0")
    a(f"v_readfirstlane_b32 s{S_W}, v1")
    a("s_waitcnt lgkmcnt(0)")
    tbl = [(S_X, 76, M*D*2), (S_QW, 78, D*F*4), (S_SC, 80, 4*F*2), (S_ZR, 82, 4*F*2),
           (S_U, 84, D*D*2), (S_V, 86, F*F*2), (S_OUT, 88, M*F*2), (S_DBG, 90, 256)]
    for r, p, sz in tbl:
        a(f"s_mov_b32 s{r}, s{p}")
        a(f"s_and_b32 s{r+1}, s{p+1}, 0xffff")
        a(f"s_mov_b32 s{r+2}, {sz}")
        a(f"s_mov_b32 s{r+3}, 0x20000")
    for r, off, sz in [(S_WQF, WQF_OFF, WQF_SZ), (S_XF, XF_OFF, XF_SZ), (S_TF, TF_OFF, TF_SZ), (S_FL, FL_OFF, FL_SZ)]:
        a(f"s_add_u32 s{r}, s92, {off}")
        a(f"s_addc_u32 s{r+1}, s93, 0")
        a(f"s_and_b32 s{r+1}, s{r+1}, 0xffff")
        a(f"s_mov_b32 s{r+2}, {sz}")
        a(f"s_mov_b32 s{r+3}, 0x20000")

def stamp_flush(a):
    if not STAMPS: return
    a.stamp()
    a("s_waitcnt vmcnt(0)")
    a.stamp()
    n = a.nst
    a("s_memtime s[98:99]")
    a("s_load_dwordx2 s[62:63], s[0:1], 64")
    a("s_waitcnt lgkmcnt(0)")
    a("s_add_u32 s8, s62, 0x800000")
    a("s_addc_u32 s9, s63, 0")
    a("s_and_b32 s9, s9, 0xffff")
    a("s_mov_b32 s10, 0x100000")
    a("s_mov_b32 s11, 0x20000")
    a("s_lshl_b32 s64, s2, 2")
    a(f"s_add_u32 s64, s64, s{S_W}")
    a("s_lshl_b32 s64, s64, 7")
    a("s_mov_b64 exec, 1")
    a("v_mov_b32 v3, 0")
    for i in range(n):
        a(f"v_mov_b32 v4, s{76+i}")
        a(f"buffer_store_dword v4, v3, s[8:11], s64 offen offset:{4*i}")
        a("s_nop 1")
    a("s_sub_u32 s98, s98, s96")
    a("v_mov_b32 v4, s98")
    a("buffer_store_dword v4, v3, s[8:11], s64 offen offset:120")

def nonce_get(a, vreg, after_issue=None):
    sk = a.new("NG")
    a(f"s_cmp_eq_u32 s{S_W}, 0")
    a(f"s_cbranch_scc0 {sk}")
    a(f"buffer_load_dword v{vreg}, off, {srd(S_DBG)}, 0 sc1")
    a.lab(sk)

def nonce_check(a, vreg):
    L, Dn = a.new("NC"), a.new("ND")
    a(f"s_cmp_eq_u32 s{S_W}, 0")
    a(f"s_cbranch_scc0 {Dn}")
    a(f"v_readfirstlane_b32 s{S_NONCE}, v{vreg}")
    a(f"s_mov_b32 s{T0}, {SPIN_MAX}")
    a.lab(L)
    a(f"s_cmp_lg_u32 s{S_NONCE}, 0")
    a(f"s_cbranch_scc1 {Dn}")
    a(f"s_sub_u32 s{T0}, s{T0}, 1")
    a(f"s_cbranch_scc1 {Dn}")
    a("s_sleep 2")
    a(f"buffer_load_dword v{vreg}, off, {srd(S_DBG)}, 0 sc1")
    a("s_waitcnt vmcnt(0)")
    a(f"v_readfirstlane_b32 s{S_NONCE}, v{vreg}")
    a(f"s_branch {L}")
    a.lab(Dn)

def poll_issue(a, vreg, voff, soff, tag):
    a.vmem(f"buffer_load_dword v{vreg}, v{voff}, {srd(S_FL)}, {soff} offen sc1", tag)

def poll_check(a, regs, voffs, soff):
    L, Dn = a.new("PL"), a.new("PD")
    a(f"s_mov_b32 s{T0}, {SPIN_MAX}")
    a.lab(L)
    a(f"v_cmp_ne_u32 s[{T0+2}:{T0+3}], s{S_NONCE}, v{regs[0]}")
    for r in regs[1:]:
        a(f"v_cmp_ne_u32 s[{T0+4}:{T0+5}], s{S_NONCE}, v{r}")
        a(f"s_or_b64 s[{T0+2}:{T0+3}], s[{T0+2}:{T0+3}], s[{T0+4}:{T0+5}]")
    a(f"s_cmp_eq_u64 s[{T0+2}:{T0+3}], 0")
    a(f"s_cbranch_scc1 {Dn}")
    a(f"s_sub_u32 s{T0}, s{T0}, 1")
    a(f"s_cbranch_scc1 {Dn}")
    a("s_sleep 1")
    for r, vo in zip(regs, voffs):
        a(f"buffer_load_dword v{r}, v{vo}, {srd(S_FL)}, {soff} offen sc1")
    a("s_waitcnt vmcnt(0)")
    a(f"s_branch {L}")
    a.lab(Dn)

def wg_flag(a, soff, vtmp):
    sk = a.new("WF")
    a("s_barrier")
    a(f"s_cmp_eq_u32 s{S_W}, 0")
    a(f"s_cbranch_scc0 {sk}")
    a(f"v_mov_b32 v{vtmp}, s{S_NONCE}")
    a("s_mov_b64 exec, 1")
    a(f"buffer_store_dword v{vtmp}, off, {srd(S_FL)}, {soff} sc1")
    a("s_mov_b64 exec, -1")
    a.lab(sk)

def wg_poll(a, reg, voff, soff, sleep=4):
    L, Dn, sk = a.new("PL"), a.new("PD"), a.new("PS")
    a(f"s_cmp_eq_u32 s{S_W}, 0")
    a(f"s_cbranch_scc0 {sk}")
    a(f"s_mov_b32 s{T0}, {SPIN_MAX}")
    a.lab(L)
    a(f"buffer_load_dword v{reg}, v{voff}, {srd(S_FL)}, {soff} offen sc1")
    a("s_waitcnt vmcnt(0)")
    a(f"v_cmp_ne_u32 s[{T0+2}:{T0+3}], s{S_NONCE}, v{reg}")
    a(f"s_cmp_eq_u64 s[{T0+2}:{T0+3}], 0")
    a(f"s_cbranch_scc1 {Dn}")
    a(f"s_sub_u32 s{T0}, s{T0}, 1")
    a(f"s_cbranch_scc1 {Dn}")
    a(f"s_sleep {sleep}")
    a(f"s_branch {L}")
    a.lab(Dn)
    a.lab(sk)
    a("s_barrier")

def flag_store(a, soff, vtmp, vzero):
    a(f"v_mov_b32 v{vtmp}, s{S_NONCE}")
    a("s_mov_b64 exec, 1")
    a.vmem(f"buffer_store_dword v{vtmp}, off, {srd(S_FL)}, {soff} sc1", "F")
    a("s_mov_b64 exec, -1")

def prep_issue(a, s_db, s_kb, V):
    t = T0
    a(f"v_lshrrev_b32 v{V+1}, 3, v0")
    a(f"v_and_b32 v{V+2}, 7, v0")
    a(f"v_mul_u32_u24 v{V+3}, 5504, v{V+1}")
    a(f"v_lshl_add_u32 v{V+3}, v{V+2}, 4, v{V+3}")
    a(f"v_lshlrev_b32 v{V+4}, 3, v{V+2}")
    a(f"s_cmp_eq_u32 s{s_kb}, 21")
    a(f"s_cselect_b32 s{t}, 0x40000000, 128")
    a(f"s_cselect_b32 s{t+1}, 0x40000000, 64")
    a(f"v_add_u32 v{V+5}, s{t}, v{V+3}")
    a(f"v_add_u32 v{V+6}, s{t+1}, v{V+4}")
    a(f"s_mul_i32 s{t+2}, s{s_db}, 88064")
    a(f"s_lshl_b32 s{t+3}, s{s_kb}, 8")
    a(f"s_add_u32 s{t+2}, s{t+2}, s{t+3}")
    a(f"s_add_u32 s{t+3}, s{t+2}, 44032")
    a(f"s_lshr_b32 s{t+4}, s{s_db}, 3")
    a(f"s_mul_i32 s{t+4}, s{t+4}, 2752")
    a(f"s_lshl_b32 s{t+5}, s{s_kb}, 7")
    a(f"s_add_u32 s{t+4}, s{t+4}, s{t+5}")
    a.vmem(f"buffer_load_dwordx4 v[{V+8}:{V+11}], v{V+3}, {srd(S_QW)}, s{t+2} offen", "P")
    a.vmem(f"buffer_load_dwordx4 v[{V+12}:{V+15}], v{V+5}, {srd(S_QW)}, s{t+2} offen", "P")
    a.vmem(f"buffer_load_dwordx4 v[{V+16}:{V+19}], v{V+3}, {srd(S_QW)}, s{t+3} offen", "P")
    a.vmem(f"buffer_load_dwordx4 v[{V+20}:{V+23}], v{V+5}, {srd(S_QW)}, s{t+3} offen", "P")
    a.vmem(f"buffer_load_dwordx2 v[{V+24}:{V+25}], v{V+4}, {srd(S_SC)}, s{t+4} offen", "P")
    a.vmem(f"buffer_load_dwordx2 v[{V+26}:{V+27}], v{V+6}, {srd(S_SC)}, s{t+4} offen", "P")
    a.vmem(f"buffer_load_dwordx2 v[{V+28}:{V+29}], v{V+4}, {srd(S_ZR)}, s{t+4} offen", "P")
    a.vmem(f"buffer_load_dwordx2 v[{V+30}:{V+31}], v{V+6}, {srd(S_ZR)}, s{t+4} offen", "P")
    a(f"v_lshrrev_b32 v{V+7}, 2, v{V+2}")
    a(f"v_lshlrev_b32 v{V+7}, 10, v{V+7}")
    a(f"v_and_b32 v{V+32}, 3, v{V+2}")
    a(f"v_lshl_add_u32 v{V+7}, v{V+32}, 8, v{V+7}")
    a(f"v_lshl_add_u32 v{V+7}, v{V+1}, 4, v{V+7}")

def prep_finish(a, s_db, s_kb, V):
    t = T0
    a(f"s_mul_i32 s{t}, s{s_db}, 44")
    a(f"s_lshl_b32 s{t+1}, s{s_kb}, 1")
    a(f"s_add_u32 s{t}, s{t}, s{t+1}")
    a(f"s_lshl_b32 s{t}, s{t}, 10")
    a(f"s_mov_b32 s{t+1}, 0xffff0000")
    for i in range(4):
        a(f"v_lshlrev_b32 v{V+32+2*i}, 16, v{V+24+i}")
        a(f"v_and_b32 v{V+33+2*i}, s{t+1}, v{V+24+i}")
        a(f"v_lshlrev_b32 v{V+40+2*i}, 16, v{V+28+i}")
        a(f"v_and_b32 v{V+41+2*i}, s{t+1}, v{V+28+i}")
    for rh in range(2):
        q = V + 8 + 8 * rh
        for i in range(8):
            a(f"v_cvt_f32_i32 v{q+i}, v{q+i}")
        for i in range(8):
            a(f"v_sub_f32 v{q+i}, v{q+i}, v{V+40+i}")
        for i in range(4):
            a(f"v_cvt_pk_bf16_f32 v{V+48+i}, v{q+2*i}, v{q+2*i+1}")
        for i in range(4):
            a(f"v_lshlrev_b32 v{q+2*i}, 16, v{V+48+i}")
            a(f"v_and_b32 v{q+2*i+1}, s{t+1}, v{V+48+i}")
        for i in range(8):
            a(f"v_mul_f32 v{q+i}, v{q+i}, v{V+32+i}")
        o = V + 52 + 4 * rh
        for i in range(4):
            a(f"v_cvt_pk_bf16_f32 v{o+i}, v{q+2*i}, v{q+2*i+1}")
        a.vmem(f"buffer_store_dwordx4 v[{o}:{o+3}], v{V+7}, {srd(S_WQF)}, s{t} offen offset:{128*rh} sc1", "S")

def interleave(main, side):
    out = []
    n, m = len(main), len(side)
    k = 0
    for i, x in enumerate(main):
        out.append(x)
        while k < m and (k + 1) * n <= (i + 1) * m + (n - 1) * 0:
            out.append(side[k]); k += 1
    out.extend(side[k:])
    return out

def role_xr(a, s_eb, s_mb8, s_rot):
    s_w = S_W
    SWE, SWM, UB, XB, LB, TT = 64, 65, 66, 67, 68, 69
    a(f"s_and_b32 s{SWE}, s{s_w}, 1")
    a(f"s_lshr_b32 s{SWM}, s{s_w}, 1")
    a("v_lshrrev_b32 v1, 4, v0")
    a("v_and_b32 v2, 15, v0")
    a("v_lshlrev_b32 v3, 1, v1")
    a("v_xor_b32 v4, v2, v3")
    a("v_xor_b32 v5, 8, v4")
    a("v_lshlrev_b32 v6, 10, v1")
    a("v_lshl_add_u32 v10, v4, 4, v6")
    a("v_lshl_add_u32 v11, v5, 4, v6")
    a("v_lshrrev_b32 v1, 3, v0")
    a("v_and_b32 v2, 7, v0")
    a("v_lshrrev_b32 v3, 1, v1")
    a("v_xor_b32 v4, v2, v3")
    a("v_xor_b32 v5, 4, v4")
    a("v_lshlrev_b32 v6, 10, v1")
    a("v_lshl_add_u32 v12, v4, 4, v6")
    a("v_lshl_add_u32 v13, v5, 4, v6")
    a(f"s_lshl_b32 s{UB}, s{s_w}, 14")
    a(f"s_lshl_b32 s{TT}, s{s_eb}, 8")
    a(f"s_add_u32 s{UB}, s{UB}, s{TT}")
    a(f"s_lshl_b32 s{XB}, s{s_mb8}, 17")
    a(f"s_lshl_b32 s{TT}, s{s_w}, 15")
    a(f"s_add_u32 s{XB}, s{XB}, s{TT}")
    a(f"s_lshl_b32 s{LB}, s{s_w}, 12")
    NSL = 4
    def dma_items(st):
        slot = st % NSL
        items = []
        def setup():
            a(f"s_add_u32 s70, s{s_rot}, {st}")
            a("s_and_b32 s70, s70, 7")
            a("s_lshl_b32 s71, s70, 16")
            a(f"s_add_u32 s71, s71, s{UB}")
            a("s_lshl_b32 s72, s70, 7")
            a(f"s_add_u32 s72, s72, s{XB}")
        for aa in range(4):
            def f(aa=aa):
                if aa == 0: setup()
                a(f"s_add_u32 m0, s{LB}, {slot*32768 + aa*1024}")
                a(f"s_add_u32 s{TT}, s71, {aa*4096}")
                a.vmem(f"buffer_load_dwordx4 v{10 + (aa>>1)}, {srd(S_U)}, s{TT} offen lds", f"X{st}")
            items.append(f)
        for bb in range(4):
            def f(bb=bb):
                a(f"s_add_u32 m0, s{LB}, {slot*32768 + 16384 + bb*1024}")
                a(f"s_add_u32 s{TT}, s72, {bb*8192}")
                a.vmem(f"buffer_load_dwordx4 v{12 + (bb&1)}, {srd(S_X)}, s{TT} offen lds", f"X{st}")
            items.append(f)
        return items
    for st in range(3):
        for f in dma_items(st): f()
    a.stamp()
    a("v_lshrrev_b32 v1, 4, v0")
    a("v_bfe_u32 v2, v0, 2, 2")
    a("v_and_b32 v3, 3, v0")
    a("v_lshl_add_u32 v4, v1, 3, v2")
    a("v_lshlrev_b32 v4, 8, v4")
    a("v_and_b32 v5, 1, v1")
    a("v_lshlrev_b32 v5, 3, v5")
    a("v_lshl_add_u32 v5, v2, 1, v5")
    a("v_lshrrev_b32 v6, 1, v3")
    a(f"s_lshl_b32 s{TT}, s{SWE}, 3")
    a(f"v_or_b32 v6, s{TT}, v6")
    a("v_xor_b32 v5, v5, v6")
    a("v_lshl_add_u32 v4, v5, 4, v4")
    a("v_and_b32 v6, 1, v3")
    a("v_lshl_add_u32 v4, v6, 3, v4")
    for i in range(4):
        a(f"v_xor_b32 v{16+i}, {i<<5}, v4")
        a(f"v_add_u32 v{20+i}, 0x10000, v{16+i}")
    a("v_and_b32 v2, 15, v0")
    a("v_lshrrev_b32 v3, 1, v2")
    a("v_xor_b32 v3, v3, v1")
    a("v_lshlrev_b32 v4, 7, v2")
    a("v_lshl_add_u32 v4, v3, 4, v4")
    a(f"s_lshl_b32 s{TT}, s{SWM}, 13")
    a(f"s_add_u32 s{TT}, s{TT}, 16384")
    a(f"v_add_u32 v24, s{TT}, v4")
    a("v_xor_b32 v25, 64, v24")
    a("v_add_u32 v26, 0x10000, v24")
    a("v_add_u32 v27, 0x10000, v25")
    ACC = 64
    for r in range(64):
        a(f"v_mov_b32 v{ACC+r}, 0")
    def read_items(hh):
        st, h2, buf = hh >> 1, hh & 1, hh & 1
        slot = st % NSL
        hi = slot >> 1
        so = (slot & 1) * 32768
        FA = 128 + 32 * buf
        FB = 144 + 32 * buf
        items = []
        for j in range(4):
            items.append(lambda j=j: a(f"ds_read_b128 v[{FB+4*j}:{FB+4*j+3}], v{24+2*hi+h2} offset:{so + j*2048}"))
        for i in range(4):
            for q in range(2):
                items.append(lambda i=i, q=q: a(f"ds_read_b64_tr_b16 v[{FA+4*i+2*q}:{FA+4*i+2*q+1}], v{16+4*hi+i} offset:{so + h2*8192 + q*1024}"))
        return items
    def mfma_items(buf):
        FA = 128 + 32 * buf
        FB = 144 + 32 * buf
        items = []
        for i in range(4):
            for j in range(4):
                c = ACC + 16*i + 4*j
                items.append(lambda c=c, i=i, j=j: a(f"v_mfma_f32_16x16x32_bf16 v[{c}:{c+3}], v[{FA+4*i}:{FA+4*i+3}], v[{FB+4*j}:{FB+4*j+3}], v[{c}:{c+3}]"))
        return items
    a.wait("X0")
    a("s_barrier")
    a.stamp()
    for f in read_items(0): f()
    for hh in range(16):
        st = hh >> 1
        a("s_waitcnt lgkmcnt(0)")
        if (hh & 1) and st + 1 < 8:
            a.wait(f"X{st+1}")
            a("s_barrier")
        side = []
        if hh + 1 < 16:
            side += read_items(hh + 1)
        dm = []
        if hh & 1:
            S = st + 3
            if S < 8: dm = dma_items(S)[:4]
        else:
            S = st + 2
            if st >= 1 and S < 8: dm = dma_items(S)[4:]
        if hh == 9:
            dm = dm + [lambda: nonce_get(a, 28)]
        m = mfma_items(hh & 1)
        seq = interleave(m, side)
        seq = interleave(seq, dm)
        for f in seq: f()
    a("s_nop 7")
    a("s_nop 1")
    a.stamp()
    a("v_lshlrev_b32 v1, 4, v0")
    a(f"s_lshl_b32 s70, s{s_mb8}, 7")
    a(f"s_lshl_b32 s71, s{SWM}, 6")
    a("s_add_u32 s70, s70, s71")
    a(f"s_lshl_b32 s71, s{s_eb}, 2")
    a("s_add_u32 s70, s70, s71")
    a(f"s_lshl_b32 s71, s{SWE}, 1")
    a("s_add_u32 s70, s70, s71")
    a("s_lshl_b32 s70, s70, 10")
    for j in range(4):
        a(f"s_add_u32 s71, s70, {j*16*1024}")
        for sh in range(2):
            t0 = ACC + 16*(2*sh) + 4*j
            t1 = ACC + 16*(2*sh+1) + 4*j
            o = 128 + 4*(2*j+sh)
            a(f"v_cvt_pk_bf16_f32 v{o}, v{t0}, v{t0+1}")
            a(f"v_cvt_pk_bf16_f32 v{o+1}, v{t0+2}, v{t0+3}")
            a(f"v_cvt_pk_bf16_f32 v{o+2}, v{t1}, v{t1+1}")
            a(f"v_cvt_pk_bf16_f32 v{o+3}, v{t1+2}, v{t1+3}")
            a.vmem(f"buffer_store_dwordx4 v[{o}:{o+3}], v1, {srd(S_XF)}, s71 offen offset:{sh*1024} sc1", "S")
    a.wait("S")
    nonce_check(a, 28)
    a(f"s_lshl_b32 s70, s{s_mb8}, 7")
    a(f"s_lshl_b32 s71, s{s_eb}, 2")
    a("s_add_u32 s70, s70, s71")
    a(f"s_add_u32 s70, s70, {F3_B}")
    wg_flag(a, "s70", 2)
    a.stamp()

def role_T(a, s_rb, s_cb, s_rot):
    s_w = S_W
    NSL = 10
    DBS = 68
    a(f"s_lshl_b32 s{DBS}, s{s_rb}, 2")
    a(f"s_add_u32 s{DBS}, s{DBS}, s{s_w}")
    PV = 160
    prep_issue(a, DBS, s_cb, PV)
    a("v_lshrrev_b32 v1, 3, v0")
    a("v_and_b32 v2, 7, v0")
    a("v_bfe_u32 v3, v1, 1, 1")
    a("v_lshlrev_b32 v3, 2, v3")
    a("v_xor_b32 v2, v2, v3")
    a("v_mul_u32_u24 v10, 2752, v1")
    a("v_lshl_add_u32 v10, v2, 4, v10")
    TB, CBO, LB, WBASE = 69, 70, 71, 72
    a(f"s_mul_i32 s73, s{s_w}, 11")
    a(f"s_add_u32 s{TB}, s{s_rot}, s73")
    a(f"s_lshl_b32 s{CBO}, s{s_cb}, 7")
    a(f"s_mul_i32 s{LB}, s{s_w}, {NSL*4096}")
    def step_t(i, dst):
        a(f"s_add_u32 s{dst}, s{TB}, {i}")
        a(f"s_cmp_ge_u32 s{dst}, 44")
        a(f"s_cselect_b32 s75, 44, 0")
        a(f"s_sub_u32 s{dst}, s{dst}, s75")
    def issueV(i):
        slot = i % NSL
        step_t(i, 73)
        a("s_lshr_b32 s74, s73, 1")
        a("s_lshl_b32 s74, s74, 6")
        a("s_and_b32 s73, s73, 1")
        a("s_lshl_b32 s73, s73, 4")
        a("s_add_u32 s73, s73, s74")
        a("s_mul_i32 s73, s73, 2752")
        a(f"s_add_u32 s73, s73, s{CBO}")
        for p, ro in enumerate((0, 8, 32, 40)):
            a(f"s_add_u32 m0, s{LB}, {slot*4096 + p*1024}")
            a(f"s_add_u32 s74, s73, {ro*2752}")
            a.vmem(f"buffer_load_dwordx4 v10, {srd(S_V)}, s74 offen lds", f"V{i}")
    NV0 = 4
    for i in range(NV0):
        issueV(i)
    a.stamp()
    a("v_lshrrev_b32 v1, 4, v0")
    a("v_bfe_u32 v2, v0, 2, 2")
    a("v_and_b32 v3, 3, v0")
    a("v_lshl_add_u32 v4, v1, 2, v2")
    a("v_lshlrev_b32 v4, 7, v4")
    a("v_lshl_add_u32 v4, v3, 4, v4")
    a("v_lshrrev_b32 v5, 1, v2")
    a("v_lshl_add_u32 v4, v5, 6, v4")
    a(f"v_add_u32 v11, s{LB}, v4")
    a("v_xor_b32 v12, 64, v11")
    a("v_lshlrev_b32 v13, 4, v0")
    a("v_min_u32 v14, 21, v0")
    a("v_lshlrev_b32 v14, 2, v14")
    a.wait("P")
    a.stamp()
    nonce_get(a, 9)
    prep_finish(a, DBS, s_cb, PV)
    NV1 = 8
    for i in range(NV0, NV1):
        issueV(i)
    a.wait("S")
    a.stamp()
    nonce_check(a, 9)
    a(f"s_lshl_b32 s73, s{s_rb}, 7")
    a(f"s_lshl_b32 s74, s{s_cb}, 2")
    a("s_add_u32 s73, s73, s74")
    a(f"s_add_u32 s73, s73, {F1_B}")
    wg_flag(a, "s73", 2)
    def trreads(i):
        slot = i % NSL
        for j in range(4):
            pp, ab = j >> 1, j & 1
            for q in range(2):
                r = 16*i + 4*j + 2*q
                a(f"ds_read_b64_tr_b16 a[{r}:{r+1}], v{11+pp} offset:{slot*4096 + q*2048 + ab*8}")
    for i in range(NV1, NSL):
        issueV(i)
    trreads(0)
    a("s_waitcnt lgkmcnt(0)")
    issueV(10)
    ACC = 176
    for i in range(1, NSL):
        a.wait(f"V{i}")
        trreads(i)
        if i <= 4:
            for r in range(16*(i-1), 16*i):
                a(f"v_accvgpr_write_b32 a{ACC+r}, 0")
    a(f"s_lshl_b32 s68, s{s_rb}, 7")
    a(f"s_add_u32 s68, s68, {F1_B}")
    a.wait("V10")
    trreads(10)
    a("s_waitcnt lgkmcnt(0)")
    a.stamp()
    wg_poll(a, 16, 14, "s68", sleep=2)
    a.stamp()
    a(f"s_mul_i32 s{WBASE}, s{s_rb}, {4*44}")
    WB = 64
    def w_items(i):
        items = []
        for d in range(4):
            def f(d=d):
                if d == 0:
                    step_t(i, 73)
                    a(f"s_add_u32 s73, s73, s{WBASE}")
                    a("s_lshl_b32 s73, s73, 10")
                    a("s_mov_b32 s74, s73")
                else:
                    a(f"s_add_u32 s74, s73, {d*44*1024}")
                r = WB + 16*i + 4*d
                a.vmem(f"buffer_load_dwordx4 v[{r}:{r+3}], v13, {srd(S_WQF)}, s74 offen{LDSC}", f"W{i}")
            items.append(f)
        return items
    PRE = 3
    for i in range(PRE):
        for f in w_items(i): f()
    y_f3_addr(a, 18, 19)
    for i in range(11):
        a.wait(f"W{i}")
        m = []
        for d in range(4):
            for j in range(4):
                c = ACC + 16*d + 4*j
                ra = WB + 16*i + 4*d
                rb_ = 16*i + 4*j
                m.append(lambda c=c, ra=ra, rb_=rb_: a(f"v_mfma_f32_16x16x32_bf16 a[{c}:{c+3}], v[{ra}:{ra+3}], a[{rb_}:{rb_+3}], a[{c}:{c+3}]"))
        side = w_items(i + PRE) if i + PRE < 11 else []
        for f in interleave(m, side): f()
    a("s_nop 7")
    a.stamp()
    a("v_lshlrev_b32 v14, 4, v0")
    for w in range(4):
        sk = a.new("TR")
        a(f"s_cmp_eq_u32 s{s_w}, {w}")
        a(f"s_cbranch_scc0 {sk}")
        for o in range(4):
            if o == w: continue
            rank = (w - o - 1) % 4
            sh, jh = o >> 1, o & 1
            tl = 0
            for d in (2*sh, 2*sh+1):
                for j in (2*jh, 2*jh+1):
                    c = ACC + 16*d + 4*j
                    a(f"ds_write_b128 v14, a[{c}:{c+3}] offset:{o*12288 + (rank*4+tl)*1024}")
                    tl += 1
        sh, jh = w >> 1, w & 1
        tl = 0
        for d in (2*sh, 2*sh+1):
            for j in (2*jh, 2*jh+1):
                c = ACC + 16*d + 4*j
                for r in range(4):
                    a(f"v_accvgpr_read_b32 v{20+4*tl+r}, a{c+r}")
                tl += 1
        a.lab(sk)
    a("s_waitcnt lgkmcnt(0)")
    a("s_barrier")
    a(f"s_mul_i32 s73, s{s_w}, 12288")
    a("v_add_u32 v15, s73, v14")
    for k in range(12):
        a(f"ds_read_b128 v[{36+4*k}:{36+4*k+3}], v15 offset:{k*1024}")
    a(f"s_lshr_b32 s62, s{s_w}, 1")
    a(f"s_and_b32 s63, s{s_w}, 1")
    a(f"s_lshl_b32 s64, s{s_cb}, 1")
    a("s_add_u32 s64, s64, s63")
    a(f"s_lshl_b32 s65, s{s_rb}, 1")
    a("s_add_u32 s65, s65, s62")
    a("s_lshl_b32 s70, s64, 5")
    a("s_add_u32 s70, s70, s65")
    a("s_lshl_b32 s70, s70, 10")
    a("s_add_u32 s71, s70, 16384")
    a(f"s_lshl_b32 s64, s{s_cb}, 7")
    a(f"s_lshl_b32 s65, s{s_rb}, 2")
    a("s_add_u32 s64, s64, s65")
    a(f"s_add_u32 s72, s64, {F2_B}")
    for rank in range(3):
        a(f"s_waitcnt lgkmcnt({8-4*rank})")
        for r in range(16):
            a(f"v_add_f32 v{20+r}, v{20+r}, v{36+16*rank+r}")
    for jj in range(2):
        t0, t1, o = 20 + 4*jj, 20 + 4*(2+jj), 88 + 4*jj
        a(f"v_cvt_pk_bf16_f32 v{o}, v{t0}, v{t0+1}")
        a(f"v_cvt_pk_bf16_f32 v{o+1}, v{t0+2}, v{t0+3}")
        a(f"v_cvt_pk_bf16_f32 v{o+2}, v{t1}, v{t1+1}")
        a(f"v_cvt_pk_bf16_f32 v{o+3}, v{t1+2}, v{t1+3}")
        a.vmem(f"buffer_store_dwordx4 v[{o}:{o+3}], v14, {srd(S_TF)}, s{70+jj} offen sc1", "S2")
    a.stamp()
    wg_poll(a, 19, 18, "s67", sleep=2)
    y_xr_loads(a, 0, 8)
    a.wait("S2")
    wg_flag(a, "s72", 2)
    y_xr_loads(a, 8, 16)
    a.stamp()

def y_f3_addr(a, vo, vt):
    a(f"v_and_b32 v{vo}, 3, v0")
    a(f"v_lshlrev_b32 v{vo}, 2, v{vo}")
    a(f"s_lshl_b32 s67, s{S_MB8}, 7")
    a(f"s_add_u32 s67, s67, {F3_B}")

def y_rot(a):
    a(f"s_and_b32 s74, s{S_MB8}, 3")
    a("s_lshl_b32 s74, s74, 2")
    a(f"s_and_b32 s75, s{S_NBK}, 7")
    a("s_lshl_b32 s75, s75, 1")
    a("s_add_u32 s74, s74, s75")

def y_xr_loads(a, q0=0, q1=16):
    sk = a.new("YX")
    a(f"s_cmp_ge_u32 s{S_NBK}, 15")
    a(f"s_cbranch_scc1 {sk}")
    y_rot(a)
    a("v_lshlrev_b32 v10, 4, v0")
    a(f"s_lshl_b32 s69, s{S_MB8}, 17")
    a(f"s_lshl_b32 s75, s{S_W}, 15")
    a("s_add_u32 s69, s69, s75")
    for q in range(q0, q1):
        a(f"s_add_u32 s75, s74, {q}")
        a("s_and_b32 s75, s75, 15")
        a("s_lshl_b32 s75, s75, 10")
        a("s_add_u32 s75, s75, s69")
        for i in range(2):
            reg = 8*q + 4*i
            a.vmem(f"buffer_load_dwordx4 a[{reg}:{reg+3}], v10, {srd(S_XF)}, s75 offen{LDSC}", "XR")
            if i == 0:
                a("s_add_u32 s75, s75, 16384")
    a.lab(sk)

def role_y(a):
    s_w, s_mb8, s_nbk = S_W, S_MB8, S_NBK
    a.vm = []
    y_rot(a)
    a("v_lshlrev_b32 v10, 4, v0")
    a("v_add_u32 v11, 0x10000, v10")
    a("v_and_b32 v12, 7, v0")
    a("v_lshlrev_b32 v12, 2, v12")
    a("v_bfe_u32 v13, v0, 3, 1")
    a(f"s_cmp_eq_u32 s{s_nbk}, 14")
    a("s_cselect_b32 s63, 0, 128")
    a("v_mul_u32_u24 v13, s63, v13")
    a("v_add_u32 v12, v12, v13")
    a(f"s_mul_i32 s68, s{s_nbk}, 3")
    a("s_lshr_b32 s68, s68, 1")
    a("s_lshl_b32 s68, s68, 7")
    a(f"s_add_u32 s68, s68, {F2_B}")
    ACC = 16
    for r in range(48):
        a(f"v_mov_b32 v{ACC+r}, 0")
    wg_poll(a, 14, 12, "s68", sleep=2)
    a.stamp()
    a(f"s_mul_i32 s69, s{s_nbk}, {6*16*1024}")
    a(f"s_and_b32 s71, s{s_w}, 1")
    a("s_mul_i32 s71, s71, 49152")
    a("s_add_u32 s69, s69, s71")
    a(f"s_lshr_b32 s73, s{s_w}, 1")
    a("s_add_u32 s73, s73, s74")
    a(f"s_mul_i32 s72, s{s_w}, 3072")
    NG = 8
    def t_items(g):
        items = []
        for k in range(3):
            def f(k=k):
                if k == 0:
                    a(f"s_add_u32 s70, s73, {2*g}")
                    a("s_and_b32 s70, s70, 15")
                    a("s_lshl_b32 s70, s70, 10")
                    a("s_add_u32 s70, s70, s69")
                a(f"s_add_u32 m0, s72, {(12*g + k)*1024}")
                a(f"s_add_u32 s71, s70, {k*16384}")
                a.vmem(f"buffer_load_dwordx4 v10, {srd(S_TF)}, s71 offen{LDSC} lds", f"T{g}")
            items.append(f)
        return items
    PRE = 4
    for g in range(PRE):
        for f in t_items(g): f()
    FA = 64
    def read_items(g):
        items = []
        for qq in range(2):
            q = 2*g + qq
            for j in range(6):
                r = FA + 48*(g & 1) + 24*qq + 4*j
                idx = q*6 + j
                if idx < 64:
                    items.append(lambda r=r, idx=idx: a(f"ds_read_b128 v[{r}:{r+3}], v10 offset:{idx*1024}"))
                else:
                    items.append(lambda r=r, idx=idx: a(f"ds_read_b128 v[{r}:{r+3}], v11 offset:{(idx-64)*1024}"))
        return items
    def mfma_items(g):
        items = []
        for qq in range(2):
            q = 2*g + qq
            for j in range(6):
                for i in range(2):
                    c = ACC + 8*j + 4*i
                    ra = FA + 48*(g & 1) + 24*qq + 4*j
                    rb_ = 8*q + 4*i
                    items.append(lambda c=c, ra=ra, rb_=rb_: a(f"v_mfma_f32_16x16x32_bf16 v[{c}:{c+3}], v[{ra}:{ra+3}], a[{rb_}:{rb_+3}], v[{c}:{c+3}]"))
        return items
    a.wait("T0")
    a("s_barrier")
    a.stamp()
    for f in read_items(0): f()
    for g in range(NG):
        if g + 1 < NG:
            a.wait(f"T{g+1}")
            a("s_waitcnt lgkmcnt(0)")
            a("s_barrier")
        else:
            a("s_waitcnt lgkmcnt(0)")
        side = read_items(g + 1) if g + 1 < NG else []
        dm = t_items(g + PRE) if g + PRE < NG else []
        seq = interleave(mfma_items(g), side)
        seq = interleave(seq, dm)
        for f in seq: f()
    a("s_nop 7")
    a("s_nop 1")
    a.stamp()
    a("v_and_b32 v1, 15, v0")
    a("v_lshrrev_b32 v2, 4, v0")
    a("v_mul_u32_u24 v3, 2752, v1")
    a("v_lshl_add_u32 v3, v2, 4, v3")
    a(f"s_lshl_b32 s70, s{s_mb8}, 7")
    a(f"s_lshl_b32 s71, s{s_w}, 5")
    a("s_add_u32 s70, s70, s71")
    a("s_mul_i32 s70, s70, 2752")
    a(f"s_mul_i32 s71, s{s_nbk}, 192")
    a("s_add_u32 s70, s70, s71")
    a(f"s_add_u32 s71, s70, {16*2752}")
    for p in range(3):
        if p == 1:
            a(f"s_cmp_eq_u32 s{s_nbk}, 14")
            a("s_cbranch_scc1 Y_done")
        for i in range(2):
            t0 = ACC + 8*(2*p) + 4*i
            t1 = ACC + 8*(2*p+1) + 4*i
            o = 160 + 4*(2*p+i)
            a(f"v_cvt_pk_bf16_f32 v{o}, v{t0}, v{t0+1}")
            a(f"v_cvt_pk_bf16_f32 v{o+1}, v{t0+2}, v{t0+3}")
            a(f"v_cvt_pk_bf16_f32 v{o+2}, v{t1}, v{t1+1}")
            a(f"v_cvt_pk_bf16_f32 v{o+3}, v{t1+2}, v{t1+3}")
            a(f"buffer_store_dwordx4 v[{o}:{o+3}], v3, {srd(S_OUT)}, s{70+i} offen offset:{64*p}")
    a.lab("Y_done")

def kd(name, vgpr, accum, sgpr=102):
    return f""".p2align 6
.amdhsa_kernel {name}
  .amdhsa_next_free_vgpr {vgpr}
  .amdhsa_next_free_sgpr {sgpr}
  .amdhsa_accum_offset {accum}
  .amdhsa_group_segment_fixed_size 0
  .amdhsa_kernarg_size 72
  .amdhsa_user_sgpr_count 2
  .amdhsa_user_sgpr_kernarg_segment_ptr 1
  .amdhsa_system_sgpr_workgroup_id_x 1
.end_amdhsa_kernel
"""

HEADER = open("cdna_kernels/" + NAME + ".s.ref").read().split("; Override launch")[0]

def build():
    a = A()
    K = NAME + "_kernel"
    out = HEADER
    out += "; @launch grid=(256,1,1) block=(256,1,1) lds=163840\n"
    out += '.amdgcn_target "amdgcn-amd-amdhsa--gfx950"\n.text\n'
    a.l.append(f".globl {K}\n.p2align 8\n.type {K},@function\n{K}:")
    a("s_cmp_ge_u32 s2, 256")
    a("s_cbranch_scc1 K_end")
    if STAMPS:
        a("s_memrealtime s[94:95]")
        a("s_memtime s[96:97]")
    prologue(a)
    a("s_cmp_eq_u32 s2, 250")
    a("s_cbranch_scc0 K_np")
    a(f"s_cmp_eq_u32 s{S_W}, 0")
    a("s_cbranch_scc0 K_np")
    a("s_memrealtime s[62:63]")
    a("s_waitcnt lgkmcnt(0)")
    a("s_or_b32 s62, s62, 1")
    a("v_mov_b32 v2, s62")
    a("s_mov_b64 exec, 1")
    a(f"buffer_store_dword v2, off, {srd(S_DBG)}, 0 sc1")
    a("s_mov_b64 exec, -1")
    a.lab("K_np")
    if STAMPS:
        a("s_mov_b32 s76, s94")
        a.nst = 1
    a.stamp()
    a("s_and_b32 s62, s2, 7")
    a("s_lshr_b32 s63, s2, 3")
    a("s_and_b32 s64, s62, 3")
    a("s_lshl_b32 s64, s64, 2")
    a("s_and_b32 s65, s63, 3")
    a(f"s_add_u32 s{S_MB8}, s64, s65")
    a("s_lshr_b32 s64, s62, 2")
    a("s_lshl_b32 s64, s64, 3")
    a("s_lshr_b32 s65, s63, 2")
    a(f"s_add_u32 s{S_NBK}, s64, s65")
    a("s_lshr_b32 s64, s62, 1")
    a("s_and_b32 s65, s64, 1")
    a("s_sub_u32 s65, 6, s65")
    a("s_lshl_b32 s65, s65, 2")
    a("s_cmp_lt_u32 s63, s65")
    a("s_cbranch_scc0 K_notT")
    a("s_and_b32 s66, s62, 1")
    a("s_lshl_b32 s66, s66, 2")
    a("s_and_b32 s67, s63, 3")
    a(f"s_add_u32 s{S_A}, s66, s67")
    a("s_mul_i32 s64, s64, 11")
    a("s_add_u32 s64, s64, 1")
    a("s_lshr_b32 s64, s64, 1")
    a("s_lshr_b32 s66, s63, 2")
    a(f"s_add_u32 s{S_B}, s64, s66")
    a("s_mul_i32 s67, s67, 11")
    a("s_lshr_b32 s67, s67, 2")
    a("s_lshl_b32 s66, s66, 1")
    a("s_add_u32 s94, s67, s66")
    nst0 = a.nst
    role_T(a, S_A, S_B, 94)
    nstT = a.nst
    a("s_branch K_y")
    a.lab("K_notT")
    a("s_sub_u32 s63, s63, s65")
    a("s_cmp_lt_u32 s63, 8")
    a("s_cbranch_scc0 K_spare")
    a("s_and_b32 s64, s62, 1")
    a("s_lshl_b32 s64, s64, 1")
    a("s_and_b32 s65, s63, 1")
    a(f"s_add_u32 s{S_A}, s64, s65")
    a("s_lshr_b32 s64, s62, 1")
    a("s_lshl_b32 s64, s64, 2")
    a("s_lshr_b32 s65, s63, 1")
    a(f"s_add_u32 s{S_B}, s64, s65")
    a("s_mov_b32 s73, s63")
    a.vm = []
    a.nst = nst0
    role_xr(a, S_A, S_B, 73)
    a("s_branch K_pre")
    a.lab("K_spare")
    a.vm = []
    n2 = a.nst
    a.nst = nst0
    nonce_get(a, 9)
    a("s_waitcnt vmcnt(0)")
    nonce_check(a, 9)
    while STAMPS and a.nst < n2:
        a.stamp()
    a.lab("K_pre")
    a.vm = []
    y_f3_addr(a, 18, 19)
    a("s_nop 0")
    wg_poll(a, 19, 18, "s67", sleep=8)
    y_xr_loads(a)
    while STAMPS and a.nst < nstT:
        a.stamp()
    a.lab("K_y")
    a.nst = nstT
    a(f"s_cmp_ge_u32 s{S_NBK}, 15")
    a("s_cbranch_scc1 K_fin")
    role_y(a)
    a.lab("K_fin")
    stamp_flush(a)
    a.lab("K_end")
    a("s_endpgm")
    out += a.text()
    out += '.section .rodata,"a"\n'
    out += kd(K, 512, 256)
    return out

if __name__ == "__main__":
    if "--plain" in sys.argv:
        LDSC = ""
        sys.argv.remove("--plain")
    if "--stamps" in sys.argv:
        STAMPS = True
        sys.argv.remove("--stamps")
    dst = sys.argv[1] if len(sys.argv) > 1 else "cdna_kernels/" + NAME + ".s"
    open(dst, "w").write(build())
    print("wrote", dst)
```

```python
import sys

NAME = "standalone__weight_only_int_quip__prompt"
M, D, F = 2048, 512, 1376
WQF_OFF, WQF_SZ = 0x000000, 32 * 44 * 1024
XF_OFF, XF_SZ = 0x200000, 128 * 16 * 1024
TF_OFF, TF_SZ = 0x400000, 86 * 16 * 1024
FL_OFF, FL_SZ = 0x600000, 0x4000
F1_B, F2_B, F3_B = 0x0000, 0x1000, 0x2000
STAMPS = False
OPT = dict(NV0=1, NV1=4, WPRE=4, TPRE=4, XPRE=15, SKEW=1, DIAG=0, MAP=0, XMAP=0, CPF=1, OST=0)
SPIN_MAX = 200000
LDSC = ' sc1'


class A:
    def __init__(s):
        s.l = []
        s.vm = []
        s.nst = 0
        s.uid = 0
    def __call__(s, x):
        s.l.append("  " + x)
    def lab(s, x):
        s.l.append(x + ":")
    def text(s):
        return "\n".join(s.l) + "\n"
    def vmem(s, x, tag):
        s(x); s.vm.append(tag)
    def wait(s, tag, extra=""):
        idx = [i for i, t in enumerate(s.vm) if t == tag]
        if not idx:
            return
        n = len(s.vm) - 1 - idx[-1]
        assert n <= 63, n
        s(f"s_waitcnt vmcnt({n}){extra}")
        s.vm = s.vm[idx[-1] + 1:]
    def waitall(s):
        s("s_waitcnt vmcnt(0)"); s.vm = []
    def new(s, p):
        s.uid += 1
        return f"{p}_{s.uid}"
    def stamp(s):
        if not STAMPS: return
        i = s.nst; s.nst += 1
        assert i < 24, i
        s("s_memrealtime s[100:101]")
        s("s_waitcnt lgkmcnt(0)")
        s(f"s_mov_b32 s{76+i}, s100")

S_X, S_QW, S_SC, S_ZR, S_U, S_V, S_OUT, S_WQF, S_XF, S_TF, S_FL, S_DBG = [8 + 4*i for i in range(12)]
S_W, S_NONCE, S_A, S_B, S_MB8, S_NBK = 56, 57, 58, 59, 60, 61
T0 = 62
def srd(i): return f"s[{i}:{i+3}]"

def prologue(a):
    a("s_load_dwordx16 s[76:91], s[0:1], 0")
    a("s_load_dwordx2 s[92:93], s[0:1], 64")
    a("v_lshrrev_b32 v1, 6, v0")
    a("v_and_b32 v0, 63, v0")
    a(f"v_readfirstlane_b32 s{S_W}, v1")
    a("s_waitcnt lgkmcnt(0)")
    tbl = [(S_X, 76, M*D*2), (S_QW, 78, D*F*4), (S_SC, 80, 4*F*2), (S_ZR, 82, 4*F*2),
           (S_U, 84, D*D*2), (S_V, 86, F*F*2), (S_OUT, 88, M*F*2), (S_DBG, 90, 256)]
    for r, p, sz in tbl:
        a(f"s_mov_b32 s{r}, s{p}")
        a(f"s_and_b32 s{r+1}, s{p+1}, 0xffff")
        a(f"s_mov_b32 s{r+2}, {sz}")
        a(f"s_mov_b32 s{r+3}, 0x20000")
    for r, off, sz in [(S_WQF, WQF_OFF, WQF_SZ), (S_XF, XF_OFF, XF_SZ), (S_TF, TF_OFF, TF_SZ), (S_FL, FL_OFF, FL_SZ)]:
        a(f"s_add_u32 s{r}, s92, {off}")
        a(f"s_addc_u32 s{r+1}, s93, 0")
        a(f"s_and_b32 s{r+1}, s{r+1}, 0xffff")
        a(f"s_mov_b32 s{r+2}, {sz}")
        a(f"s_mov_b32 s{r+3}, 0x20000")

def stamp_flush(a):
    if not STAMPS: return
    a.stamp()
    a("s_waitcnt vmcnt(0)")
    a.stamp()
    n = a.nst
    a("s_memtime s[98:99]")
    a("s_load_dwordx2 s[62:63], s[0:1], 64")
    a("s_waitcnt lgkmcnt(0)")
    a("s_add_u32 s8, s62, 0x800000")
    a("s_addc_u32 s9, s63, 0")
    a("s_and_b32 s9, s9, 0xffff")
    a("s_mov_b32 s10, 0x100000")
    a("s_mov_b32 s11, 0x20000")
    a("s_lshl_b32 s64, s2, 2")
    a(f"s_add_u32 s64, s64, s{S_W}")
    a("s_lshl_b32 s64, s64, 7")
    a("s_mov_b64 exec, 1")
    a("v_mov_b32 v3, 0")
    for i in range(n):
        a(f"v_mov_b32 v4, s{76+i}")
        a(f"buffer_store_dword v4, v3, s[8:11], s64 offen offset:{4*i}")
        a("s_nop 1")
    a("s_sub_u32 s98, s98, s96")
    a("v_mov_b32 v4, s98")
    a("buffer_store_dword v4, v3, s[8:11], s64 offen offset:120")

def nonce_get_all(a, vreg):
    a.vmem(f"buffer_load_dword v{vreg}, off, {srd(S_DBG)}, 0 sc1", "N")

def nonce_check_all(a, vreg):
    L, Dn = a.new("NC"), a.new("ND")
    a(f"v_readfirstlane_b32 s{S_NONCE}, v{vreg}")
    a(f"s_mov_b32 s{T0}, {SPIN_MAX}")
    a.lab(L)
    a(f"s_cmp_lg_u32 s{S_NONCE}, 0")
    a(f"s_cbranch_scc1 {Dn}")
    a(f"s_sub_u32 s{T0}, s{T0}, 1")
    a(f"s_cbranch_scc1 {Dn}")
    a("s_sleep 2")
    a(f"buffer_load_dword v{vreg}, off, {srd(S_DBG)}, 0 sc1")
    a("s_waitcnt vmcnt(0)")
    a(f"v_readfirstlane_b32 s{S_NONCE}, v{vreg}")
    a(f"s_branch {L}")
    a.lab(Dn)

def nonce_get(a, vreg, after_issue=None):
    sk = a.new("NG")
    a(f"s_cmp_eq_u32 s{S_W}, 0")
    a(f"s_cbranch_scc0 {sk}")
    a(f"buffer_load_dword v{vreg}, off, {srd(S_DBG)}, 0 sc1")
    a.lab(sk)

def nonce_check(a, vreg):
    L, Dn = a.new("NC"), a.new("ND")
    a(f"s_cmp_eq_u32 s{S_W}, 0")
    a(f"s_cbranch_scc0 {Dn}")
    a(f"v_readfirstlane_b32 s{S_NONCE}, v{vreg}")
    a(f"s_mov_b32 s{T0}, {SPIN_MAX}")
    a.lab(L)
    a(f"s_cmp_lg_u32 s{S_NONCE}, 0")
    a(f"s_cbranch_scc1 {Dn}")
    a(f"s_sub_u32 s{T0}, s{T0}, 1")
    a(f"s_cbranch_scc1 {Dn}")
    a("s_sleep 2")
    a(f"buffer_load_dword v{vreg}, off, {srd(S_DBG)}, 0 sc1")
    a("s_waitcnt vmcnt(0)")
    a(f"v_readfirstlane_b32 s{S_NONCE}, v{vreg}")
    a(f"s_branch {L}")
    a.lab(Dn)

def poll_issue(a, vreg, voff, soff, tag):
    a.vmem(f"buffer_load_dword v{vreg}, v{voff}, {srd(S_FL)}, {soff} offen sc1", tag)

def poll_check(a, regs, voffs, soff):
    L, Dn = a.new("PL"), a.new("PD")
    a(f"s_mov_b32 s{T0}, {SPIN_MAX}")
    a.lab(L)
    a(f"v_cmp_ne_u32 s[{T0+2}:{T0+3}], s{S_NONCE}, v{regs[0]}")
    for r in regs[1:]:
        a(f"v_cmp_ne_u32 s[{T0+4}:{T0+5}], s{S_NONCE}, v{r}")
        a(f"s_or_b64 s[{T0+2}:{T0+3}], s[{T0+2}:{T0+3}], s[{T0+4}:{T0+5}]")
    a(f"s_cmp_eq_u64 s[{T0+2}:{T0+3}], 0")
    a(f"s_cbranch_scc1 {Dn}")
    a(f"s_sub_u32 s{T0}, s{T0}, 1")
    a(f"s_cbranch_scc1 {Dn}")
    a("s_sleep 4")
    for r, vo in zip(regs, voffs):
        a(f"buffer_load_dword v{r}, v{vo}, {srd(S_FL)}, {soff} offen sc1")
    a("s_waitcnt vmcnt(0)")
    a(f"s_branch {L}")
    a.lab(Dn)

def wg_flag(a, soff, vtmp):
    sk = a.new("WF")
    a("s_barrier")
    a(f"s_cmp_eq_u32 s{S_W}, 0")
    a(f"s_cbranch_scc0 {sk}")
    a(f"v_mov_b32 v{vtmp}, s{S_NONCE}")
    a("s_mov_b64 exec, 1")
    a(f"buffer_store_dword v{vtmp}, off, {srd(S_FL)}, {soff} sc1")
    a("s_mov_b64 exec, -1")
    a.lab(sk)

def wg_poll(a, reg, voff, soff, sleep=4, reg2=None, voff2=None):
    L, Dn, sk = a.new("PL"), a.new("PD"), a.new("PS")
    a(f"s_cmp_eq_u32 s{S_W}, 0")
    a(f"s_cbranch_scc0 {sk}")
    a(f"s_mov_b32 s{T0}, {SPIN_MAX}")
    a.lab(L)
    a(f"buffer_load_dword v{reg}, v{voff}, {srd(S_FL)}, {soff} offen sc1")
    if reg2 is not None:
        a(f"buffer_load_dword v{reg2}, v{voff2}, {srd(S_FL)}, {soff} offen sc1")
    a("s_waitcnt vmcnt(0)")
    a(f"v_cmp_ne_u32 s[{T0+2}:{T0+3}], s{S_NONCE}, v{reg}")
    if reg2 is not None:
        a(f"v_cmp_ne_u32 s[{T0+4}:{T0+5}], s{S_NONCE}, v{reg2}")
        a(f"s_or_b64 s[{T0+2}:{T0+3}], s[{T0+2}:{T0+3}], s[{T0+4}:{T0+5}]")
    a(f"s_cmp_eq_u64 s[{T0+2}:{T0+3}], 0")
    a(f"s_cbranch_scc1 {Dn}")
    a(f"s_sub_u32 s{T0}, s{T0}, 1")
    a(f"s_cbranch_scc1 {Dn}")
    a(f"s_sleep {sleep}")
    a(f"s_branch {L}")
    a.lab(Dn)
    a.lab(sk)
    a("s_barrier")

def flag_store(a, soff, vtmp, vzero):
    a(f"v_mov_b32 v{vtmp}, s{S_NONCE}")
    a("s_mov_b64 exec, 1")
    a.vmem(f"buffer_store_dword v{vtmp}, off, {srd(S_FL)}, {soff} sc1", "F")
    a("s_mov_b64 exec, -1")

def prep_issue(a, s_db, s_kb, V):
    t = T0
    a(f"v_lshrrev_b32 v{V+1}, 3, v0")
    a(f"v_and_b32 v{V+2}, 7, v0")
    a(f"v_mul_u32_u24 v{V+3}, 5504, v{V+1}")
    a(f"v_lshl_add_u32 v{V+3}, v{V+2}, 4, v{V+3}")
    a(f"v_lshlrev_b32 v{V+4}, 3, v{V+2}")
    a(f"s_cmp_eq_u32 s{s_kb}, 21")
    a(f"s_cselect_b32 s{t}, 0x40000000, 128")
    a(f"s_cselect_b32 s{t+1}, 0x40000000, 64")
    a(f"v_add_u32 v{V+5}, s{t}, v{V+3}")
    a(f"v_add_u32 v{V+6}, s{t+1}, v{V+4}")
    a(f"s_mul_i32 s{t+2}, s{s_db}, 88064")
    a(f"s_lshl_b32 s{t+3}, s{s_kb}, 8")
    a(f"s_add_u32 s{t+2}, s{t+2}, s{t+3}")
    a(f"s_add_u32 s{t+3}, s{t+2}, 44032")
    a(f"s_lshr_b32 s{t+4}, s{s_db}, 3")
    a(f"s_mul_i32 s{t+4}, s{t+4}, 2752")
    a(f"s_lshl_b32 s{t+5}, s{s_kb}, 7")
    a(f"s_add_u32 s{t+4}, s{t+4}, s{t+5}")
    a.vmem(f"buffer_load_dwordx4 v[{V+8}:{V+11}], v{V+3}, {srd(S_QW)}, s{t+2} offen", "P")
    a.vmem(f"buffer_load_dwordx4 v[{V+12}:{V+15}], v{V+5}, {srd(S_QW)}, s{t+2} offen", "P")
    a.vmem(f"buffer_load_dwordx4 v[{V+16}:{V+19}], v{V+3}, {srd(S_QW)}, s{t+3} offen", "P")
    a.vmem(f"buffer_load_dwordx4 v[{V+20}:{V+23}], v{V+5}, {srd(S_QW)}, s{t+3} offen", "P")
    a.vmem(f"buffer_load_dwordx2 v[{V+24}:{V+25}], v{V+4}, {srd(S_SC)}, s{t+4} offen", "P")
    a.vmem(f"buffer_load_dwordx2 v[{V+26}:{V+27}], v{V+6}, {srd(S_SC)}, s{t+4} offen", "P")
    a.vmem(f"buffer_load_dwordx2 v[{V+28}:{V+29}], v{V+4}, {srd(S_ZR)}, s{t+4} offen", "P")
    a.vmem(f"buffer_load_dwordx2 v[{V+30}:{V+31}], v{V+6}, {srd(S_ZR)}, s{t+4} offen", "P")
    a(f"v_lshrrev_b32 v{V+7}, 2, v{V+2}")
    a(f"v_lshlrev_b32 v{V+7}, 10, v{V+7}")
    a(f"v_and_b32 v{V+32}, 3, v{V+2}")
    a(f"v_lshl_add_u32 v{V+7}, v{V+32}, 8, v{V+7}")
    a(f"v_lshl_add_u32 v{V+7}, v{V+1}, 4, v{V+7}")

def prep_finish(a, s_db, s_kb, V):
    t = T0
    a(f"s_mul_i32 s{t}, s{s_db}, 44")
    a(f"s_lshl_b32 s{t+1}, s{s_kb}, 1")
    a(f"s_add_u32 s{t}, s{t}, s{t+1}")
    a(f"s_lshl_b32 s{t}, s{t}, 10")
    a(f"s_mov_b32 s{t+1}, 0xffff0000")
    for i in range(4):
        a(f"v_lshlrev_b32 v{V+32+2*i}, 16, v{V+24+i}")
        a(f"v_and_b32 v{V+33+2*i}, s{t+1}, v{V+24+i}")
        a(f"v_lshlrev_b32 v{V+40+2*i}, 16, v{V+28+i}")
        a(f"v_and_b32 v{V+41+2*i}, s{t+1}, v{V+28+i}")
    for rh in range(2):
        q = V + 8 + 8 * rh
        for i in range(8):
            a(f"v_cvt_f32_i32 v{q+i}, v{q+i}")
        for i in range(8):
            a(f"v_sub_f32 v{q+i}, v{q+i}, v{V+40+i}")
        for i in range(4):
            a(f"v_cvt_pk_bf16_f32 v{V+48+i}, v{q+2*i}, v{q+2*i+1}")
        for i in range(4):
            a(f"v_lshlrev_b32 v{q+2*i}, 16, v{V+48+i}")
            a(f"v_and_b32 v{q+2*i+1}, s{t+1}, v{V+48+i}")
        for i in range(8):
            a(f"v_mul_f32 v{q+i}, v{q+i}, v{V+32+i}")
        o = V + 52 + 4 * rh
        for i in range(4):
            a(f"v_cvt_pk_bf16_f32 v{o+i}, v{q+2*i}, v{q+2*i+1}")
        a.vmem(f"buffer_store_dwordx4 v[{o}:{o+3}], v{V+7}, {srd(S_WQF)}, s{t} offen offset:{128*rh} sc1", "S")

def interleave(main, side):
    out = []
    n, m = len(main), len(side)
    k = 0
    for i, x in enumerate(main):
        out.append(x)
        while k < m and (k + 1) * n <= (i + 1) * m + (n - 1) * 0:
            out.append(side[k]); k += 1
    out.extend(side[k:])
    return out

def role_xr(a, s_eb, s_mb8, s_rot):
    s_w = S_W
    SWE, SWM, UB, XB, LB, TT = 64, 65, 66, 67, 68, 69
    a(f"s_and_b32 s{SWE}, s{s_w}, 1")
    a(f"s_lshr_b32 s{SWM}, s{s_w}, 1")
    a("v_lshrrev_b32 v1, 4, v0")
    a("v_and_b32 v2, 15, v0")
    a("v_lshlrev_b32 v3, 1, v1")
    a("v_xor_b32 v4, v2, v3")
    a("v_xor_b32 v5, 8, v4")
    a("v_lshlrev_b32 v6, 10, v1")
    a("v_lshl_add_u32 v10, v4, 4, v6")
    a("v_lshl_add_u32 v11, v5, 4, v6")
    a("v_lshrrev_b32 v1, 3, v0")
    a("v_and_b32 v2, 7, v0")
    a("v_lshrrev_b32 v3, 1, v1")
    a("v_xor_b32 v4, v2, v3")
    a("v_xor_b32 v5, 4, v4")
    a("v_lshlrev_b32 v6, 10, v1")
    a("v_lshl_add_u32 v12, v4, 4, v6")
    a("v_lshl_add_u32 v13, v5, 4, v6")
    a(f"s_lshl_b32 s{UB}, s{s_w}, 14")
    a(f"s_lshl_b32 s{TT}, s{s_eb}, 8")
    a(f"s_add_u32 s{UB}, s{UB}, s{TT}")
    a(f"s_lshl_b32 s{XB}, s{s_mb8}, 17")
    a(f"s_lshl_b32 s{TT}, s{s_w}, 15")
    a(f"s_add_u32 s{XB}, s{XB}, s{TT}")
    a(f"s_lshl_b32 s{LB}, s{s_w}, 12")
    NSL = 4
    def dma_items(st):
        slot = st % NSL
        items = []
        def setup():
            a(f"s_add_u32 s70, s{s_rot}, {st}")
            a("s_and_b32 s70, s70, 7")
            a("s_lshl_b32 s71, s70, 16")
            a(f"s_add_u32 s71, s71, s{UB}")
            a("s_lshl_b32 s72, s70, 7")
            a(f"s_add_u32 s72, s72, s{XB}")
        for aa in range(4):
            def f(aa=aa):
                if aa == 0: setup()
                a(f"s_add_u32 m0, s{LB}, {slot*32768 + aa*1024}")
                a(f"s_add_u32 s{TT}, s71, {aa*4096}")
                a.vmem(f"buffer_load_dwordx4 v{10 + (aa>>1)}, {srd(S_U)}, s{TT} offen lds", f"X{st}")
            items.append(f)
        for bb in range(4):
            def f(bb=bb):
                a(f"s_add_u32 m0, s{LB}, {slot*32768 + 16384 + bb*1024}")
                a(f"s_add_u32 s{TT}, s72, {bb*8192}")
                a.vmem(f"buffer_load_dwordx4 v{12 + (bb&1)}, {srd(S_X)}, s{TT} offen lds", f"X{st}")
            items.append(f)
        return items
    XPRE = OPT['XPRE']
    if XPRE == 15:
        for f in dma_items(0): f()
        d1 = dma_items(1)
        for f in d1[:4]: f()
    else:
        for st in range(XPRE):
            for f in dma_items(st): f()
    a.stamp()
    a("v_lshrrev_b32 v1, 4, v0")
    a("v_bfe_u32 v2, v0, 2, 2")
    a("v_and_b32 v3, 3, v0")
    a("v_lshl_add_u32 v4, v1, 3, v2")
    a("v_lshlrev_b32 v4, 8, v4")
    a("v_and_b32 v5, 1, v1")
    a("v_lshlrev_b32 v5, 3, v5")
    a("v_lshl_add_u32 v5, v2, 1, v5")
    a("v_lshrrev_b32 v6, 1, v3")
    a(f"s_lshl_b32 s{TT}, s{SWE}, 3")
    a(f"v_or_b32 v6, s{TT}, v6")
    a("v_xor_b32 v5, v5, v6")
    a("v_lshl_add_u32 v4, v5, 4, v4")
    a("v_and_b32 v6, 1, v3")
    a("v_lshl_add_u32 v4, v6, 3, v4")
    for i in range(4):
        a(f"v_xor_b32 v{16+i}, {i<<5}, v4")
        a(f"v_add_u32 v{20+i}, 0x10000, v{16+i}")
    a("v_and_b32 v2, 15, v0")
    a("v_lshrrev_b32 v3, 1, v2")
    a("v_xor_b32 v3, v3, v1")
    a("v_lshlrev_b32 v4, 7, v2")
    a("v_lshl_add_u32 v4, v3, 4, v4")
    a(f"s_lshl_b32 s{TT}, s{SWM}, 13")
    a(f"s_add_u32 s{TT}, s{TT}, 16384")
    a(f"v_add_u32 v24, s{TT}, v4")
    a("v_xor_b32 v25, 64, v24")
    a("v_add_u32 v26, 0x10000, v24")
    a("v_add_u32 v27, 0x10000, v25")
    ACC = 64
    for r in range(64):
        a(f"v_mov_b32 v{ACC+r}, 0")
    def read_items(hh):
        st, h2, buf = hh >> 1, hh & 1, hh & 1
        slot = st % NSL
        hi = slot >> 1
        so = (slot & 1) * 32768
        FA = 128 + 32 * buf
        FB = 144 + 32 * buf
        items = []
        for j in range(4):
            items.append(lambda j=j: a(f"ds_read_b128 v[{FB+4*j}:{FB+4*j+3}], v{24+2*hi+h2} offset:{so + j*2048}"))
        for i in range(4):
            for q in range(2):
                items.append(lambda i=i, q=q: a(f"ds_read_b64_tr_b16 v[{FA+4*i+2*q}:{FA+4*i+2*q+1}], v{16+4*hi+i} offset:{so + h2*8192 + q*1024}"))
        return items
    def mfma_items(buf):
        FA = 128 + 32 * buf
        FB = 144 + 32 * buf
        items = []
        for i in range(4):
            for j in range(4):
                c = ACC + 16*i + 4*j
                items.append(lambda c=c, i=i, j=j: a(f"v_mfma_f32_16x16x32_bf16 v[{c}:{c+3}], v[{FA+4*i}:{FA+4*i+3}], v[{FB+4*j}:{FB+4*j+3}], v[{c}:{c+3}]"))
        return items
    a.wait("X0")
    a("s_barrier")
    a.stamp()
    for f in read_items(0): f()
    for hh in range(16):
        st = hh >> 1
        a("s_waitcnt lgkmcnt(0)")
        if (hh & 1) and st + 1 < 8:
            a.wait(f"X{st+1}")
            a("s_barrier")
        side = []
        if hh + 1 < 16:
            side += read_items(hh + 1)
        dm = []
        if XPRE == 15 and hh < 2:
            if hh == 0:
                dm = d1[4:] + dma_items(2)
            else:
                dm = dma_items(3)[:4]
        elif XPRE == 3 or XPRE == 15:
            if hh & 1:
                S = st + 3
                if S < 8: dm = dma_items(S)[:4]
            else:
                S = st + 2
                if st >= 1 and S < 8: dm = dma_items(S)[4:]
        else:
            S = st + 2
            if S < 8:
                dm = dma_items(S)[:4] if (hh & 1) == 0 else dma_items(S)[4:]
        if hh == 9:
            dm = dm + [lambda: nonce_get(a, 28)]
        m = mfma_items(hh & 1)
        seq = interleave(m, side)
        seq = interleave(seq, dm)
        for f in seq: f()
    a("s_nop 7")
    a("s_nop 1")
    a.stamp()
    a("v_lshlrev_b32 v1, 4, v0")
    a(f"s_lshl_b32 s70, s{s_mb8}, 7")
    a(f"s_lshl_b32 s71, s{SWM}, 6")
    a("s_add_u32 s70, s70, s71")
    a(f"s_lshl_b32 s71, s{s_eb}, 2")
    a("s_add_u32 s70, s70, s71")
    a(f"s_lshl_b32 s71, s{SWE}, 1")
    a("s_add_u32 s70, s70, s71")
    a("s_lshl_b32 s70, s70, 10")
    for j in range(4):
        a(f"s_add_u32 s71, s70, {j*16*1024}")
        for sh in range(2):
            t0 = ACC + 16*(2*sh) + 4*j
            t1 = ACC + 16*(2*sh+1) + 4*j
            o = 128 + 4*(2*j+sh)
            a(f"v_cvt_pk_bf16_f32 v{o}, v{t0}, v{t0+1}")
            a(f"v_cvt_pk_bf16_f32 v{o+1}, v{t0+2}, v{t0+3}")
            a(f"v_cvt_pk_bf16_f32 v{o+2}, v{t1}, v{t1+1}")
            a(f"v_cvt_pk_bf16_f32 v{o+3}, v{t1+2}, v{t1+3}")
            a.vmem(f"buffer_store_dwordx4 v[{o}:{o+3}], v1, {srd(S_XF)}, s71 offen offset:{sh*1024} sc1", "S")
    a.wait("S")
    nonce_check(a, 28)
    a(f"s_lshl_b32 s70, s{s_mb8}, 7")
    a(f"s_lshl_b32 s71, s{s_eb}, 2")
    a("s_add_u32 s70, s70, s71")
    a(f"s_add_u32 s70, s70, {F3_B}")
    wg_flag(a, "s70", 2)
    a.stamp()

def role_T(a, s_rb, s_cb, s_rot):
    s_w = S_W
    NSL = 10
    DBS, DBS2 = 68, 95
    TB, CBO, LB, WBASE = 69, 70, 71, 72
    a("v_lshrrev_b32 v1, 3, v0")
    a("v_and_b32 v2, 7, v0")
    a("v_bfe_u32 v3, v1, 1, 1")
    a("v_lshlrev_b32 v3, 2, v3")
    a("v_xor_b32 v2, v2, v3")
    a("v_mul_u32_u24 v10, 2752, v1")
    a("v_lshl_add_u32 v10, v2, 4, v10")
    a(f"s_mul_i32 s73, s{s_w}, 11")
    a(f"s_add_u32 s{TB}, s{s_rot}, s73")
    a(f"s_lshl_b32 s{CBO}, s{s_cb}, 7")
    a(f"s_mul_i32 s{LB}, s{s_w}, {NSL*4096}")
    def step_t(i, dst):
        a(f"s_add_u32 s{dst}, s{TB}, {i}")
        a(f"s_cmp_ge_u32 s{dst}, 44")
        a(f"s_cselect_b32 s75, 44, 0")
        a(f"s_sub_u32 s{dst}, s{dst}, s75")
    def issueV(i):
        slot = i % NSL
        step_t(i, 73)
        a("s_lshr_b32 s74, s73, 1")
        a("s_lshl_b32 s74, s74, 6")
        a("s_and_b32 s73, s73, 1")
        a("s_lshl_b32 s73, s73, 4")
        a("s_add_u32 s73, s73, s74")
        a("s_mul_i32 s73, s73, 2752")
        a(f"s_add_u32 s73, s73, s{CBO}")
        for p, ro in enumerate((0, 8, 32, 40)):
            a(f"s_add_u32 m0, s{LB}, {slot*4096 + p*1024}")
            a(f"s_add_u32 s74, s73, {ro*2752}")
            a.vmem(f"buffer_load_dwordx4 v10, {srd(S_V)}, s74 offen lds", f"V{i}")
    def addr_setup():
        a("v_lshrrev_b32 v1, 4, v0")
        a("v_bfe_u32 v2, v0, 2, 2")
        a("v_and_b32 v3, 3, v0")
        a("v_lshl_add_u32 v4, v1, 2, v2")
        a("v_lshlrev_b32 v4, 7, v4")
        a("v_lshl_add_u32 v4, v3, 4, v4")
        a("v_lshrrev_b32 v5, 1, v2")
        a("v_lshl_add_u32 v4, v5, 6, v4")
        a(f"v_add_u32 v11, s{LB}, v4")
        a("v_xor_b32 v12, 64, v11")
        a("v_lshlrev_b32 v13, 4, v0")
        a("v_lshlrev_b32 v14, 2, v0")
        a("v_add_u32 v15, 64, v0")
        a("v_min_u32 v15, 87, v15")
        a("v_lshlrev_b32 v15, 2, v15")
    NV0, NV1 = OPT['NV0'], OPT['NV1']
    a(f"s_lshl_b32 s{DBS}, s{s_rb}, 2")
    a(f"s_add_u32 s{DBS}, s{DBS}, s{s_w}")
    PVA = 160
    prep_issue(a, DBS, s_cb, PVA)
    for i in range(NV0):
        issueV(i)
    a.stamp()
    addr_setup()
    a.wait("P")
    a.stamp()
    nonce_get_all(a, 9)
    prep_finish(a, DBS, s_cb, PVA)
    for i in range(NV0, NV1):
        issueV(i)
    a.wait("S")
    a.stamp()
    nonce_check_all(a, 9)
    a(f"s_lshl_b32 s73, s{s_rb}, 9")
    a(f"s_lshl_b32 s74, s{s_cb}, 4")
    a("s_add_u32 s73, s73, s74")
    a(f"s_lshl_b32 s74, s{s_w}, 2")
    a("s_add_u32 s73, s73, s74")
    a(f"s_add_u32 s73, s73, {F1_B}")
    flag_store(a, "s73", 2, None)
    for i in range(NV1, NSL):
        issueV(i)
    def trreads(i):
        slot = i % NSL
        for j in range(4):
            pp, ab = j >> 1, j & 1
            for q in range(2):
                r = 16*i + 4*j + 2*q
                a(f"ds_read_b64_tr_b16 a[{r}:{r+1}], v{11+pp} offset:{slot*4096 + q*2048 + ab*8}")
    a.wait("V0")
    trreads(0)
    a("s_waitcnt lgkmcnt(0)")
    issueV(10)
    ACC = 176
    for i in range(1, NSL):
        a.wait(f"V{i}")
        trreads(i)
        if i <= 4:
            for r in range(16*(i-1), 16*i):
                a(f"v_accvgpr_write_b32 a{ACC+r}, 0")
    a(f"s_lshl_b32 s68, s{s_rb}, 9")
    a(f"s_add_u32 s68, s68, {F1_B}")
    a.wait("V10")
    trreads(10)
    a("s_waitcnt lgkmcnt(0)")
    a.stamp()
    wg_poll(a, 16, 14, "s68", sleep=2, reg2=17, voff2=15)
    a.stamp()
    a(f"s_mul_i32 s{WBASE}, s{s_rb}, {4*44}")
    WB = 64
    def w_items(i):
        items = []
        for d in range(4):
            def f(d=d):
                if d == 0:
                    step_t(i, 73)
                    a(f"s_add_u32 s73, s73, s{WBASE}")
                    a("s_lshl_b32 s73, s73, 10")
                    a("s_mov_b32 s74, s73")
                else:
                    a(f"s_add_u32 s74, s73, {d*44*1024}")
                r = WB + 16*i + 4*d
                a.vmem(f"buffer_load_dwordx4 v[{r}:{r+3}], v13, {srd(S_WQF)}, s74 offen{LDSC}", f"W{i}")
            items.append(f)
        return items
    PRE = OPT['WPRE']
    for i in range(PRE):
        for f in w_items(i): f()
    y_f3_addr(a, 18, 19)
    for i in range(11):
        a.wait(f"W{i}")
        m = []
        for d in range(4):
            for j in range(4):
                c = ACC + 16*d + 4*j
                ra = WB + 16*i + 4*d
                rb_ = 16*i + 4*j
                m.append(lambda c=c, ra=ra, rb_=rb_: a(f"v_mfma_f32_16x16x32_bf16 a[{c}:{c+3}], v[{ra}:{ra+3}], a[{rb_}:{rb_+3}], a[{c}:{c+3}]"))
        side = w_items(i + PRE) if i + PRE < 11 else []
        if i == 8:
            side = side + [lambda: poll_issue(a, 19, 18, "s67", "Q3")]
        for f in interleave(m, side): f()
    a("s_nop 7")
    a.stamp()
    a("v_lshlrev_b32 v14, 4, v0")
    for w in range(4):
        sk = a.new("TR")
        a(f"s_cmp_eq_u32 s{s_w}, {w}")
        a(f"s_cbranch_scc0 {sk}")
        for o in range(4):
            if o == w: continue
            rank = (w - o - 1) % 4
            sh, jh = o >> 1, o & 1
            tl = 0
            for d in (2*sh, 2*sh+1):
                for j in (2*jh, 2*jh+1):
                    c = ACC + 16*d + 4*j
                    a(f"ds_write_b128 v14, a[{c}:{c+3}] offset:{o*12288 + (rank*4+tl)*1024}")
                    tl += 1
        sh, jh = w >> 1, w & 1
        tl = 0
        for d in (2*sh, 2*sh+1):
            for j in (2*jh, 2*jh+1):
                c = ACC + 16*d + 4*j
                for r in range(4):
                    a(f"v_accvgpr_read_b32 v{20+4*tl+r}, a{c+r}")
                tl += 1
        a.lab(sk)
    a("s_waitcnt lgkmcnt(0)")
    a("s_barrier")
    a(f"s_mul_i32 s73, s{s_w}, 12288")
    a("v_add_u32 v15, s73, v14")
    for k in range(12):
        a(f"ds_read_b128 v[{36+4*k}:{36+4*k+3}], v15 offset:{k*1024}")
    a(f"s_lshr_b32 s62, s{s_w}, 1")
    a(f"s_and_b32 s63, s{s_w}, 1")
    a(f"s_lshl_b32 s64, s{s_cb}, 1")
    a("s_add_u32 s64, s64, s63")
    a(f"s_lshl_b32 s65, s{s_rb}, 1")
    a("s_add_u32 s65, s65, s62")
    a("s_lshl_b32 s70, s64, 5")
    a("s_add_u32 s70, s70, s65")
    a("s_lshl_b32 s70, s70, 10")
    a("s_add_u32 s71, s70, 16384")
    a(f"s_lshl_b32 s64, s{s_cb}, 7")
    a(f"s_lshl_b32 s65, s{s_rb}, 2")
    a("s_add_u32 s64, s64, s65")
    a(f"s_add_u32 s72, s64, {F2_B}")
    for rank in range(3):
        a(f"s_waitcnt lgkmcnt({8-4*rank})")
        for r in range(16):
            a(f"v_add_f32 v{20+r}, v{20+r}, v{36+16*rank+r}")
    for jj in range(2):
        t0, t1, o = 20 + 4*jj, 20 + 4*(2+jj), 88 + 4*jj
        a(f"v_cvt_pk_bf16_f32 v{o}, v{t0}, v{t0+1}")
        a(f"v_cvt_pk_bf16_f32 v{o+1}, v{t0+2}, v{t0+3}")
        a(f"v_cvt_pk_bf16_f32 v{o+2}, v{t1}, v{t1+1}")
        a(f"v_cvt_pk_bf16_f32 v{o+3}, v{t1+2}, v{t1+3}")
        a.vmem(f"buffer_store_dwordx4 v[{o}:{o+3}], v14, {srd(S_TF)}, s{70+jj} offen sc1", "S2")
    a.stamp()
    poll_check(a, [19], [18], "s67")
    y_xr_loads(a, 0, 8)
    a.wait("S2")
    wg_flag(a, "s72", 2)
    y_xr_loads(a, 8, 16)
    a.stamp()

def y_f3_addr(a, vo, vt):
    a(f"v_and_b32 v{vo}, 3, v0")
    a(f"v_lshlrev_b32 v{vo}, 2, v{vo}")
    a(f"s_lshl_b32 s67, s{S_MB8}, 7")
    a(f"s_add_u32 s67, s67, {F3_B}")

def y_rot(a):
    a(f"s_and_b32 s74, s{S_MB8}, 3")
    a("s_lshl_b32 s74, s74, 2")
    a(f"s_and_b32 s75, s{S_NBK}, 7")
    a("s_lshl_b32 s75, s75, 1")
    a("s_add_u32 s74, s74, s75")

def y_xr_loads(a, q0=0, q1=16):
    sk = a.new("YX")
    a(f"s_cmp_ge_u32 s{S_NBK}, 15")
    a(f"s_cbranch_scc1 {sk}")
    y_rot(a)
    a("v_lshlrev_b32 v10, 4, v0")
    a(f"s_lshl_b32 s69, s{S_MB8}, 17")
    a(f"s_lshl_b32 s75, s{S_W}, 15")
    a("s_add_u32 s69, s69, s75")
    for q in range(q0, q1):
        a(f"s_add_u32 s75, s74, {q}")
        a("s_and_b32 s75, s75, 15")
        a("s_lshl_b32 s75, s75, 10")
        a("s_add_u32 s75, s75, s69")
        for i in range(2):
            reg = 8*q + 4*i
            a.vmem(f"buffer_load_dwordx4 a[{reg}:{reg+3}], v10, {srd(S_XF)}, s75 offen{LDSC}", "XR")
            if i == 0:
                a("s_add_u32 s75, s75, 16384")
    a.lab(sk)

def role_y(a):
    s_w, s_mb8, s_nbk = S_W, S_MB8, S_NBK
    a.vm = []
    y_rot(a)
    a("v_lshlrev_b32 v10, 4, v0")
    a("v_add_u32 v11, 0x10000, v10")
    a("v_and_b32 v12, 7, v0")
    a("v_lshlrev_b32 v12, 2, v12")
    a("v_bfe_u32 v13, v0, 3, 1")
    a(f"s_cmp_eq_u32 s{s_nbk}, 14")
    a("s_cselect_b32 s63, 0, 128")
    a("v_mul_u32_u24 v13, s63, v13")
    a("v_add_u32 v12, v12, v13")
    a(f"s_mul_i32 s68, s{s_nbk}, 3")
    a("s_lshr_b32 s68, s68, 1")
    a("s_lshl_b32 s68, s68, 7")
    a(f"s_add_u32 s68, s68, {F2_B}")
    ACC = 16
    for r in range(48):
        a(f"v_mov_b32 v{ACC+r}, 0")
    wg_poll(a, 14, 12, "s68", sleep=2)
    a.stamp()
    a(f"s_mul_i32 s69, s{s_nbk}, {6*16*1024}")
    a(f"s_and_b32 s71, s{s_w}, 1")
    a("s_mul_i32 s71, s71, 49152")
    a("s_add_u32 s69, s69, s71")
    a(f"s_lshr_b32 s73, s{s_w}, 1")
    a("s_add_u32 s73, s73, s74")
    a(f"s_mul_i32 s72, s{s_w}, 3072")
    NG = 8
    def t_items(g):
        items = []
        for k in range(3):
            def f(k=k):
                if k == 0:
                    a(f"s_add_u32 s70, s73, {2*g}")
                    a("s_and_b32 s70, s70, 15")
                    a("s_lshl_b32 s70, s70, 10")
                    a("s_add_u32 s70, s70, s69")
                a(f"s_add_u32 m0, s72, {(12*g + k)*1024}")
                a(f"s_add_u32 s71, s70, {k*16384}")
                a.vmem(f"buffer_load_dwordx4 v10, {srd(S_TF)}, s71 offen{LDSC} lds", f"T{g}")
            items.append(f)
        return items
    PRE = OPT['TPRE']
    for g in range(PRE):
        for f in t_items(g): f()
    FA = 64
    def read_items(g):
        items = []
        for qq in range(2):
            q = 2*g + qq
            for j in range(6):
                r = FA + 48*(g & 1) + 24*qq + 4*j
                idx = q*6 + j
                if idx < 64:
                    items.append(lambda r=r, idx=idx: a(f"ds_read_b128 v[{r}:{r+3}], v10 offset:{idx*1024}"))
                else:
                    items.append(lambda r=r, idx=idx: a(f"ds_read_b128 v[{r}:{r+3}], v11 offset:{(idx-64)*1024}"))
        return items
    def mfma_items(g):
        items = []
        for qq in range(2):
            q = 2*g + qq
            for j in range(6):
                for i in range(2):
                    c = ACC + 8*j + 4*i
                    ra = FA + 48*(g & 1) + 24*qq + 4*j
                    rb_ = 8*q + 4*i
                    items.append(lambda c=c, ra=ra, rb_=rb_: a(f"v_mfma_f32_16x16x32_bf16 v[{c}:{c+3}], v[{ra}:{ra+3}], a[{rb_}:{rb_+3}], v[{c}:{c+3}]"))
        return items
    a.wait("T0")
    a("s_barrier")
    a.stamp()
    for f in read_items(0): f()
    for g in range(NG):
        if g + 1 < NG:
            a.wait(f"T{g+1}")
            a("s_waitcnt lgkmcnt(0)")
            a("s_barrier")
        else:
            a("s_waitcnt lgkmcnt(0)")
        side = read_items(g + 1) if g + 1 < NG else []
        dm = t_items(g + PRE) if g + PRE < NG else []
        seq = interleave(mfma_items(g), side)
        seq = interleave(seq, dm)
        for f in seq: f()
    a("s_nop 7")
    a("s_nop 1")
    a.stamp()
    a("v_and_b32 v1, 15, v0")
    a("v_lshrrev_b32 v2, 4, v0")
    a("v_mul_u32_u24 v3, 2752, v1")
    a("v_lshl_add_u32 v3, v2, 4, v3")
    a(f"s_lshl_b32 s70, s{s_mb8}, 7")
    a(f"s_lshl_b32 s71, s{s_w}, 5")
    a("s_add_u32 s70, s70, s71")
    a("s_mul_i32 s70, s70, 2752")
    a(f"s_mul_i32 s71, s{s_nbk}, 192")
    a("s_add_u32 s70, s70, s71")
    a(f"s_add_u32 s71, s70, {16*2752}")
    for p in range(3):
        if p == 1:
            a(f"s_cmp_eq_u32 s{s_nbk}, 14")
            a("s_cbranch_scc1 Y_done")
        for i in range(2):
            t0 = ACC + 8*(2*p) + 4*i
            t1 = ACC + 8*(2*p+1) + 4*i
            o = 160 + 4*(2*p+i)
            a(f"v_cvt_pk_bf16_f32 v{o}, v{t0}, v{t0+1}")
            a(f"v_cvt_pk_bf16_f32 v{o+1}, v{t0+2}, v{t0+3}")
            a(f"v_cvt_pk_bf16_f32 v{o+2}, v{t1}, v{t1+1}")
            a(f"v_cvt_pk_bf16_f32 v{o+3}, v{t1+2}, v{t1+3}")
            a(f"buffer_store_dwordx4 v[{o}:{o+3}], v3, {srd(S_OUT)}, s{70+i} offen offset:{64*p}{['', ' sc1', ' nt', ' sc0 sc1'][OPT['OST']]}")
    a.lab("Y_done")

def kd(name, vgpr, accum, sgpr=102):
    return f""".p2align 6
.amdhsa_kernel {name}
  .amdhsa_next_free_vgpr {vgpr}
  .amdhsa_next_free_sgpr {sgpr}
  .amdhsa_accum_offset {accum}
  .amdhsa_group_segment_fixed_size 0
  .amdhsa_kernarg_size 72
  .amdhsa_user_sgpr_count 2
  .amdhsa_user_sgpr_kernarg_segment_ptr 1
  .amdhsa_system_sgpr_workgroup_id_x 1
.end_amdhsa_kernel
"""

HEADER = open("cdna_kernels/" + NAME + ".s.ref").read().split("; Override launch")[0]

def build():
    a = A()
    K = NAME + "_kernel"
    out = HEADER
    out += "; @launch grid=(256,1,1) block=(256,1,1) lds=163840\n"
    out += '.amdgcn_target "amdgcn-amd-amdhsa--gfx950"\n.text\n'
    a.l.append(f".globl {K}\n.p2align 8\n.type {K},@function\n{K}:")
    a("s_cmp_ge_u32 s2, 256")
    a("s_cbranch_scc1 K_end")
    if STAMPS:
        a("s_memrealtime s[94:95]")
        a("s_memtime s[96:97]")
    prologue(a)
    a(f"s_cmp_eq_u32 s2, {253 if OPT['MAP'] == 2 else 250}")
    a("s_cbranch_scc0 K_np")
    a(f"s_cmp_eq_u32 s{S_W}, 0")
    a("s_cbranch_scc0 K_np")
    a("s_memrealtime s[62:63]")
    a("s_waitcnt lgkmcnt(0)")
    a("s_or_b32 s62, s62, 1")
    a("v_mov_b32 v2, s62")
    a("s_mov_b64 exec, 1")
    a(f"buffer_store_dword v2, off, {srd(S_DBG)}, 0 sc1")
    a("s_mov_b64 exec, -1")
    a.lab("K_np")
    if OPT['CPF']:
        a(f"s_cmp_eq_u32 s{S_W}, 3")
        a("s_cbranch_scc0 K_ncpf")
        a("s_getpc_b64 s[62:63]")
        a.lab("K_pc")
        a(f"s_sub_u32 s62, s62, K_pc-{K}")
        a("s_subb_u32 s63, s63, 0")
        a(f"s_mov_b32 s64, K_code_end-{K}-4")
        a("v_lshlrev_b32 v2, 7, v0")
        for k in range(4):
            a(f"v_add_u32 v3, {k*8192}, v2")
            a("v_min_u32 v3, s64, v3")
            a("global_load_dword v255, v3, s[62:63]")
        a.lab("K_ncpf")
    if STAMPS:
        a("s_mov_b32 s76, s94")
        a.nst = 1
    a.stamp()
    a("s_and_b32 s62, s2, 7")
    a("s_lshr_b32 s63, s2, 3")
    a("s_and_b32 s64, s62, 3")
    a("s_lshl_b32 s64, s64, 2")
    a("s_and_b32 s65, s63, 3")
    a(f"s_add_u32 s{S_MB8}, s64, s65")
    a("s_lshr_b32 s64, s62, 2")
    a("s_lshl_b32 s64, s64, 3")
    a("s_lshr_b32 s65, s63, 2")
    a(f"s_add_u32 s{S_NBK}, s64, s65")
    if OPT['MAP'] == 0:
        a("s_lshr_b32 s64, s62, 1")
        a("s_and_b32 s65, s64, 1")
        a("s_sub_u32 s65, 6, s65")
        a("s_lshl_b32 s65, s65, 2")
        a("s_cmp_lt_u32 s63, s65")
        a("s_cbranch_scc0 K_notT")
        a("s_and_b32 s66, s62, 1")
        a("s_lshl_b32 s66, s66, 2")
        a("s_and_b32 s67, s63, 3")
        a(f"s_add_u32 s{S_A}, s66, s67")
        a("s_mul_i32 s64, s64, 11")
        a("s_add_u32 s64, s64, 1")
        a("s_lshr_b32 s64, s64, 1")
        a("s_lshr_b32 s66, s63, 2")
        a(f"s_add_u32 s{S_B}, s64, s66")
        a("s_mul_i32 s67, s67, 11")
        a("s_lshr_b32 s67, s67, 2")
        a("s_lshl_b32 s66, s66, 1")
        a("s_add_u32 s94, s67, s66")
        if OPT['SKEW']:
            a("s_and_b32 s66, s62, 1")
            a("s_mul_i32 s66, s66, 5")
            a("s_add_u32 s94, s94, s66")
    elif OPT['MAP'] == 1:
        a("s_mov_b32 s65, 22")
        a("s_cmp_lt_u32 s63, s65")
        a("s_cbranch_scc0 K_notT")
        a("s_mul_i32 s64, s62, 22")
        a("s_add_u32 s64, s64, s63")
        a(f"s_lshr_b32 s{S_B}, s64, 3")
        a(f"s_and_b32 s{S_A}, s64, 7")
        a(f"s_mul_i32 s67, s{S_A}, 11")
        a("s_lshr_b32 s67, s67, 3")
        a(f"s_and_b32 s66, s{S_B}, 3")
        a("s_mul_i32 s66, s66, 3")
        a("s_add_u32 s94, s67, s66")
    else:
        a("s_cmp_ge_u32 s62, 6")
        a("s_cbranch_scc1 K_xr")
        a("s_cmp_lt_u32 s62, 2")
        a("s_cselect_b32 s65, 30, 29")
        a("s_cmp_lt_u32 s63, s65")
        a("s_cbranch_scc0 K_spare")
        a("s_min_u32 s66, s62, 2")
        a("s_mul_i32 s64, s62, 29")
        a("s_add_u32 s64, s64, s66")
        a("s_add_u32 s64, s64, s63")
        a(f"s_lshr_b32 s{S_B}, s64, 3")
        a(f"s_and_b32 s{S_A}, s64, 7")
        a(f"s_mul_i32 s67, s{S_A}, 11")
        a("s_lshr_b32 s67, s67, 3")
        a(f"s_and_b32 s66, s{S_B}, 3")
        a("s_mul_i32 s66, s66, 3")
        a("s_add_u32 s94, s67, s66")
    nst0 = a.nst
    if OPT['DIAG'] == 2:
        a("s_branch K_fin")
    role_T(a, S_A, S_B, 94)
    if OPT['DIAG']:
        a.nst = 10
    nstT = a.nst
    a("s_branch K_y")
    a.lab("K_notT")
    if OPT['MAP'] == 2:
        a.lab("K_xr")
        a(f"s_and_b32 s{S_A}, s63, 3")
        a("s_lshr_b32 s65, s63, 2")
        a("s_sub_u32 s64, s62, 6")
        a("s_lshl_b32 s64, s64, 3")
        a(f"s_add_u32 s{S_B}, s64, s65")
        a(f"s_lshl_b32 s73, s{S_A}, 1")
        a("s_add_u32 s73, s73, s65")
    else:
        a("s_sub_u32 s63, s63, s65")
        a("s_cmp_lt_u32 s63, 8")
        a("s_cbranch_scc0 K_spare")
        if OPT['XMAP'] == 1:
            a(f"s_and_b32 s{S_A}, s63, 3")
            a("s_lshl_b32 s64, s62, 1")
            a("s_lshr_b32 s65, s63, 2")
            a(f"s_add_u32 s{S_B}, s64, s65")
            a(f"s_lshl_b32 s73, s{S_A}, 1")
            a("s_add_u32 s73, s73, s65")
            a("s_add_u32 s73, s73, s62")
        else:
            a("s_and_b32 s64, s62, 1")
            a("s_lshl_b32 s64, s64, 1")
            a("s_and_b32 s65, s63, 1")
            a(f"s_add_u32 s{S_A}, s64, s65")
            a("s_lshr_b32 s64, s62, 1")
            a("s_lshl_b32 s64, s64, 2")
            a("s_lshr_b32 s65, s63, 1")
            a(f"s_add_u32 s{S_B}, s64, s65")
            a("s_and_b32 s64, s63, 1")
            a("s_lshl_b32 s64, s64, 2")
            a("s_lshr_b32 s65, s63, 1")
            a("s_lshl_b32 s65, s65, 1")
            a("s_add_u32 s73, s64, s65")
            a("s_and_b32 s64, s62, 1")
            a("s_add_u32 s73, s73, s64")
    a.vm = []
    a.nst = nst0
    if OPT['DIAG'] == 1:
        a("s_branch K_fin")
    role_xr(a, S_A, S_B, 73)
    if OPT['DIAG'] == 2:
        a("s_branch K_fin")
    a("s_branch K_pre")
    a.lab("K_spare")
    if OPT['DIAG']:
        a("s_branch K_fin")
    a.vm = []
    n2 = a.nst
    a.nst = nst0
    nonce_get(a, 9)
    a("s_waitcnt vmcnt(0)")
    nonce_check(a, 9)
    while STAMPS and a.nst < n2:
        a.stamp()
    a.lab("K_pre")
    a.vm = []
    y_f3_addr(a, 18, 19)
    a("s_nop 0")
    wg_poll(a, 19, 18, "s67", sleep=8)
    y_xr_loads(a)
    while STAMPS and a.nst < nstT:
        a.stamp()
    a.lab("K_y")
    a.nst = nstT
    a(f"s_cmp_ge_u32 s{S_NBK}, 15")
    a("s_cbranch_scc1 K_fin")
    role_y(a)
    a.lab("K_fin")
    stamp_flush(a)
    a.lab("K_end")
    a("s_endpgm")
    a.lab("K_code_end")
    out += a.text()
    out += '.section .rodata,"a"\n'
    out += kd(K, 512, 256)
    return out

if __name__ == "__main__":
    for arg in list(sys.argv):
        if arg.startswith("-O"):
            k, v = arg[2:].split("=")
            OPT[k] = int(v)
            sys.argv.remove(arg)
    if "--plain" in sys.argv:
        LDSC = ""
        sys.argv.remove("--plain")
    if "--stamps" in sys.argv:
        STAMPS = True
        sys.argv.remove("--stamps")
    dst = sys.argv[1] if len(sys.argv) > 1 else "cdna_kernels/" + NAME + ".s"
    open(dst, "w").write(build())
    print("wrote", dst)
```

```python
import sys

NAME = "standalone__weight_only_int_quip__prompt"
M, D, F = 2048, 512, 1376
WQF_OFF, WQF_SZ = 0x000000, 32 * 44 * 1024
XF_OFF, XF_SZ = 0x200000, 128 * 16 * 1024
TF_OFF, TF_SZ = 0x400000, 86 * 16 * 1024
FL_OFF, FL_SZ = 0x600000, 0x4000
F1_B, F2_B, F3_B = 0x0000, 0x1000, 0x2000
STAMPS = False
OPT = dict(NV0=1, NV1=4, WPRE=4, TPRE=4, XPRE=15, SKEW=1, DIAG=0, MAP=0, XMAP=0, CPF=1, OST=0, DBGSPAN=0)
SPIN_MAX = 200000
LDSC = ' sc1'


class A:
    def __init__(s):
        s.l = []
        s.vm = []
        s.nst = 0
        s.uid = 0
    def __call__(s, x):
        s.l.append("  " + x)
    def lab(s, x):
        s.l.append(x + ":")
    def text(s):
        return "\n".join(s.l) + "\n"
    def vmem(s, x, tag):
        s(x); s.vm.append(tag)
    def wait(s, tag, extra=""):
        idx = [i for i, t in enumerate(s.vm) if t == tag]
        if not idx:
            return
        n = len(s.vm) - 1 - idx[-1]
        assert n <= 63, n
        s(f"s_waitcnt vmcnt({n}){extra}")
        s.vm = s.vm[idx[-1] + 1:]
    def waitall(s):
        s("s_waitcnt vmcnt(0)"); s.vm = []
    def new(s, p):
        s.uid += 1
        return f"{p}_{s.uid}"
    def stamp(s):
        if not STAMPS: return
        i = s.nst; s.nst += 1
        assert i < 24, i
        s("s_memrealtime s[100:101]")
        s("s_waitcnt lgkmcnt(0)")
        s(f"s_mov_b32 s{76+i}, s100")

S_X, S_QW, S_SC, S_ZR, S_U, S_V, S_OUT, S_WQF, S_XF, S_TF, S_FL, S_DBG = [8 + 4*i for i in range(12)]
S_W, S_NONCE, S_A, S_B, S_MB8, S_NBK = 56, 57, 58, 59, 60, 61
T0 = 62
def srd(i): return f"s[{i}:{i+3}]"

def prologue(a):
    a("s_load_dwordx16 s[76:91], s[0:1], 0")
    a("s_load_dwordx2 s[92:93], s[0:1], 64")
    a("v_lshrrev_b32 v1, 6, v0")
    a("v_and_b32 v0, 63, v0")
    a(f"v_readfirstlane_b32 s{S_W}, v1")
    a("s_waitcnt lgkmcnt(0)")
    tbl = [(S_X, 76, M*D*2), (S_QW, 78, D*F*4), (S_SC, 80, 4*F*2), (S_ZR, 82, 4*F*2),
           (S_U, 84, D*D*2), (S_V, 86, F*F*2), (S_OUT, 88, M*F*2), (S_DBG, 90, 256)]
    for r, p, sz in tbl:
        a(f"s_mov_b32 s{r}, s{p}")
        a(f"s_and_b32 s{r+1}, s{p+1}, 0xffff")
        a(f"s_mov_b32 s{r+2}, {sz}")
        a(f"s_mov_b32 s{r+3}, 0x20000")
    for r, off, sz in [(S_WQF, WQF_OFF, WQF_SZ), (S_XF, XF_OFF, XF_SZ), (S_TF, TF_OFF, TF_SZ), (S_FL, FL_OFF, FL_SZ)]:
        a(f"s_add_u32 s{r}, s92, {off}")
        a(f"s_addc_u32 s{r+1}, s93, 0")
        a(f"s_and_b32 s{r+1}, s{r+1}, 0xffff")
        a(f"s_mov_b32 s{r+2}, {sz}")
        a(f"s_mov_b32 s{r+3}, 0x20000")

def stamp_flush(a):
    if not STAMPS: return
    a.stamp()
    a("s_waitcnt vmcnt(0)")
    a.stamp()
    n = a.nst
    a("s_memtime s[98:99]")
    a("s_load_dwordx2 s[62:63], s[0:1], 64")
    a("s_waitcnt lgkmcnt(0)")
    a("s_add_u32 s8, s62, 0x800000")
    a("s_addc_u32 s9, s63, 0")
    a("s_and_b32 s9, s9, 0xffff")
    a("s_mov_b32 s10, 0x100000")
    a("s_mov_b32 s11, 0x20000")
    a("s_lshl_b32 s64, s2, 2")
    a(f"s_add_u32 s64, s64, s{S_W}")
    a("s_lshl_b32 s64, s64, 7")
    a("s_mov_b64 exec, 1")
    a("v_mov_b32 v3, 0")
    for i in range(n):
        a(f"v_mov_b32 v4, s{76+i}")
        a(f"buffer_store_dword v4, v3, s[8:11], s64 offen offset:{4*i}")
        a("s_nop 1")
    a("s_sub_u32 s98, s98, s96")
    a("v_mov_b32 v4, s98")
    a("buffer_store_dword v4, v3, s[8:11], s64 offen offset:120")

def nonce_get_all(a, vreg):
    a.vmem(f"buffer_load_dword v{vreg}, off, {srd(S_DBG)}, 0 sc1", "N")

def nonce_check_all(a, vreg):
    L, Dn = a.new("NC"), a.new("ND")
    a(f"v_readfirstlane_b32 s{S_NONCE}, v{vreg}")
    a(f"s_mov_b32 s{T0}, {SPIN_MAX}")
    a.lab(L)
    a(f"s_cmp_lg_u32 s{S_NONCE}, 0")
    a(f"s_cbranch_scc1 {Dn}")
    a(f"s_sub_u32 s{T0}, s{T0}, 1")
    a(f"s_cbranch_scc1 {Dn}")
    a("s_sleep 2")
    a(f"buffer_load_dword v{vreg}, off, {srd(S_DBG)}, 0 sc1")
    a("s_waitcnt vmcnt(0)")
    a(f"v_readfirstlane_b32 s{S_NONCE}, v{vreg}")
    a(f"s_branch {L}")
    a.lab(Dn)

def nonce_get(a, vreg, after_issue=None):
    sk = a.new("NG")
    a(f"s_cmp_eq_u32 s{S_W}, 0")
    a(f"s_cbranch_scc0 {sk}")
    a(f"buffer_load_dword v{vreg}, off, {srd(S_DBG)}, 0 sc1")
    a.lab(sk)

def nonce_check(a, vreg):
    L, Dn = a.new("NC"), a.new("ND")
    a(f"s_cmp_eq_u32 s{S_W}, 0")
    a(f"s_cbranch_scc0 {Dn}")
    a(f"v_readfirstlane_b32 s{S_NONCE}, v{vreg}")
    a(f"s_mov_b32 s{T0}, {SPIN_MAX}")
    a.lab(L)
    a(f"s_cmp_lg_u32 s{S_NONCE}, 0")
    a(f"s_cbranch_scc1 {Dn}")
    a(f"s_sub_u32 s{T0}, s{T0}, 1")
    a(f"s_cbranch_scc1 {Dn}")
    a("s_sleep 2")
    a(f"buffer_load_dword v{vreg}, off, {srd(S_DBG)}, 0 sc1")
    a("s_waitcnt vmcnt(0)")
    a(f"v_readfirstlane_b32 s{S_NONCE}, v{vreg}")
    a(f"s_branch {L}")
    a.lab(Dn)

def poll_issue(a, vreg, voff, soff, tag):
    a.vmem(f"buffer_load_dword v{vreg}, v{voff}, {srd(S_FL)}, {soff} offen sc1", tag)

def poll_check(a, regs, voffs, soff):
    L, Dn = a.new("PL"), a.new("PD")
    a(f"s_mov_b32 s{T0}, {SPIN_MAX}")
    a.lab(L)
    a(f"v_cmp_ne_u32 s[{T0+2}:{T0+3}], s{S_NONCE}, v{regs[0]}")
    for r in regs[1:]:
        a(f"v_cmp_ne_u32 s[{T0+4}:{T0+5}], s{S_NONCE}, v{r}")
        a(f"s_or_b64 s[{T0+2}:{T0+3}], s[{T0+2}:{T0+3}], s[{T0+4}:{T0+5}]")
    a(f"s_cmp_eq_u64 s[{T0+2}:{T0+3}], 0")
    a(f"s_cbranch_scc1 {Dn}")
    a(f"s_sub_u32 s{T0}, s{T0}, 1")
    a(f"s_cbranch_scc1 {Dn}")
    a("s_sleep 4")
    for r, vo in zip(regs, voffs):
        a(f"buffer_load_dword v{r}, v{vo}, {srd(S_FL)}, {soff} offen sc1")
    a("s_waitcnt vmcnt(0)")
    a(f"s_branch {L}")
    a.lab(Dn)

def wg_flag(a, soff, vtmp):
    sk = a.new("WF")
    a("s_barrier")
    a(f"s_cmp_eq_u32 s{S_W}, 0")
    a(f"s_cbranch_scc0 {sk}")
    a(f"v_mov_b32 v{vtmp}, s{S_NONCE}")
    a("s_mov_b64 exec, 1")
    a(f"buffer_store_dword v{vtmp}, off, {srd(S_FL)}, {soff} sc1")
    a("s_mov_b64 exec, -1")
    a.lab(sk)

def wg_poll(a, reg, voff, soff, sleep=4, reg2=None, voff2=None):
    L, Dn, sk = a.new("PL"), a.new("PD"), a.new("PS")
    a(f"s_cmp_eq_u32 s{S_W}, 0")
    a(f"s_cbranch_scc0 {sk}")
    a(f"s_mov_b32 s{T0}, {SPIN_MAX}")
    a.lab(L)
    a(f"buffer_load_dword v{reg}, v{voff}, {srd(S_FL)}, {soff} offen sc1")
    if reg2 is not None:
        a(f"buffer_load_dword v{reg2}, v{voff2}, {srd(S_FL)}, {soff} offen sc1")
    a("s_waitcnt vmcnt(0)")
    a(f"v_cmp_ne_u32 s[{T0+2}:{T0+3}], s{S_NONCE}, v{reg}")
    if reg2 is not None:
        a(f"v_cmp_ne_u32 s[{T0+4}:{T0+5}], s{S_NONCE}, v{reg2}")
        a(f"s_or_b64 s[{T0+2}:{T0+3}], s[{T0+2}:{T0+3}], s[{T0+4}:{T0+5}]")
    a(f"s_cmp_eq_u64 s[{T0+2}:{T0+3}], 0")
    a(f"s_cbranch_scc1 {Dn}")
    a(f"s_sub_u32 s{T0}, s{T0}, 1")
    a(f"s_cbranch_scc1 {Dn}")
    a(f"s_sleep {sleep}")
    a(f"s_branch {L}")
    a.lab(Dn)
    a.lab(sk)
    a("s_barrier")

def flag_store(a, soff, vtmp, vzero):
    a(f"v_mov_b32 v{vtmp}, s{S_NONCE}")
    a("s_mov_b64 exec, 1")
    a.vmem(f"buffer_store_dword v{vtmp}, off, {srd(S_FL)}, {soff} sc1", "F")
    a("s_mov_b64 exec, -1")

def prep_issue(a, s_db, s_kb, V):
    t = T0
    a(f"v_lshrrev_b32 v{V+1}, 3, v0")
    a(f"v_and_b32 v{V+2}, 7, v0")
    a(f"v_mul_u32_u24 v{V+3}, 5504, v{V+1}")
    a(f"v_lshl_add_u32 v{V+3}, v{V+2}, 4, v{V+3}")
    a(f"v_lshlrev_b32 v{V+4}, 3, v{V+2}")
    a(f"s_cmp_eq_u32 s{s_kb}, 21")
    a(f"s_cselect_b32 s{t}, 0x40000000, 128")
    a(f"s_cselect_b32 s{t+1}, 0x40000000, 64")
    a(f"v_add_u32 v{V+5}, s{t}, v{V+3}")
    a(f"v_add_u32 v{V+6}, s{t+1}, v{V+4}")
    a(f"s_mul_i32 s{t+2}, s{s_db}, 88064")
    a(f"s_lshl_b32 s{t+3}, s{s_kb}, 8")
    a(f"s_add_u32 s{t+2}, s{t+2}, s{t+3}")
    a(f"s_add_u32 s{t+3}, s{t+2}, 44032")
    a(f"s_lshr_b32 s{t+4}, s{s_db}, 3")
    a(f"s_mul_i32 s{t+4}, s{t+4}, 2752")
    a(f"s_lshl_b32 s{t+5}, s{s_kb}, 7")
    a(f"s_add_u32 s{t+4}, s{t+4}, s{t+5}")
    a.vmem(f"buffer_load_dwordx4 v[{V+8}:{V+11}], v{V+3}, {srd(S_QW)}, s{t+2} offen", "P")
    a.vmem(f"buffer_load_dwordx4 v[{V+12}:{V+15}], v{V+5}, {srd(S_QW)}, s{t+2} offen", "P")
    a.vmem(f"buffer_load_dwordx4 v[{V+16}:{V+19}], v{V+3}, {srd(S_QW)}, s{t+3} offen", "P")
    a.vmem(f"buffer_load_dwordx4 v[{V+20}:{V+23}], v{V+5}, {srd(S_QW)}, s{t+3} offen", "P")
    a.vmem(f"buffer_load_dwordx2 v[{V+24}:{V+25}], v{V+4}, {srd(S_SC)}, s{t+4} offen", "P")
    a.vmem(f"buffer_load_dwordx2 v[{V+26}:{V+27}], v{V+6}, {srd(S_SC)}, s{t+4} offen", "P")
    a.vmem(f"buffer_load_dwordx2 v[{V+28}:{V+29}], v{V+4}, {srd(S_ZR)}, s{t+4} offen", "P")
    a.vmem(f"buffer_load_dwordx2 v[{V+30}:{V+31}], v{V+6}, {srd(S_ZR)}, s{t+4} offen", "P")
    a(f"v_lshrrev_b32 v{V+7}, 2, v{V+2}")
    a(f"v_lshlrev_b32 v{V+7}, 10, v{V+7}")
    a(f"v_and_b32 v{V+32}, 3, v{V+2}")
    a(f"v_lshl_add_u32 v{V+7}, v{V+32}, 8, v{V+7}")
    a(f"v_lshl_add_u32 v{V+7}, v{V+1}, 4, v{V+7}")

def prep_finish(a, s_db, s_kb, V):
    t = T0
    a(f"s_mul_i32 s{t}, s{s_db}, 44")
    a(f"s_lshl_b32 s{t+1}, s{s_kb}, 1")
    a(f"s_add_u32 s{t}, s{t}, s{t+1}")
    a(f"s_lshl_b32 s{t}, s{t}, 10")
    a(f"s_mov_b32 s{t+1}, 0xffff0000")
    for i in range(4):
        a(f"v_lshlrev_b32 v{V+32+2*i}, 16, v{V+24+i}")
        a(f"v_and_b32 v{V+33+2*i}, s{t+1}, v{V+24+i}")
        a(f"v_lshlrev_b32 v{V+40+2*i}, 16, v{V+28+i}")
        a(f"v_and_b32 v{V+41+2*i}, s{t+1}, v{V+28+i}")
    for rh in range(2):
        q = V + 8 + 8 * rh
        for i in range(8):
            a(f"v_cvt_f32_i32 v{q+i}, v{q+i}")
        for i in range(8):
            a(f"v_sub_f32 v{q+i}, v{q+i}, v{V+40+i}")
        for i in range(4):
            a(f"v_cvt_pk_bf16_f32 v{V+48+i}, v{q+2*i}, v{q+2*i+1}")
        for i in range(4):
            a(f"v_lshlrev_b32 v{q+2*i}, 16, v{V+48+i}")
            a(f"v_and_b32 v{q+2*i+1}, s{t+1}, v{V+48+i}")
        for i in range(8):
            a(f"v_mul_f32 v{q+i}, v{q+i}, v{V+32+i}")
        o = V + 52 + 4 * rh
        for i in range(4):
            a(f"v_cvt_pk_bf16_f32 v{o+i}, v{q+2*i}, v{q+2*i+1}")
        a.vmem(f"buffer_store_dwordx4 v[{o}:{o+3}], v{V+7}, {srd(S_WQF)}, s{t} offen offset:{128*rh} sc1", "S")

def interleave(main, side):
    out = []
    n, m = len(main), len(side)
    k = 0
    for i, x in enumerate(main):
        out.append(x)
        while k < m and (k + 1) * n <= (i + 1) * m + (n - 1) * 0:
            out.append(side[k]); k += 1
    out.extend(side[k:])
    return out

def role_xr(a, s_eb, s_mb8, s_rot):
    s_w = S_W
    SWE, SWM, UB, XB, LB, TT = 64, 65, 66, 67, 68, 69
    a(f"s_and_b32 s{SWE}, s{s_w}, 1")
    a(f"s_lshr_b32 s{SWM}, s{s_w}, 1")
    a("v_lshrrev_b32 v1, 4, v0")
    a("v_and_b32 v2, 15, v0")
    a("v_lshlrev_b32 v3, 1, v1")
    a("v_xor_b32 v4, v2, v3")
    a("v_xor_b32 v5, 8, v4")
    a("v_lshlrev_b32 v6, 10, v1")
    a("v_lshl_add_u32 v10, v4, 4, v6")
    a("v_lshl_add_u32 v11, v5, 4, v6")
    a("v_lshrrev_b32 v1, 3, v0")
    a("v_and_b32 v2, 7, v0")
    a("v_lshrrev_b32 v3, 1, v1")
    a("v_xor_b32 v4, v2, v3")
    a("v_xor_b32 v5, 4, v4")
    a("v_lshlrev_b32 v6, 10, v1")
    a("v_lshl_add_u32 v12, v4, 4, v6")
    a("v_lshl_add_u32 v13, v5, 4, v6")
    a(f"s_lshl_b32 s{UB}, s{s_w}, 14")
    a(f"s_lshl_b32 s{TT}, s{s_eb}, 8")
    a(f"s_add_u32 s{UB}, s{UB}, s{TT}")
    a(f"s_lshl_b32 s{XB}, s{s_mb8}, 17")
    a(f"s_lshl_b32 s{TT}, s{s_w}, 15")
    a(f"s_add_u32 s{XB}, s{XB}, s{TT}")
    a(f"s_lshl_b32 s{LB}, s{s_w}, 12")
    NSL = 4
    def dma_items(st):
        slot = st % NSL
        items = []
        def setup():
            a(f"s_add_u32 s70, s{s_rot}, {st}")
            a("s_and_b32 s70, s70, 7")
            a("s_lshl_b32 s71, s70, 16")
            a(f"s_add_u32 s71, s71, s{UB}")
            a("s_lshl_b32 s72, s70, 7")
            a(f"s_add_u32 s72, s72, s{XB}")
        for aa in range(4):
            def f(aa=aa):
                if aa == 0: setup()
                a(f"s_add_u32 m0, s{LB}, {slot*32768 + aa*1024}")
                a(f"s_add_u32 s{TT}, s71, {aa*4096}")
                a.vmem(f"buffer_load_dwordx4 v{10 + (aa>>1)}, {srd(S_U)}, s{TT} offen lds", f"X{st}")
            items.append(f)
        for bb in range(4):
            def f(bb=bb):
                a(f"s_add_u32 m0, s{LB}, {slot*32768 + 16384 + bb*1024}")
                a(f"s_add_u32 s{TT}, s72, {bb*8192}")
                a.vmem(f"buffer_load_dwordx4 v{12 + (bb&1)}, {srd(S_X)}, s{TT} offen lds", f"X{st}")
            items.append(f)
        return items
    XPRE = OPT['XPRE']
    if XPRE == 15:
        for f in dma_items(0): f()
        d1 = dma_items(1)
        for f in d1[:4]: f()
    else:
        for st in range(XPRE):
            for f in dma_items(st): f()
    a.stamp()
    a("v_lshrrev_b32 v1, 4, v0")
    a("v_bfe_u32 v2, v0, 2, 2")
    a("v_and_b32 v3, 3, v0")
    a("v_lshl_add_u32 v4, v1, 3, v2")
    a("v_lshlrev_b32 v4, 8, v4")
    a("v_and_b32 v5, 1, v1")
    a("v_lshlrev_b32 v5, 3, v5")
    a("v_lshl_add_u32 v5, v2, 1, v5")
    a("v_lshrrev_b32 v6, 1, v3")
    a(f"s_lshl_b32 s{TT}, s{SWE}, 3")
    a(f"v_or_b32 v6, s{TT}, v6")
    a("v_xor_b32 v5, v5, v6")
    a("v_lshl_add_u32 v4, v5, 4, v4")
    a("v_and_b32 v6, 1, v3")
    a("v_lshl_add_u32 v4, v6, 3, v4")
    for i in range(4):
        a(f"v_xor_b32 v{16+i}, {i<<5}, v4")
        a(f"v_add_u32 v{20+i}, 0x10000, v{16+i}")
    a("v_and_b32 v2, 15, v0")
    a("v_lshrrev_b32 v3, 1, v2")
    a("v_xor_b32 v3, v3, v1")
    a("v_lshlrev_b32 v4, 7, v2")
    a("v_lshl_add_u32 v4, v3, 4, v4")
    a(f"s_lshl_b32 s{TT}, s{SWM}, 13")
    a(f"s_add_u32 s{TT}, s{TT}, 16384")
    a(f"v_add_u32 v24, s{TT}, v4")
    a("v_xor_b32 v25, 64, v24")
    a("v_add_u32 v26, 0x10000, v24")
    a("v_add_u32 v27, 0x10000, v25")
    ACC = 64
    for r in range(64):
        a(f"v_mov_b32 v{ACC+r}, 0")
    def read_items(hh):
        st, h2, buf = hh >> 1, hh & 1, hh & 1
        slot = st % NSL
        hi = slot >> 1
        so = (slot & 1) * 32768
        FA = 128 + 32 * buf
        FB = 144 + 32 * buf
        items = []
        for j in range(4):
            items.append(lambda j=j: a(f"ds_read_b128 v[{FB+4*j}:{FB+4*j+3}], v{24+2*hi+h2} offset:{so + j*2048}"))
        for i in range(4):
            for q in range(2):
                items.append(lambda i=i, q=q: a(f"ds_read_b64_tr_b16 v[{FA+4*i+2*q}:{FA+4*i+2*q+1}], v{16+4*hi+i} offset:{so + h2*8192 + q*1024}"))
        return items
    def mfma_items(buf):
        FA = 128 + 32 * buf
        FB = 144 + 32 * buf
        items = []
        for i in range(4):
            for j in range(4):
                c = ACC + 16*i + 4*j
                items.append(lambda c=c, i=i, j=j: a(f"v_mfma_f32_16x16x32_bf16 v[{c}:{c+3}], v[{FA+4*i}:{FA+4*i+3}], v[{FB+4*j}:{FB+4*j+3}], v[{c}:{c+3}]"))
        return items
    a.wait("X0")
    a("s_barrier")
    a.stamp()
    for f in read_items(0): f()
    for hh in range(16):
        st = hh >> 1
        a("s_waitcnt lgkmcnt(0)")
        if (hh & 1) and st + 1 < 8:
            a.wait(f"X{st+1}")
            a("s_barrier")
        side = []
        if hh + 1 < 16:
            side += read_items(hh + 1)
        dm = []
        if XPRE == 15 and hh < 2:
            if hh == 0:
                dm = d1[4:] + dma_items(2)
            else:
                dm = dma_items(3)[:4]
        elif XPRE == 3 or XPRE == 15:
            if hh & 1:
                S = st + 3
                if S < 8: dm = dma_items(S)[:4]
            else:
                S = st + 2
                if st >= 1 and S < 8: dm = dma_items(S)[4:]
        else:
            S = st + 2
            if S < 8:
                dm = dma_items(S)[:4] if (hh & 1) == 0 else dma_items(S)[4:]
        if hh == 9:
            dm = dm + [lambda: nonce_get(a, 28)]
        m = mfma_items(hh & 1)
        seq = interleave(m, side)
        seq = interleave(seq, dm)
        for f in seq: f()
    a("s_nop 7")
    a("s_nop 1")
    a.stamp()
    a("v_lshlrev_b32 v1, 4, v0")
    a(f"s_lshl_b32 s70, s{s_mb8}, 7")
    a(f"s_lshl_b32 s71, s{SWM}, 6")
    a("s_add_u32 s70, s70, s71")
    a(f"s_lshl_b32 s71, s{s_eb}, 2")
    a("s_add_u32 s70, s70, s71")
    a(f"s_lshl_b32 s71, s{SWE}, 1")
    a("s_add_u32 s70, s70, s71")
    a("s_lshl_b32 s70, s70, 10")
    for j in range(4):
        a(f"s_add_u32 s71, s70, {j*16*1024}")
        for sh in range(2):
            t0 = ACC + 16*(2*sh) + 4*j
            t1 = ACC + 16*(2*sh+1) + 4*j
            o = 128 + 4*(2*j+sh)
            a(f"v_cvt_pk_bf16_f32 v{o}, v{t0}, v{t0+1}")
            a(f"v_cvt_pk_bf16_f32 v{o+1}, v{t0+2}, v{t0+3}")
            a(f"v_cvt_pk_bf16_f32 v{o+2}, v{t1}, v{t1+1}")
            a(f"v_cvt_pk_bf16_f32 v{o+3}, v{t1+2}, v{t1+3}")
            a.vmem(f"buffer_store_dwordx4 v[{o}:{o+3}], v1, {srd(S_XF)}, s71 offen offset:{sh*1024} sc1", "S")
    a.wait("S")
    nonce_check(a, 28)
    a(f"s_lshl_b32 s70, s{s_mb8}, 7")
    a(f"s_lshl_b32 s71, s{s_eb}, 2")
    a("s_add_u32 s70, s70, s71")
    a(f"s_add_u32 s70, s70, {F3_B}")
    wg_flag(a, "s70", 2)
    a.stamp()

def role_T(a, s_rb, s_cb, s_rot):
    s_w = S_W
    NSL = 10
    DBS, DBS2 = 68, 95
    TB, CBO, LB, WBASE = 69, 70, 71, 72
    a("v_lshrrev_b32 v1, 3, v0")
    a("v_and_b32 v2, 7, v0")
    a("v_bfe_u32 v3, v1, 1, 1")
    a("v_lshlrev_b32 v3, 2, v3")
    a("v_xor_b32 v2, v2, v3")
    a("v_mul_u32_u24 v10, 2752, v1")
    a("v_lshl_add_u32 v10, v2, 4, v10")
    a(f"s_mul_i32 s73, s{s_w}, 11")
    a(f"s_add_u32 s{TB}, s{s_rot}, s73")
    a(f"s_lshl_b32 s{CBO}, s{s_cb}, 7")
    a(f"s_mul_i32 s{LB}, s{s_w}, {NSL*4096}")
    def step_t(i, dst):
        a(f"s_add_u32 s{dst}, s{TB}, {i}")
        a(f"s_cmp_ge_u32 s{dst}, 44")
        a(f"s_cselect_b32 s75, 44, 0")
        a(f"s_sub_u32 s{dst}, s{dst}, s75")
    def issueV(i):
        slot = i % NSL
        step_t(i, 73)
        a("s_lshr_b32 s74, s73, 1")
        a("s_lshl_b32 s74, s74, 6")
        a("s_and_b32 s73, s73, 1")
        a("s_lshl_b32 s73, s73, 4")
        a("s_add_u32 s73, s73, s74")
        a("s_mul_i32 s73, s73, 2752")
        a(f"s_add_u32 s73, s73, s{CBO}")
        for p, ro in enumerate((0, 8, 32, 40)):
            a(f"s_add_u32 m0, s{LB}, {slot*4096 + p*1024}")
            a(f"s_add_u32 s74, s73, {ro*2752}")
            a.vmem(f"buffer_load_dwordx4 v10, {srd(S_V)}, s74 offen lds", f"V{i}")
    def addr_setup():
        a("v_lshrrev_b32 v1, 4, v0")
        a("v_bfe_u32 v2, v0, 2, 2")
        a("v_and_b32 v3, 3, v0")
        a("v_lshl_add_u32 v4, v1, 2, v2")
        a("v_lshlrev_b32 v4, 7, v4")
        a("v_lshl_add_u32 v4, v3, 4, v4")
        a("v_lshrrev_b32 v5, 1, v2")
        a("v_lshl_add_u32 v4, v5, 6, v4")
        a(f"v_add_u32 v11, s{LB}, v4")
        a("v_xor_b32 v12, 64, v11")
        a("v_lshlrev_b32 v13, 4, v0")
        a("v_lshlrev_b32 v14, 2, v0")
        a("v_add_u32 v15, 64, v0")
        a("v_min_u32 v15, 87, v15")
        a("v_lshlrev_b32 v15, 2, v15")
    NV0, NV1 = OPT['NV0'], OPT['NV1']
    a(f"s_lshl_b32 s{DBS}, s{s_rb}, 2")
    a(f"s_add_u32 s{DBS}, s{DBS}, s{s_w}")
    PVA = 160
    prep_issue(a, DBS, s_cb, PVA)
    for i in range(NV0):
        issueV(i)
    a.stamp()
    addr_setup()
    a.wait("P")
    a.stamp()
    nonce_get_all(a, 9)
    prep_finish(a, DBS, s_cb, PVA)
    for i in range(NV0, NV1):
        issueV(i)
    a.wait("S")
    a.stamp()
    nonce_check_all(a, 9)
    a(f"s_lshl_b32 s73, s{s_rb}, 9")
    a(f"s_lshl_b32 s74, s{s_cb}, 4")
    a("s_add_u32 s73, s73, s74")
    a(f"s_lshl_b32 s74, s{s_w}, 2")
    a("s_add_u32 s73, s73, s74")
    a(f"s_add_u32 s73, s73, {F1_B}")
    flag_store(a, "s73", 2, None)
    for i in range(NV1, NSL):
        issueV(i)
    def trreads(i):
        slot = i % NSL
        for j in range(4):
            pp, ab = j >> 1, j & 1
            for q in range(2):
                r = 16*i + 4*j + 2*q
                a(f"ds_read_b64_tr_b16 a[{r}:{r+1}], v{11+pp} offset:{slot*4096 + q*2048 + ab*8}")
    a.wait("V0")
    trreads(0)
    a("s_waitcnt lgkmcnt(0)")
    issueV(10)
    ACC = 176
    for i in range(1, NSL):
        a.wait(f"V{i}")
        trreads(i)
        if i <= 4:
            for r in range(16*(i-1), 16*i):
                a(f"v_accvgpr_write_b32 a{ACC+r}, 0")
    a(f"s_lshl_b32 s68, s{s_rb}, 9")
    a(f"s_add_u32 s68, s68, {F1_B}")
    a.wait("V10")
    trreads(10)
    a("s_waitcnt lgkmcnt(0)")
    a.stamp()
    wg_poll(a, 16, 14, "s68", sleep=2, reg2=17, voff2=15)
    a.stamp()
    a(f"s_mul_i32 s{WBASE}, s{s_rb}, {4*44}")
    WB = 64
    def w_items(i):
        items = []
        for d in range(4):
            def f(d=d):
                if d == 0:
                    step_t(i, 73)
                    a(f"s_add_u32 s73, s73, s{WBASE}")
                    a("s_lshl_b32 s73, s73, 10")
                    a("s_mov_b32 s74, s73")
                else:
                    a(f"s_add_u32 s74, s73, {d*44*1024}")
                r = WB + 16*i + 4*d
                a.vmem(f"buffer_load_dwordx4 v[{r}:{r+3}], v13, {srd(S_WQF)}, s74 offen{LDSC}", f"W{i}")
            items.append(f)
        return items
    PRE = OPT['WPRE']
    for i in range(PRE):
        for f in w_items(i): f()
    y_f3_addr(a, 18, 19)
    for i in range(11):
        a.wait(f"W{i}")
        m = []
        for d in range(4):
            for j in range(4):
                c = ACC + 16*d + 4*j
                ra = WB + 16*i + 4*d
                rb_ = 16*i + 4*j
                m.append(lambda c=c, ra=ra, rb_=rb_: a(f"v_mfma_f32_16x16x32_bf16 a[{c}:{c+3}], v[{ra}:{ra+3}], a[{rb_}:{rb_+3}], a[{c}:{c+3}]"))
        side = w_items(i + PRE) if i + PRE < 11 else []
        if i == 8:
            side = side + [lambda: poll_issue(a, 19, 18, "s67", "Q3")]
        for f in interleave(m, side): f()
    a("s_nop 7")
    a.stamp()
    a("v_lshlrev_b32 v14, 4, v0")
    for w in range(4):
        sk = a.new("TR")
        a(f"s_cmp_eq_u32 s{s_w}, {w}")
        a(f"s_cbranch_scc0 {sk}")
        for o in range(4):
            if o == w: continue
            rank = (w - o - 1) % 4
            sh, jh = o >> 1, o & 1
            tl = 0
            for d in (2*sh, 2*sh+1):
                for j in (2*jh, 2*jh+1):
                    c = ACC + 16*d + 4*j
                    a(f"ds_write_b128 v14, a[{c}:{c+3}] offset:{o*12288 + (rank*4+tl)*1024}")
                    tl += 1
        sh, jh = w >> 1, w & 1
        tl = 0
        for d in (2*sh, 2*sh+1):
            for j in (2*jh, 2*jh+1):
                c = ACC + 16*d + 4*j
                for r in range(4):
                    a(f"v_accvgpr_read_b32 v{20+4*tl+r}, a{c+r}")
                tl += 1
        a.lab(sk)
    a("s_waitcnt lgkmcnt(0)")
    a("s_barrier")
    a(f"s_mul_i32 s73, s{s_w}, 12288")
    a("v_add_u32 v15, s73, v14")
    for k in range(12):
        a(f"ds_read_b128 v[{36+4*k}:{36+4*k+3}], v15 offset:{k*1024}")
    a(f"s_lshr_b32 s62, s{s_w}, 1")
    a(f"s_and_b32 s63, s{s_w}, 1")
    a(f"s_lshl_b32 s64, s{s_cb}, 1")
    a("s_add_u32 s64, s64, s63")
    a(f"s_lshl_b32 s65, s{s_rb}, 1")
    a("s_add_u32 s65, s65, s62")
    a("s_lshl_b32 s70, s64, 5")
    a("s_add_u32 s70, s70, s65")
    a("s_lshl_b32 s70, s70, 10")
    a("s_add_u32 s71, s70, 16384")
    a(f"s_lshl_b32 s64, s{s_cb}, 7")
    a(f"s_lshl_b32 s65, s{s_rb}, 2")
    a("s_add_u32 s64, s64, s65")
    a(f"s_add_u32 s72, s64, {F2_B}")
    for rank in range(3):
        a(f"s_waitcnt lgkmcnt({8-4*rank})")
        for r in range(16):
            a(f"v_add_f32 v{20+r}, v{20+r}, v{36+16*rank+r}")
    for jj in range(2):
        t0, t1, o = 20 + 4*jj, 20 + 4*(2+jj), 88 + 4*jj
        a(f"v_cvt_pk_bf16_f32 v{o}, v{t0}, v{t0+1}")
        a(f"v_cvt_pk_bf16_f32 v{o+1}, v{t0+2}, v{t0+3}")
        a(f"v_cvt_pk_bf16_f32 v{o+2}, v{t1}, v{t1+1}")
        a(f"v_cvt_pk_bf16_f32 v{o+3}, v{t1+2}, v{t1+3}")
        a.vmem(f"buffer_store_dwordx4 v[{o}:{o+3}], v14, {srd(S_TF)}, s{70+jj} offen sc1", "S2")
    a.stamp()
    poll_check(a, [19], [18], "s67")
    y_xr_loads(a, 0, 8)
    a.wait("S2")
    wg_flag(a, "s72", 2)
    y_xr_loads(a, 8, 16)
    a.stamp()

def y_f3_addr(a, vo, vt):
    a(f"v_and_b32 v{vo}, 3, v0")
    a(f"v_lshlrev_b32 v{vo}, 2, v{vo}")
    a(f"s_lshl_b32 s67, s{S_MB8}, 7")
    a(f"s_add_u32 s67, s67, {F3_B}")

def y_rot(a):
    a(f"s_and_b32 s74, s{S_MB8}, 3")
    a("s_lshl_b32 s74, s74, 2")
    a(f"s_and_b32 s75, s{S_NBK}, 7")
    a("s_lshl_b32 s75, s75, 1")
    a("s_add_u32 s74, s74, s75")

def y_xr_loads(a, q0=0, q1=16):
    sk = a.new("YX")
    a(f"s_cmp_ge_u32 s{S_NBK}, 15")
    a(f"s_cbranch_scc1 {sk}")
    y_rot(a)
    a("v_lshlrev_b32 v10, 4, v0")
    a(f"s_lshl_b32 s69, s{S_MB8}, 17")
    a(f"s_lshl_b32 s75, s{S_W}, 15")
    a("s_add_u32 s69, s69, s75")
    for q in range(q0, q1):
        a(f"s_add_u32 s75, s74, {q}")
        a("s_and_b32 s75, s75, 15")
        a("s_lshl_b32 s75, s75, 10")
        a("s_add_u32 s75, s75, s69")
        for i in range(2):
            reg = 8*q + 4*i
            a.vmem(f"buffer_load_dwordx4 a[{reg}:{reg+3}], v10, {srd(S_XF)}, s75 offen{LDSC}", "XR")
            if i == 0:
                a("s_add_u32 s75, s75, 16384")
    a.lab(sk)

def role_y(a):
    s_w, s_mb8, s_nbk = S_W, S_MB8, S_NBK
    a.vm = []
    y_rot(a)
    a("v_lshlrev_b32 v10, 4, v0")
    a("v_add_u32 v11, 0x10000, v10")
    a("v_and_b32 v12, 7, v0")
    a("v_lshlrev_b32 v12, 2, v12")
    a("v_bfe_u32 v13, v0, 3, 1")
    a(f"s_cmp_eq_u32 s{s_nbk}, 14")
    a("s_cselect_b32 s63, 0, 128")
    a("v_mul_u32_u24 v13, s63, v13")
    a("v_add_u32 v12, v12, v13")
    a(f"s_mul_i32 s68, s{s_nbk}, 3")
    a("s_lshr_b32 s68, s68, 1")
    a("s_lshl_b32 s68, s68, 7")
    a(f"s_add_u32 s68, s68, {F2_B}")
    ACC = 16
    for r in range(48):
        a(f"v_mov_b32 v{ACC+r}, 0")
    wg_poll(a, 14, 12, "s68", sleep=2)
    a.stamp()
    a(f"s_mul_i32 s69, s{s_nbk}, {6*16*1024}")
    a(f"s_and_b32 s71, s{s_w}, 1")
    a("s_mul_i32 s71, s71, 49152")
    a("s_add_u32 s69, s69, s71")
    a(f"s_lshr_b32 s73, s{s_w}, 1")
    a("s_add_u32 s73, s73, s74")
    a(f"s_mul_i32 s72, s{s_w}, 3072")
    NG = 8
    def t_items(g):
        items = []
        for k in range(3):
            def f(k=k):
                if k == 0:
                    a(f"s_add_u32 s70, s73, {2*g}")
                    a("s_and_b32 s70, s70, 15")
                    a("s_lshl_b32 s70, s70, 10")
                    a("s_add_u32 s70, s70, s69")
                a(f"s_add_u32 m0, s72, {(12*g + k)*1024}")
                a(f"s_add_u32 s71, s70, {k*16384}")
                a.vmem(f"buffer_load_dwordx4 v10, {srd(S_TF)}, s71 offen{LDSC} lds", f"T{g}")
            items.append(f)
        return items
    PRE = OPT['TPRE']
    for g in range(PRE):
        for f in t_items(g): f()
    FA = 64
    def read_items(g):
        items = []
        for qq in range(2):
            q = 2*g + qq
            for j in range(6):
                r = FA + 48*(g & 1) + 24*qq + 4*j
                idx = q*6 + j
                if idx < 64:
                    items.append(lambda r=r, idx=idx: a(f"ds_read_b128 v[{r}:{r+3}], v10 offset:{idx*1024}"))
                else:
                    items.append(lambda r=r, idx=idx: a(f"ds_read_b128 v[{r}:{r+3}], v11 offset:{(idx-64)*1024}"))
        return items
    def mfma_items(g):
        items = []
        for qq in range(2):
            q = 2*g + qq
            for j in range(6):
                for i in range(2):
                    c = ACC + 8*j + 4*i
                    ra = FA + 48*(g & 1) + 24*qq + 4*j
                    rb_ = 8*q + 4*i
                    items.append(lambda c=c, ra=ra, rb_=rb_: a(f"v_mfma_f32_16x16x32_bf16 v[{c}:{c+3}], v[{ra}:{ra+3}], a[{rb_}:{rb_+3}], v[{c}:{c+3}]"))
        return items
    a.wait("T0")
    a("s_barrier")
    a.stamp()
    for f in read_items(0): f()
    for g in range(NG):
        if g + 1 < NG:
            a.wait(f"T{g+1}")
            a("s_waitcnt lgkmcnt(0)")
            a("s_barrier")
        else:
            a("s_waitcnt lgkmcnt(0)")
        side = read_items(g + 1) if g + 1 < NG else []
        dm = t_items(g + PRE) if g + PRE < NG else []
        seq = interleave(mfma_items(g), side)
        seq = interleave(seq, dm)
        for f in seq: f()
    a("s_nop 7")
    a("s_nop 1")
    a.stamp()
    a("v_and_b32 v1, 15, v0")
    a("v_lshrrev_b32 v2, 4, v0")
    a("v_mul_u32_u24 v3, 2752, v1")
    a("v_lshl_add_u32 v3, v2, 4, v3")
    a(f"s_lshl_b32 s70, s{s_mb8}, 7")
    a(f"s_lshl_b32 s71, s{s_w}, 5")
    a("s_add_u32 s70, s70, s71")
    a("s_mul_i32 s70, s70, 2752")
    a(f"s_mul_i32 s71, s{s_nbk}, 192")
    a("s_add_u32 s70, s70, s71")
    a(f"s_add_u32 s71, s70, {16*2752}")
    for p in range(3):
        if p == 1:
            a(f"s_cmp_eq_u32 s{s_nbk}, 14")
            a("s_cbranch_scc1 Y_done")
        for i in range(2):
            t0 = ACC + 8*(2*p) + 4*i
            t1 = ACC + 8*(2*p+1) + 4*i
            o = 160 + 4*(2*p+i)
            a(f"v_cvt_pk_bf16_f32 v{o}, v{t0}, v{t0+1}")
            a(f"v_cvt_pk_bf16_f32 v{o+1}, v{t0+2}, v{t0+3}")
            a(f"v_cvt_pk_bf16_f32 v{o+2}, v{t1}, v{t1+1}")
            a(f"v_cvt_pk_bf16_f32 v{o+3}, v{t1+2}, v{t1+3}")
            a(f"buffer_store_dwordx4 v[{o}:{o+3}], v3, {srd(S_OUT)}, s{70+i} offen offset:{64*p}{['', ' sc1', ' nt', ' sc0 sc1'][OPT['OST']]}")
    a.lab("Y_done")

def kd(name, vgpr, accum, sgpr=102):
    return f""".p2align 6
.amdhsa_kernel {name}
  .amdhsa_next_free_vgpr {vgpr}
  .amdhsa_next_free_sgpr {sgpr}
  .amdhsa_accum_offset {accum}
  .amdhsa_group_segment_fixed_size 0
  .amdhsa_kernarg_size 72
  .amdhsa_user_sgpr_count 2
  .amdhsa_user_sgpr_kernarg_segment_ptr 1
  .amdhsa_system_sgpr_workgroup_id_x 1
.end_amdhsa_kernel
"""

HEADER = open("cdna_kernels/" + NAME + ".s.ref").read().split("; Override launch")[0]

def build():
    a = A()
    K = NAME + "_kernel"
    out = HEADER
    out += "; @launch grid=(256,1,1) block=(256,1,1) lds=163840\n"
    out += '.amdgcn_target "amdgcn-amd-amdhsa--gfx950"\n.text\n'
    a.l.append(f".globl {K}\n.p2align 8\n.type {K},@function\n{K}:")
    a("s_cmp_ge_u32 s2, 256")
    a("s_cbranch_scc1 K_end")
    if STAMPS:
        a("s_memrealtime s[94:95]")
        a("s_memtime s[96:97]")
    prologue(a)
    a(f"s_cmp_eq_u32 s2, {253 if OPT['MAP'] == 2 else 250}")
    a("s_cbranch_scc0 K_np")
    a(f"s_cmp_eq_u32 s{S_W}, 0")
    a("s_cbranch_scc0 K_np")
    a("s_memrealtime s[62:63]")
    a("s_waitcnt lgkmcnt(0)")
    a("s_or_b32 s62, s62, 1")
    a("v_mov_b32 v2, s62")
    a("s_mov_b64 exec, 1")
    a(f"buffer_store_dword v2, off, {srd(S_DBG)}, 0 sc1")
    a("s_mov_b64 exec, -1")
    a.lab("K_np")
    if OPT['CPF']:
        a(f"s_cmp_eq_u32 s{S_W}, 3")
        a("s_cbranch_scc0 K_ncpf")
        a("s_getpc_b64 s[62:63]")
        a.lab("K_pc")
        a(f"s_sub_u32 s62, s62, K_pc-{K}")
        a("s_subb_u32 s63, s63, 0")
        a(f"s_mov_b32 s64, K_code_end-{K}-4")
        a("v_lshlrev_b32 v2, 7, v0")
        for k in range(4):
            a(f"v_add_u32 v3, {k*8192}, v2")
            a("v_min_u32 v3, s64, v3")
            a("global_load_dword v255, v3, s[62:63]")
        a.lab("K_ncpf")
    if STAMPS:
        a("s_mov_b32 s76, s94")
        a.nst = 1
    a.stamp()
    a("s_and_b32 s62, s2, 7")
    a("s_lshr_b32 s63, s2, 3")
    a("s_and_b32 s64, s62, 3")
    a("s_lshl_b32 s64, s64, 2")
    a("s_and_b32 s65, s63, 3")
    a(f"s_add_u32 s{S_MB8}, s64, s65")
    a("s_lshr_b32 s64, s62, 2")
    a("s_lshl_b32 s64, s64, 3")
    a("s_lshr_b32 s65, s63, 2")
    a(f"s_add_u32 s{S_NBK}, s64, s65")
    if OPT['MAP'] == 0:
        a("s_lshr_b32 s64, s62, 1")
        a("s_and_b32 s65, s64, 1")
        a("s_sub_u32 s65, 6, s65")
        a("s_lshl_b32 s65, s65, 2")
        a("s_cmp_lt_u32 s63, s65")
        a("s_cbranch_scc0 K_notT")
        a("s_and_b32 s66, s62, 1")
        a("s_lshl_b32 s66, s66, 2")
        a("s_and_b32 s67, s63, 3")
        a(f"s_add_u32 s{S_A}, s66, s67")
        a("s_mul_i32 s64, s64, 11")
        a("s_add_u32 s64, s64, 1")
        a("s_lshr_b32 s64, s64, 1")
        a("s_lshr_b32 s66, s63, 2")
        a(f"s_add_u32 s{S_B}, s64, s66")
        a("s_mul_i32 s67, s67, 11")
        a("s_lshr_b32 s67, s67, 2")
        a("s_lshl_b32 s66, s66, 1")
        a("s_add_u32 s94, s67, s66")
        if OPT['SKEW']:
            a("s_and_b32 s66, s62, 1")
            a("s_mul_i32 s66, s66, 5")
            a("s_add_u32 s94, s94, s66")
    elif OPT['MAP'] == 1:
        a("s_mov_b32 s65, 22")
        a("s_cmp_lt_u32 s63, s65")
        a("s_cbranch_scc0 K_notT")
        a("s_mul_i32 s64, s62, 22")
        a("s_add_u32 s64, s64, s63")
        a(f"s_lshr_b32 s{S_B}, s64, 3")
        a(f"s_and_b32 s{S_A}, s64, 7")
        a(f"s_mul_i32 s67, s{S_A}, 11")
        a("s_lshr_b32 s67, s67, 3")
        a(f"s_and_b32 s66, s{S_B}, 3")
        a("s_mul_i32 s66, s66, 3")
        a("s_add_u32 s94, s67, s66")
    else:
        a("s_cmp_ge_u32 s62, 6")
        a("s_cbranch_scc1 K_xr")
        a("s_cmp_lt_u32 s62, 2")
        a("s_cselect_b32 s65, 30, 29")
        a("s_cmp_lt_u32 s63, s65")
        a("s_cbranch_scc0 K_spare")
        a("s_min_u32 s66, s62, 2")
        a("s_mul_i32 s64, s62, 29")
        a("s_add_u32 s64, s64, s66")
        a("s_add_u32 s64, s64, s63")
        a(f"s_lshr_b32 s{S_B}, s64, 3")
        a(f"s_and_b32 s{S_A}, s64, 7")
        a(f"s_mul_i32 s67, s{S_A}, 11")
        a("s_lshr_b32 s67, s67, 3")
        a(f"s_and_b32 s66, s{S_B}, 3")
        a("s_mul_i32 s66, s66, 3")
        a("s_add_u32 s94, s67, s66")
    nst0 = a.nst
    if OPT['DIAG'] == 2:
        a("s_branch K_fin")
    role_T(a, S_A, S_B, 94)
    if OPT['DIAG']:
        a.nst = 10
    nstT = a.nst
    a("s_branch K_y")
    a.lab("K_notT")
    if OPT['MAP'] == 2:
        a.lab("K_xr")
        a(f"s_and_b32 s{S_A}, s63, 3")
        a("s_lshr_b32 s65, s63, 2")
        a("s_sub_u32 s64, s62, 6")
        a("s_lshl_b32 s64, s64, 3")
        a(f"s_add_u32 s{S_B}, s64, s65")
        a(f"s_lshl_b32 s73, s{S_A}, 1")
        a("s_add_u32 s73, s73, s65")
    else:
        a("s_sub_u32 s63, s63, s65")
        a("s_cmp_lt_u32 s63, 8")
        a("s_cbranch_scc0 K_spare")
        if OPT['XMAP'] == 1:
            a(f"s_and_b32 s{S_A}, s63, 3")
            a("s_lshl_b32 s64, s62, 1")
            a("s_lshr_b32 s65, s63, 2")
            a(f"s_add_u32 s{S_B}, s64, s65")
            a(f"s_lshl_b32 s73, s{S_A}, 1")
            a("s_add_u32 s73, s73, s65")
            a("s_add_u32 s73, s73, s62")
        else:
            a("s_and_b32 s64, s62, 1")
            a("s_lshl_b32 s64, s64, 1")
            a("s_and_b32 s65, s63, 1")
            a(f"s_add_u32 s{S_A}, s64, s65")
            a("s_lshr_b32 s64, s62, 1")
            a("s_lshl_b32 s64, s64, 2")
            a("s_lshr_b32 s65, s63, 1")
            a(f"s_add_u32 s{S_B}, s64, s65")
            a("s_and_b32 s64, s63, 1")
            a("s_lshl_b32 s64, s64, 2")
            a("s_lshr_b32 s65, s63, 1")
            a("s_lshl_b32 s65, s65, 1")
            a("s_add_u32 s73, s64, s65")
            a("s_and_b32 s64, s62, 1")
            a("s_add_u32 s73, s73, s64")
    a.vm = []
    a.nst = nst0
    if OPT['DIAG'] == 1:
        a("s_branch K_fin")
    role_xr(a, S_A, S_B, 73)
    if OPT['DIAG'] == 2:
        a("s_branch K_fin")
    a("s_branch K_pre")
    a.lab("K_spare")
    if OPT['DIAG']:
        a("s_branch K_fin")
    a.vm = []
    n2 = a.nst
    a.nst = nst0
    nonce_get(a, 9)
    a("s_waitcnt vmcnt(0)")
    nonce_check(a, 9)
    while STAMPS and a.nst < n2:
        a.stamp()
    a.lab("K_pre")
    a.vm = []
    y_f3_addr(a, 18, 19)
    a("s_nop 0")
    wg_poll(a, 19, 18, "s67", sleep=8)
    y_xr_loads(a)
    while STAMPS and a.nst < nstT:
        a.stamp()
    a.lab("K_y")
    a.nst = nstT
    a(f"s_cmp_ge_u32 s{S_NBK}, 15")
    a("s_cbranch_scc1 K_fin")
    role_y(a)
    a.lab("K_fin")
    if OPT['DBGSPAN']:
        a(f"s_cmp_eq_u32 s{S_W}, 0")
        a("s_cbranch_scc0 K_end")
        a("s_waitcnt vmcnt(0)")
        a("s_memrealtime s[62:63]")
        a("s_waitcnt lgkmcnt(0)")
        a(f"s_sub_u32 s62, s62, s{S_NONCE}")
        a("v_mov_b32 v2, s62")
        a("s_mov_b64 exec, 1")
        a(f"buffer_atomic_umax v2, off, {srd(S_DBG)}, 0 offset:4")
        a("s_waitcnt vmcnt(0)")
    stamp_flush(a)
    a.lab("K_end")
    a("s_endpgm")
    a.lab("K_code_end")
    out += a.text()
    out += '.section .rodata,"a"\n'
    out += kd(K, 512, 256)
    return out

if __name__ == "__main__":
    for arg in list(sys.argv):
        if arg.startswith("-O"):
            k, v = arg[2:].split("=")
            OPT[k] = int(v)
            sys.argv.remove(arg)
    if "--plain" in sys.argv:
        LDSC = ""
        sys.argv.remove("--plain")
    if "--stamps" in sys.argv:
        STAMPS = True
        sys.argv.remove("--stamps")
    dst = sys.argv[1] if len(sys.argv) > 1 else "cdna_kernels/" + NAME + ".s"
    open(dst, "w").write(build())
    print("wrote", dst)
```

```python
import sys

NAME = "standalone__weight_only_int_quip__prompt"
M, D, F = 2048, 512, 1376
WQF_OFF, WQF_SZ = 0x000000, 32 * 44 * 1024
XF_OFF, XF_SZ = 0x200000, 128 * 16 * 1024
TF_OFF, TF_SZ = 0x400000, 86 * 16 * 1024
FL_OFF, FL_SZ = 0x600000, 0x4000
F1_B, F2_B, F3_B = 0x0000, 0x1000, 0x2000
STAMPS = False
OPT = dict(NV0=0, NV1=3, WPRE=4, TPRE=4, XPRE=15, SKEW=1, DIAG=0, MAP=0, XMAP=0, CPF=1, OST=1, DBGSPAN=0, XQ=4, F1AT=9)
SPIN_MAX = 200000
LDSC = ' sc1'


class A:
    def __init__(s):
        s.l = []
        s.vm = []
        s.nst = 0
        s.uid = 0
    def __call__(s, x):
        s.l.append("  " + x)
    def lab(s, x):
        s.l.append(x + ":")
    def text(s):
        return "\n".join(s.l) + "\n"
    def vmem(s, x, tag):
        s(x); s.vm.append(tag)
    def wait(s, tag, extra=""):
        idx = [i for i, t in enumerate(s.vm) if t == tag]
        if not idx:
            return
        n = len(s.vm) - 1 - idx[-1]
        assert n <= 63, n
        s(f"s_waitcnt vmcnt({n}){extra}")
        s.vm = s.vm[idx[-1] + 1:]
    def waitall(s):
        s("s_waitcnt vmcnt(0)"); s.vm = []
    def new(s, p):
        s.uid += 1
        return f"{p}_{s.uid}"
    def stamp(s):
        if not STAMPS: return
        i = s.nst; s.nst += 1
        assert i < 24, i
        s("s_memrealtime s[100:101]")
        s("s_waitcnt lgkmcnt(0)")
        s(f"s_mov_b32 s{76+i}, s100")

S_X, S_QW, S_SC, S_ZR, S_U, S_V, S_OUT, S_WQF, S_XF, S_TF, S_FL, S_DBG = [8 + 4*i for i in range(12)]
S_W, S_NONCE, S_A, S_B, S_MB8, S_NBK = 56, 57, 58, 59, 60, 61
T0 = 62
def srd(i): return f"s[{i}:{i+3}]"

def prologue(a):
    a("s_load_dwordx16 s[76:91], s[0:1], 0")
    a("s_load_dwordx2 s[92:93], s[0:1], 64")
    a("v_lshrrev_b32 v1, 6, v0")
    a("v_and_b32 v0, 63, v0")
    a(f"v_readfirstlane_b32 s{S_W}, v1")
    a("s_waitcnt lgkmcnt(0)")
    tbl = [(S_X, 76, M*D*2), (S_QW, 78, D*F*4), (S_SC, 80, 4*F*2), (S_ZR, 82, 4*F*2),
           (S_U, 84, D*D*2), (S_V, 86, F*F*2), (S_OUT, 88, M*F*2), (S_DBG, 90, 256)]
    for r, p, sz in tbl:
        a(f"s_mov_b32 s{r}, s{p}")
        a(f"s_and_b32 s{r+1}, s{p+1}, 0xffff")
        a(f"s_mov_b32 s{r+2}, {sz}")
        a(f"s_mov_b32 s{r+3}, 0x20000")
    for r, off, sz in [(S_WQF, WQF_OFF, WQF_SZ), (S_XF, XF_OFF, XF_SZ), (S_TF, TF_OFF, TF_SZ), (S_FL, FL_OFF, FL_SZ)]:
        a(f"s_add_u32 s{r}, s92, {off}")
        a(f"s_addc_u32 s{r+1}, s93, 0")
        a(f"s_and_b32 s{r+1}, s{r+1}, 0xffff")
        a(f"s_mov_b32 s{r+2}, {sz}")
        a(f"s_mov_b32 s{r+3}, 0x20000")

def stamp_flush(a):
    if not STAMPS: return
    a.stamp()
    a("s_waitcnt vmcnt(0)")
    a.stamp()
    n = a.nst
    a("s_memtime s[98:99]")
    a("s_load_dwordx2 s[62:63], s[0:1], 64")
    a("s_waitcnt lgkmcnt(0)")
    a("s_add_u32 s8, s62, 0x800000")
    a("s_addc_u32 s9, s63, 0")
    a("s_and_b32 s9, s9, 0xffff")
    a("s_mov_b32 s10, 0x100000")
    a("s_mov_b32 s11, 0x20000")
    a("s_lshl_b32 s64, s2, 2")
    a(f"s_add_u32 s64, s64, s{S_W}")
    a("s_lshl_b32 s64, s64, 7")
    a("s_mov_b64 exec, 1")
    a("v_mov_b32 v3, 0")
    for i in range(n):
        a(f"v_mov_b32 v4, s{76+i}")
        a(f"buffer_store_dword v4, v3, s[8:11], s64 offen offset:{4*i}")
        a("s_nop 1")
    a("s_sub_u32 s98, s98, s96")
    a("v_mov_b32 v4, s98")
    a("buffer_store_dword v4, v3, s[8:11], s64 offen offset:120")

def nonce_get_all(a, vreg):
    a.vmem(f"buffer_load_dword v{vreg}, off, {srd(S_DBG)}, 0 sc1", "N")

def nonce_check_all(a, vreg):
    L, Dn = a.new("NC"), a.new("ND")
    a(f"v_readfirstlane_b32 s{S_NONCE}, v{vreg}")
    a(f"s_mov_b32 s{T0}, {SPIN_MAX}")
    a.lab(L)
    a(f"s_cmp_lg_u32 s{S_NONCE}, 0")
    a(f"s_cbranch_scc1 {Dn}")
    a(f"s_sub_u32 s{T0}, s{T0}, 1")
    a(f"s_cbranch_scc1 {Dn}")
    a("s_sleep 2")
    a(f"buffer_load_dword v{vreg}, off, {srd(S_DBG)}, 0 sc1")
    a("s_waitcnt vmcnt(0)")
    a(f"v_readfirstlane_b32 s{S_NONCE}, v{vreg}")
    a(f"s_branch {L}")
    a.lab(Dn)

def nonce_get(a, vreg, after_issue=None):
    sk = a.new("NG")
    a(f"s_cmp_eq_u32 s{S_W}, 0")
    a(f"s_cbranch_scc0 {sk}")
    a(f"buffer_load_dword v{vreg}, off, {srd(S_DBG)}, 0 sc1")
    a.lab(sk)

def nonce_check(a, vreg):
    L, Dn = a.new("NC"), a.new("ND")
    a(f"s_cmp_eq_u32 s{S_W}, 0")
    a(f"s_cbranch_scc0 {Dn}")
    a(f"v_readfirstlane_b32 s{S_NONCE}, v{vreg}")
    a(f"s_mov_b32 s{T0}, {SPIN_MAX}")
    a.lab(L)
    a(f"s_cmp_lg_u32 s{S_NONCE}, 0")
    a(f"s_cbranch_scc1 {Dn}")
    a(f"s_sub_u32 s{T0}, s{T0}, 1")
    a(f"s_cbranch_scc1 {Dn}")
    a("s_sleep 2")
    a(f"buffer_load_dword v{vreg}, off, {srd(S_DBG)}, 0 sc1")
    a("s_waitcnt vmcnt(0)")
    a(f"v_readfirstlane_b32 s{S_NONCE}, v{vreg}")
    a(f"s_branch {L}")
    a.lab(Dn)

def poll_issue(a, vreg, voff, soff, tag):
    a.vmem(f"buffer_load_dword v{vreg}, v{voff}, {srd(S_FL)}, {soff} offen sc1", tag)

def poll_check(a, regs, voffs, soff, sleep=4):
    L, Dn = a.new("PL"), a.new("PD")
    a(f"s_mov_b32 s{T0}, {SPIN_MAX}")
    a.lab(L)
    a(f"v_cmp_ne_u32 s[{T0+2}:{T0+3}], s{S_NONCE}, v{regs[0]}")
    for r in regs[1:]:
        a(f"v_cmp_ne_u32 s[{T0+4}:{T0+5}], s{S_NONCE}, v{r}")
        a(f"s_or_b64 s[{T0+2}:{T0+3}], s[{T0+2}:{T0+3}], s[{T0+4}:{T0+5}]")
    a(f"s_cmp_eq_u64 s[{T0+2}:{T0+3}], 0")
    a(f"s_cbranch_scc1 {Dn}")
    a(f"s_sub_u32 s{T0}, s{T0}, 1")
    a(f"s_cbranch_scc1 {Dn}")
    a(f"s_sleep {sleep}")
    for r, vo in zip(regs, voffs):
        a(f"buffer_load_dword v{r}, v{vo}, {srd(S_FL)}, {soff} offen sc1")
    a("s_waitcnt vmcnt(0)")
    a(f"s_branch {L}")
    a.lab(Dn)

def wg_flag(a, soff, vtmp):
    sk = a.new("WF")
    a("s_barrier")
    a(f"s_cmp_eq_u32 s{S_W}, 0")
    a(f"s_cbranch_scc0 {sk}")
    a(f"v_mov_b32 v{vtmp}, s{S_NONCE}")
    a("s_mov_b64 exec, 1")
    a(f"buffer_store_dword v{vtmp}, off, {srd(S_FL)}, {soff} sc1")
    a("s_mov_b64 exec, -1")
    a.lab(sk)

def wg_poll(a, reg, voff, soff, sleep=4, reg2=None, voff2=None):
    L, Dn, sk = a.new("PL"), a.new("PD"), a.new("PS")
    a(f"s_cmp_eq_u32 s{S_W}, 0")
    a(f"s_cbranch_scc0 {sk}")
    a(f"s_mov_b32 s{T0}, {SPIN_MAX}")
    a.lab(L)
    a(f"buffer_load_dword v{reg}, v{voff}, {srd(S_FL)}, {soff} offen sc1")
    if reg2 is not None:
        a(f"buffer_load_dword v{reg2}, v{voff2}, {srd(S_FL)}, {soff} offen sc1")
    a("s_waitcnt vmcnt(0)")
    a(f"v_cmp_ne_u32 s[{T0+2}:{T0+3}], s{S_NONCE}, v{reg}")
    if reg2 is not None:
        a(f"v_cmp_ne_u32 s[{T0+4}:{T0+5}], s{S_NONCE}, v{reg2}")
        a(f"s_or_b64 s[{T0+2}:{T0+3}], s[{T0+2}:{T0+3}], s[{T0+4}:{T0+5}]")
    a(f"s_cmp_eq_u64 s[{T0+2}:{T0+3}], 0")
    a(f"s_cbranch_scc1 {Dn}")
    a(f"s_sub_u32 s{T0}, s{T0}, 1")
    a(f"s_cbranch_scc1 {Dn}")
    a(f"s_sleep {sleep}")
    a(f"s_branch {L}")
    a.lab(Dn)
    a.lab(sk)
    a("s_barrier")

def flag_store(a, soff, vtmp, vzero):
    a(f"v_mov_b32 v{vtmp}, s{S_NONCE}")
    a("s_mov_b64 exec, 1")
    a.vmem(f"buffer_store_dword v{vtmp}, off, {srd(S_FL)}, {soff} sc1", "F")
    a("s_mov_b64 exec, -1")

def prep_issue(a, s_db, s_kb, V):
    t = T0
    a(f"v_lshrrev_b32 v{V+1}, 3, v0")
    a(f"v_and_b32 v{V+2}, 7, v0")
    a(f"v_mul_u32_u24 v{V+3}, 5504, v{V+1}")
    a(f"v_lshl_add_u32 v{V+3}, v{V+2}, 4, v{V+3}")
    a(f"v_lshlrev_b32 v{V+4}, 3, v{V+2}")
    a(f"s_cmp_eq_u32 s{s_kb}, 21")
    a(f"s_cselect_b32 s{t}, 0x40000000, 128")
    a(f"s_cselect_b32 s{t+1}, 0x40000000, 64")
    a(f"v_add_u32 v{V+5}, s{t}, v{V+3}")
    a(f"v_add_u32 v{V+6}, s{t+1}, v{V+4}")
    a(f"s_mul_i32 s{t+2}, s{s_db}, 88064")
    a(f"s_lshl_b32 s{t+3}, s{s_kb}, 8")
    a(f"s_add_u32 s{t+2}, s{t+2}, s{t+3}")
    a(f"s_add_u32 s{t+3}, s{t+2}, 44032")
    a(f"s_lshr_b32 s{t+4}, s{s_db}, 3")
    a(f"s_mul_i32 s{t+4}, s{t+4}, 2752")
    a(f"s_lshl_b32 s{t+5}, s{s_kb}, 7")
    a(f"s_add_u32 s{t+4}, s{t+4}, s{t+5}")
    a.vmem(f"buffer_load_dwordx4 v[{V+8}:{V+11}], v{V+3}, {srd(S_QW)}, s{t+2} offen", "P")
    a.vmem(f"buffer_load_dwordx4 v[{V+12}:{V+15}], v{V+5}, {srd(S_QW)}, s{t+2} offen", "P")
    a.vmem(f"buffer_load_dwordx4 v[{V+16}:{V+19}], v{V+3}, {srd(S_QW)}, s{t+3} offen", "P")
    a.vmem(f"buffer_load_dwordx4 v[{V+20}:{V+23}], v{V+5}, {srd(S_QW)}, s{t+3} offen", "P")
    a.vmem(f"buffer_load_dwordx2 v[{V+24}:{V+25}], v{V+4}, {srd(S_SC)}, s{t+4} offen", "P")
    a.vmem(f"buffer_load_dwordx2 v[{V+26}:{V+27}], v{V+6}, {srd(S_SC)}, s{t+4} offen", "P")
    a.vmem(f"buffer_load_dwordx2 v[{V+28}:{V+29}], v{V+4}, {srd(S_ZR)}, s{t+4} offen", "P")
    a.vmem(f"buffer_load_dwordx2 v[{V+30}:{V+31}], v{V+6}, {srd(S_ZR)}, s{t+4} offen", "P")
    a(f"v_lshrrev_b32 v{V+7}, 2, v{V+2}")
    a(f"v_lshlrev_b32 v{V+7}, 10, v{V+7}")
    a(f"v_and_b32 v{V+32}, 3, v{V+2}")
    a(f"v_lshl_add_u32 v{V+7}, v{V+32}, 8, v{V+7}")
    a(f"v_lshl_add_u32 v{V+7}, v{V+1}, 4, v{V+7}")

def prep_finish(a, s_db, s_kb, V):
    t = T0
    a(f"s_mul_i32 s{t}, s{s_db}, 44")
    a(f"s_lshl_b32 s{t+1}, s{s_kb}, 1")
    a(f"s_add_u32 s{t}, s{t}, s{t+1}")
    a(f"s_lshl_b32 s{t}, s{t}, 10")
    a(f"s_mov_b32 s{t+1}, 0xffff0000")
    for i in range(4):
        a(f"v_lshlrev_b32 v{V+32+2*i}, 16, v{V+24+i}")
        a(f"v_and_b32 v{V+33+2*i}, s{t+1}, v{V+24+i}")
        a(f"v_lshlrev_b32 v{V+40+2*i}, 16, v{V+28+i}")
        a(f"v_and_b32 v{V+41+2*i}, s{t+1}, v{V+28+i}")
    for rh in range(2):
        q = V + 8 + 8 * rh
        for i in range(8):
            a(f"v_cvt_f32_i32 v{q+i}, v{q+i}")
        for i in range(8):
            a(f"v_sub_f32 v{q+i}, v{q+i}, v{V+40+i}")
        for i in range(4):
            a(f"v_cvt_pk_bf16_f32 v{V+48+i}, v{q+2*i}, v{q+2*i+1}")
        for i in range(4):
            a(f"v_lshlrev_b32 v{q+2*i}, 16, v{V+48+i}")
            a(f"v_and_b32 v{q+2*i+1}, s{t+1}, v{V+48+i}")
        for i in range(8):
            a(f"v_mul_f32 v{q+i}, v{q+i}, v{V+32+i}")
        o = V + 52 + 4 * rh
        for i in range(4):
            a(f"v_cvt_pk_bf16_f32 v{o+i}, v{q+2*i}, v{q+2*i+1}")
        a.vmem(f"buffer_store_dwordx4 v[{o}:{o+3}], v{V+7}, {srd(S_WQF)}, s{t} offen offset:{128*rh} sc1", "S")

def interleave(main, side):
    out = []
    n, m = len(main), len(side)
    k = 0
    for i, x in enumerate(main):
        out.append(x)
        while k < m and (k + 1) * n <= (i + 1) * m + (n - 1) * 0:
            out.append(side[k]); k += 1
    out.extend(side[k:])
    return out

def role_xr(a, s_eb, s_mb8, s_rot):
    s_w = S_W
    SWE, SWM, UB, XB, LB, TT = 64, 65, 66, 67, 68, 69
    a(f"s_and_b32 s{SWE}, s{s_w}, 1")
    a(f"s_lshr_b32 s{SWM}, s{s_w}, 1")
    a("v_lshrrev_b32 v1, 4, v0")
    a("v_and_b32 v2, 15, v0")
    a("v_lshlrev_b32 v3, 1, v1")
    a("v_xor_b32 v4, v2, v3")
    a("v_xor_b32 v5, 8, v4")
    a("v_lshlrev_b32 v6, 10, v1")
    a("v_lshl_add_u32 v10, v4, 4, v6")
    a("v_lshl_add_u32 v11, v5, 4, v6")
    a("v_lshrrev_b32 v1, 3, v0")
    a("v_and_b32 v2, 7, v0")
    a("v_lshrrev_b32 v3, 1, v1")
    a("v_xor_b32 v4, v2, v3")
    a("v_xor_b32 v5, 4, v4")
    a("v_lshlrev_b32 v6, 10, v1")
    a("v_lshl_add_u32 v12, v4, 4, v6")
    a("v_lshl_add_u32 v13, v5, 4, v6")
    a(f"s_lshl_b32 s{UB}, s{s_w}, 14")
    a(f"s_lshl_b32 s{TT}, s{s_eb}, 8")
    a(f"s_add_u32 s{UB}, s{UB}, s{TT}")
    a(f"s_lshl_b32 s{XB}, s{s_mb8}, 17")
    a(f"s_lshl_b32 s{TT}, s{s_w}, 15")
    a(f"s_add_u32 s{XB}, s{XB}, s{TT}")
    a(f"s_lshl_b32 s{LB}, s{s_w}, 12")
    NSL = 4
    def dma_items(st):
        slot = st % NSL
        items = []
        def setup():
            a(f"s_add_u32 s70, s{s_rot}, {st}")
            a("s_and_b32 s70, s70, 7")
            a("s_lshl_b32 s71, s70, 16")
            a(f"s_add_u32 s71, s71, s{UB}")
            a("s_lshl_b32 s72, s70, 7")
            a(f"s_add_u32 s72, s72, s{XB}")
        for aa in range(4):
            def f(aa=aa):
                if aa == 0: setup()
                a(f"s_add_u32 m0, s{LB}, {slot*32768 + aa*1024}")
                a(f"s_add_u32 s{TT}, s71, {aa*4096}")
                a.vmem(f"buffer_load_dwordx4 v{10 + (aa>>1)}, {srd(S_U)}, s{TT} offen lds", f"X{st}")
            items.append(f)
        for bb in range(4):
            def f(bb=bb):
                a(f"s_add_u32 m0, s{LB}, {slot*32768 + 16384 + bb*1024}")
                a(f"s_add_u32 s{TT}, s72, {bb*8192}")
                a.vmem(f"buffer_load_dwordx4 v{12 + (bb&1)}, {srd(S_X)}, s{TT} offen lds", f"X{st}")
            items.append(f)
        return items
    XPRE = OPT['XPRE']
    if XPRE == 15:
        for f in dma_items(0): f()
        d1 = dma_items(1)
        for f in d1[:4]: f()
    else:
        for st in range(XPRE):
            for f in dma_items(st): f()
    a.stamp()
    a("v_lshrrev_b32 v1, 4, v0")
    a("v_bfe_u32 v2, v0, 2, 2")
    a("v_and_b32 v3, 3, v0")
    a("v_lshl_add_u32 v4, v1, 3, v2")
    a("v_lshlrev_b32 v4, 8, v4")
    a("v_and_b32 v5, 1, v1")
    a("v_lshlrev_b32 v5, 3, v5")
    a("v_lshl_add_u32 v5, v2, 1, v5")
    a("v_lshrrev_b32 v6, 1, v3")
    a(f"s_lshl_b32 s{TT}, s{SWE}, 3")
    a(f"v_or_b32 v6, s{TT}, v6")
    a("v_xor_b32 v5, v5, v6")
    a("v_lshl_add_u32 v4, v5, 4, v4")
    a("v_and_b32 v6, 1, v3")
    a("v_lshl_add_u32 v4, v6, 3, v4")
    for i in range(4):
        a(f"v_xor_b32 v{16+i}, {i<<5}, v4")
        a(f"v_add_u32 v{20+i}, 0x10000, v{16+i}")
    a("v_and_b32 v2, 15, v0")
    a("v_lshrrev_b32 v3, 1, v2")
    a("v_xor_b32 v3, v3, v1")
    a("v_lshlrev_b32 v4, 7, v2")
    a("v_lshl_add_u32 v4, v3, 4, v4")
    a(f"s_lshl_b32 s{TT}, s{SWM}, 13")
    a(f"s_add_u32 s{TT}, s{TT}, 16384")
    a(f"v_add_u32 v24, s{TT}, v4")
    a("v_xor_b32 v25, 64, v24")
    a("v_add_u32 v26, 0x10000, v24")
    a("v_add_u32 v27, 0x10000, v25")
    ACC = 64
    for r in range(64):
        a(f"v_mov_b32 v{ACC+r}, 0")
    def read_items(hh):
        st, h2, buf = hh >> 1, hh & 1, hh & 1
        slot = st % NSL
        hi = slot >> 1
        so = (slot & 1) * 32768
        FA = 128 + 32 * buf
        FB = 144 + 32 * buf
        items = []
        for j in range(4):
            items.append(lambda j=j: a(f"ds_read_b128 v[{FB+4*j}:{FB+4*j+3}], v{24+2*hi+h2} offset:{so + j*2048}"))
        for i in range(4):
            for q in range(2):
                items.append(lambda i=i, q=q: a(f"ds_read_b64_tr_b16 v[{FA+4*i+2*q}:{FA+4*i+2*q+1}], v{16+4*hi+i} offset:{so + h2*8192 + q*1024}"))
        return items
    def mfma_items(buf):
        FA = 128 + 32 * buf
        FB = 144 + 32 * buf
        items = []
        for i in range(4):
            for j in range(4):
                c = ACC + 16*i + 4*j
                items.append(lambda c=c, i=i, j=j: a(f"v_mfma_f32_16x16x32_bf16 v[{c}:{c+3}], v[{FA+4*i}:{FA+4*i+3}], v[{FB+4*j}:{FB+4*j+3}], v[{c}:{c+3}]"))
        return items
    a.wait("X0")
    a("s_barrier")
    a.stamp()
    for f in read_items(0): f()
    for hh in range(16):
        st = hh >> 1
        a("s_waitcnt lgkmcnt(0)")
        if (hh & 1) and st + 1 < 8:
            a.wait(f"X{st+1}")
            a("s_barrier")
        side = []
        if hh + 1 < 16:
            side += read_items(hh + 1)
        dm = []
        if XPRE == 15 and hh < 2:
            if hh == 0:
                dm = d1[4:] + dma_items(2)
            else:
                dm = dma_items(3)[:4]
        elif XPRE == 3 or XPRE == 15:
            if hh & 1:
                S = st + 3
                if S < 8: dm = dma_items(S)[:4]
            else:
                S = st + 2
                if st >= 1 and S < 8: dm = dma_items(S)[4:]
        else:
            S = st + 2
            if S < 8:
                dm = dma_items(S)[:4] if (hh & 1) == 0 else dma_items(S)[4:]
        if hh == 9:
            dm = dm + [lambda: nonce_get_all(a, 28)]
        m = mfma_items(hh & 1)
        seq = interleave(m, side)
        seq = interleave(seq, dm)
        for f in seq: f()
    a("s_nop 7")
    a("s_nop 1")
    a.stamp()
    a("v_lshlrev_b32 v1, 4, v0")
    a(f"s_lshl_b32 s70, s{s_mb8}, 7")
    a(f"s_lshl_b32 s71, s{SWM}, 6")
    a("s_add_u32 s70, s70, s71")
    a(f"s_lshl_b32 s71, s{s_eb}, 2")
    a("s_add_u32 s70, s70, s71")
    a(f"s_lshl_b32 s71, s{SWE}, 1")
    a("s_add_u32 s70, s70, s71")
    a("s_lshl_b32 s70, s70, 10")
    for j in range(4):
        a(f"s_add_u32 s71, s70, {j*16*1024}")
        for sh in range(2):
            t0 = ACC + 16*(2*sh) + 4*j
            t1 = ACC + 16*(2*sh+1) + 4*j
            o = 128 + 4*(2*j+sh)
            a(f"v_cvt_pk_bf16_f32 v{o}, v{t0}, v{t0+1}")
            a(f"v_cvt_pk_bf16_f32 v{o+1}, v{t0+2}, v{t0+3}")
            a(f"v_cvt_pk_bf16_f32 v{o+2}, v{t1}, v{t1+1}")
            a(f"v_cvt_pk_bf16_f32 v{o+3}, v{t1+2}, v{t1+3}")
            a.vmem(f"buffer_store_dwordx4 v[{o}:{o+3}], v1, {srd(S_XF)}, s71 offen offset:{sh*1024} sc1", "S")
    a.wait("S")
    nonce_check_all(a, 28)
    a(f"s_lshl_b32 s70, s{s_mb8}, 7")
    a(f"s_lshl_b32 s71, s{s_eb}, 2")
    a("s_add_u32 s70, s70, s71")
    a(f"s_add_u32 s70, s70, {F3_B}")
    wg_flag(a, "s70", 2)
    a.stamp()

def role_T(a, s_rb, s_cb, s_rot):
    s_w = S_W
    NSL = 10
    DBS, DBS2 = 68, 95
    TB, CBO, LB, WBASE = 69, 70, 71, 72
    a("v_lshrrev_b32 v1, 3, v0")
    a("v_and_b32 v2, 7, v0")
    a("v_bfe_u32 v3, v1, 1, 1")
    a("v_lshlrev_b32 v3, 2, v3")
    a("v_xor_b32 v2, v2, v3")
    a("v_mul_u32_u24 v10, 2752, v1")
    a("v_lshl_add_u32 v10, v2, 4, v10")
    a(f"s_mul_i32 s73, s{s_w}, 11")
    a(f"s_add_u32 s{TB}, s{s_rot}, s73")
    a(f"s_lshl_b32 s{CBO}, s{s_cb}, 7")
    a(f"s_mul_i32 s{LB}, s{s_w}, {NSL*4096}")
    def step_t(i, dst):
        a(f"s_add_u32 s{dst}, s{TB}, {i}")
        a(f"s_cmp_ge_u32 s{dst}, 44")
        a(f"s_cselect_b32 s75, 44, 0")
        a(f"s_sub_u32 s{dst}, s{dst}, s75")
    def issueV(i):
        slot = i % NSL
        step_t(i, 73)
        a("s_lshr_b32 s74, s73, 1")
        a("s_lshl_b32 s74, s74, 6")
        a("s_and_b32 s73, s73, 1")
        a("s_lshl_b32 s73, s73, 4")
        a("s_add_u32 s73, s73, s74")
        a("s_mul_i32 s73, s73, 2752")
        a(f"s_add_u32 s73, s73, s{CBO}")
        for p, ro in enumerate((0, 8, 32, 40)):
            a(f"s_add_u32 m0, s{LB}, {slot*4096 + p*1024}")
            a(f"s_add_u32 s74, s73, {ro*2752}")
            a.vmem(f"buffer_load_dwordx4 v10, {srd(S_V)}, s74 offen lds", f"V{i}")
    def addr_setup():
        a("v_lshrrev_b32 v1, 4, v0")
        a("v_bfe_u32 v2, v0, 2, 2")
        a("v_and_b32 v3, 3, v0")
        a("v_lshl_add_u32 v4, v1, 2, v2")
        a("v_lshlrev_b32 v4, 7, v4")
        a("v_lshl_add_u32 v4, v3, 4, v4")
        a("v_lshrrev_b32 v5, 1, v2")
        a("v_lshl_add_u32 v4, v5, 6, v4")
        a(f"v_add_u32 v11, s{LB}, v4")
        a("v_xor_b32 v12, 64, v11")
        a("v_lshlrev_b32 v13, 4, v0")
        a("v_lshlrev_b32 v14, 2, v0")
        a("v_add_u32 v15, 64, v0")
        a("v_min_u32 v15, 87, v15")
        a("v_lshlrev_b32 v15, 2, v15")
    NV0, NV1 = OPT['NV0'], OPT['NV1']
    a(f"s_lshl_b32 s{DBS}, s{s_rb}, 2")
    a(f"s_add_u32 s{DBS}, s{DBS}, s{s_w}")
    PVA = 160
    prep_issue(a, DBS, s_cb, PVA)
    for i in range(NV0):
        issueV(i)
    a.stamp()
    addr_setup()
    a.wait("P")
    a.stamp()
    nonce_get_all(a, 9)
    prep_finish(a, DBS, s_cb, PVA)
    for i in range(NV0, NV1):
        issueV(i)
    a.wait("S")
    a.stamp()
    nonce_check_all(a, 9)
    a(f"s_lshl_b32 s73, s{s_rb}, 9")
    a(f"s_lshl_b32 s74, s{s_cb}, 4")
    a("s_add_u32 s73, s73, s74")
    a(f"s_lshl_b32 s74, s{s_w}, 2")
    a("s_add_u32 s73, s73, s74")
    a(f"s_add_u32 s73, s73, {F1_B}")
    flag_store(a, "s73", 2, None)
    for i in range(NV1, NSL):
        issueV(i)
    def trreads(i):
        slot = i % NSL
        for j in range(4):
            pp, ab = j >> 1, j & 1
            for q in range(2):
                r = 16*i + 4*j + 2*q
                a(f"ds_read_b64_tr_b16 a[{r}:{r+1}], v{11+pp} offset:{slot*4096 + q*2048 + ab*8}")
    a.wait("V0")
    trreads(0)
    a("s_waitcnt lgkmcnt(0)")
    issueV(10)
    a(f"s_lshl_b32 s68, s{s_rb}, 9")
    a(f"s_add_u32 s68, s68, {F1_B}")
    ACC = 176
    for i in range(1, NSL):
        a.wait(f"V{i}")
        trreads(i)
        if i <= 4:
            for r in range(16*(i-1), 16*i):
                a(f"v_accvgpr_write_b32 a{ACC+r}, 0")
        if i == OPT['F1AT']:
            poll_issue(a, 16, 14, "s68", "Q")
            poll_issue(a, 17, 15, "s68", "Q")
    a.wait("V10")
    trreads(10)
    a.wait("Q")
    a.stamp()
    poll_check(a, [16, 17], [14, 15], "s68", sleep=6)
    a.stamp()
    a(f"s_mul_i32 s{WBASE}, s{s_rb}, {4*44}")
    WB = 64
    def w_items(i):
        items = []
        for d in range(4):
            def f(d=d):
                if d == 0:
                    step_t(i, 73)
                    a(f"s_add_u32 s73, s73, s{WBASE}")
                    a("s_lshl_b32 s73, s73, 10")
                    a("s_mov_b32 s74, s73")
                else:
                    a(f"s_add_u32 s74, s73, {d*44*1024}")
                r = WB + 16*i + 4*d
                a.vmem(f"buffer_load_dwordx4 v[{r}:{r+3}], v13, {srd(S_WQF)}, s74 offen{LDSC}", f"W{i}")
            items.append(f)
        return items
    PRE = OPT['WPRE']
    for i in range(PRE):
        for f in w_items(i): f()
    y_f3_addr(a, 18, 19)
    a("s_waitcnt lgkmcnt(0)")
    a("s_barrier")
    for i in range(11):
        a.wait(f"W{i}")
        m = []
        for d in range(4):
            for j in range(4):
                c = ACC + 16*d + 4*j
                ra = WB + 16*i + 4*d
                rb_ = 16*i + 4*j
                m.append(lambda c=c, ra=ra, rb_=rb_: a(f"v_mfma_f32_16x16x32_bf16 a[{c}:{c+3}], v[{ra}:{ra+3}], a[{rb_}:{rb_+3}], a[{c}:{c+3}]"))
        side = w_items(i + PRE) if i + PRE < 11 else []
        if i == 8:
            side = side + [lambda: poll_issue(a, 19, 18, "s67", "Q3")]
        for f in interleave(m, side): f()
    a("s_nop 7")
    a.stamp()
    a("v_lshlrev_b32 v14, 4, v0")
    for w in range(4):
        sk = a.new("TR")
        a(f"s_cmp_eq_u32 s{s_w}, {w}")
        a(f"s_cbranch_scc0 {sk}")
        for o in range(4):
            if o == w: continue
            rank = (w - o - 1) % 4
            sh, jh = o >> 1, o & 1
            tl = 0
            for d in (2*sh, 2*sh+1):
                for j in (2*jh, 2*jh+1):
                    c = ACC + 16*d + 4*j
                    a(f"ds_write_b128 v14, a[{c}:{c+3}] offset:{o*12288 + (rank*4+tl)*1024}")
                    tl += 1
        sh, jh = w >> 1, w & 1
        tl = 0
        for d in (2*sh, 2*sh+1):
            for j in (2*jh, 2*jh+1):
                c = ACC + 16*d + 4*j
                for r in range(4):
                    a(f"v_accvgpr_read_b32 v{20+4*tl+r}, a{c+r}")
                tl += 1
        a.lab(sk)
    a("s_waitcnt lgkmcnt(0)")
    a("s_barrier")
    a(f"s_mul_i32 s73, s{s_w}, 12288")
    a("v_add_u32 v15, s73, v14")
    for k in range(12):
        a(f"ds_read_b128 v[{36+4*k}:{36+4*k+3}], v15 offset:{k*1024}")
    a(f"s_lshr_b32 s62, s{s_w}, 1")
    a(f"s_and_b32 s63, s{s_w}, 1")
    a(f"s_lshl_b32 s64, s{s_cb}, 1")
    a("s_add_u32 s64, s64, s63")
    a(f"s_lshl_b32 s65, s{s_rb}, 1")
    a("s_add_u32 s65, s65, s62")
    a("s_lshl_b32 s70, s64, 5")
    a("s_add_u32 s70, s70, s65")
    a("s_lshl_b32 s70, s70, 10")
    a("s_add_u32 s71, s70, 16384")
    a(f"s_lshl_b32 s64, s{s_cb}, 7")
    a(f"s_lshl_b32 s65, s{s_rb}, 2")
    a("s_add_u32 s64, s64, s65")
    a(f"s_add_u32 s72, s64, {F2_B}")
    for rank in range(3):
        a(f"s_waitcnt lgkmcnt({8-4*rank})")
        for r in range(16):
            a(f"v_add_f32 v{20+r}, v{20+r}, v{36+16*rank+r}")
    for jj in range(2):
        t0, t1, o = 20 + 4*jj, 20 + 4*(2+jj), 88 + 4*jj
        a(f"v_cvt_pk_bf16_f32 v{o}, v{t0}, v{t0+1}")
        a(f"v_cvt_pk_bf16_f32 v{o+1}, v{t0+2}, v{t0+3}")
        a(f"v_cvt_pk_bf16_f32 v{o+2}, v{t1}, v{t1+1}")
        a(f"v_cvt_pk_bf16_f32 v{o+3}, v{t1+2}, v{t1+3}")
        a.vmem(f"buffer_store_dwordx4 v[{o}:{o+3}], v14, {srd(S_TF)}, s{70+jj} offen sc1", "S2")
    a.stamp()
    poll_check(a, [19], [18], "s67")
    a.wait("S2")
    wg_flag(a, "s72", 2)
    y_f2_addr(a)
    y_xr_loads(a, 0, 12)
    a(f"buffer_load_dword v14, v12, {srd(S_FL)}, s68 offen sc1")
    y_xr_loads(a, 12, 16)
    a.stamp()

def y_f2_addr(a):
    a("v_and_b32 v12, 7, v0")
    a("v_lshlrev_b32 v12, 2, v12")
    a("v_bfe_u32 v13, v0, 3, 1")
    a(f"s_cmp_eq_u32 s{S_NBK}, 14")
    a("s_cselect_b32 s63, 0, 128")
    a("v_mul_u32_u24 v13, s63, v13")
    a("v_add_u32 v12, v12, v13")
    a(f"s_min_u32 s68, s{S_NBK}, 14")
    a("s_mul_i32 s68, s68, 3")
    a("s_lshr_b32 s68, s68, 1")
    a("s_lshl_b32 s68, s68, 7")
    a(f"s_add_u32 s68, s68, {F2_B}")

def y_f3_addr(a, vo, vt):
    a(f"v_and_b32 v{vo}, 3, v0")
    a(f"v_lshlrev_b32 v{vo}, 2, v{vo}")
    a(f"s_lshl_b32 s67, s{S_MB8}, 7")
    a(f"s_add_u32 s67, s67, {F3_B}")

def y_rot(a):
    a(f"s_and_b32 s74, s{S_MB8}, 3")
    a("s_lshl_b32 s74, s74, 2")
    a(f"s_and_b32 s75, s{S_NBK}, 7")
    a("s_lshl_b32 s75, s75, 1")
    a("s_add_u32 s74, s74, s75")

def y_xr_loads(a, q0=0, q1=16):
    sk = a.new("YX")
    a(f"s_cmp_ge_u32 s{S_NBK}, 15")
    a(f"s_cbranch_scc1 {sk}")
    y_rot(a)
    a("v_lshlrev_b32 v10, 4, v0")
    a(f"s_lshl_b32 s69, s{S_MB8}, 17")
    a(f"s_lshl_b32 s75, s{S_W}, 15")
    a("s_add_u32 s69, s69, s75")
    for q in range(q0, q1):
        a(f"s_add_u32 s75, s74, {q}")
        a("s_and_b32 s75, s75, 15")
        a("s_lshl_b32 s75, s75, 10")
        a("s_add_u32 s75, s75, s69")
        for i in range(2):
            reg = 8*q + 4*i
            a.vmem(f"buffer_load_dwordx4 a[{reg}:{reg+3}], v10, {srd(S_XF)}, s75 offen{LDSC}", "XR")
            if i == 0:
                a("s_add_u32 s75, s75, 16384")
    a.lab(sk)

def role_y(a):
    s_w, s_mb8, s_nbk = S_W, S_MB8, S_NBK
    a.vm = []
    y_rot(a)
    a("v_lshlrev_b32 v10, 4, v0")
    a("v_add_u32 v11, 0x10000, v10")
    ACC = 16
    for r in range(48):
        a(f"v_mov_b32 v{ACC+r}, 0")
    a("s_waitcnt vmcnt(8)")
    poll_check(a, [14], [12], "s68", sleep=6)
    a.stamp()
    a(f"s_mul_i32 s69, s{s_nbk}, {6*16*1024}")
    a(f"s_and_b32 s71, s{s_w}, 1")
    a("s_mul_i32 s71, s71, 49152")
    a("s_add_u32 s69, s69, s71")
    a(f"s_lshr_b32 s73, s{s_w}, 1")
    a("s_add_u32 s73, s73, s74")
    a(f"s_mul_i32 s72, s{s_w}, 3072")
    NG = 8
    def t_items(g):
        items = []
        for k in range(3):
            def f(k=k):
                if k == 0:
                    a(f"s_add_u32 s70, s73, {2*g}")
                    a("s_and_b32 s70, s70, 15")
                    a("s_lshl_b32 s70, s70, 10")
                    a("s_add_u32 s70, s70, s69")
                a(f"s_add_u32 m0, s72, {(12*g + k)*1024}")
                a(f"s_add_u32 s71, s70, {k*16384}")
                a.vmem(f"buffer_load_dwordx4 v10, {srd(S_TF)}, s71 offen{LDSC} lds", f"T{g}")
            items.append(f)
        return items
    PRE = OPT['TPRE']
    for g in range(PRE):
        for f in t_items(g): f()
    FA = 64
    def read_items(g):
        items = []
        for qq in range(2):
            q = 2*g + qq
            for j in range(6):
                r = FA + 48*(g & 1) + 24*qq + 4*j
                idx = q*6 + j
                if idx < 64:
                    items.append(lambda r=r, idx=idx: a(f"ds_read_b128 v[{r}:{r+3}], v10 offset:{idx*1024}"))
                else:
                    items.append(lambda r=r, idx=idx: a(f"ds_read_b128 v[{r}:{r+3}], v11 offset:{(idx-64)*1024}"))
        return items
    def mfma_items(g):
        items = []
        for qq in range(2):
            q = 2*g + qq
            for j in range(6):
                for i in range(2):
                    c = ACC + 8*j + 4*i
                    ra = FA + 48*(g & 1) + 24*qq + 4*j
                    rb_ = 8*q + 4*i
                    items.append(lambda c=c, ra=ra, rb_=rb_: a(f"v_mfma_f32_16x16x32_bf16 v[{c}:{c+3}], v[{ra}:{ra+3}], a[{rb_}:{rb_+3}], v[{c}:{c+3}]"))
        return items
    a.wait("T0")
    a("s_barrier")
    a.stamp()
    for f in read_items(0): f()
    for g in range(NG):
        if g + 1 < NG:
            a.wait(f"T{g+1}")
            a("s_waitcnt lgkmcnt(0)")
            a("s_barrier")
        else:
            a("s_waitcnt lgkmcnt(0)")
        side = read_items(g + 1) if g + 1 < NG else []
        dm = t_items(g + PRE) if g + PRE < NG else []
        seq = interleave(mfma_items(g), side)
        seq = interleave(seq, dm)
        for f in seq: f()
    a("s_nop 7")
    a("s_nop 1")
    a.stamp()
    a("v_and_b32 v1, 15, v0")
    a("v_lshrrev_b32 v2, 4, v0")
    a("v_mul_u32_u24 v3, 2752, v1")
    a("v_lshl_add_u32 v3, v2, 4, v3")
    a(f"s_lshl_b32 s70, s{s_mb8}, 7")
    a(f"s_lshl_b32 s71, s{s_w}, 5")
    a("s_add_u32 s70, s70, s71")
    a("s_mul_i32 s70, s70, 2752")
    a(f"s_mul_i32 s71, s{s_nbk}, 192")
    a("s_add_u32 s70, s70, s71")
    a(f"s_add_u32 s71, s70, {16*2752}")
    for p in range(3):
        if p == 1:
            a(f"s_cmp_eq_u32 s{s_nbk}, 14")
            a("s_cbranch_scc1 Y_done")
        for i in range(2):
            t0 = ACC + 8*(2*p) + 4*i
            t1 = ACC + 8*(2*p+1) + 4*i
            o = 160 + 4*(2*p+i)
            a(f"v_cvt_pk_bf16_f32 v{o}, v{t0}, v{t0+1}")
            a(f"v_cvt_pk_bf16_f32 v{o+1}, v{t0+2}, v{t0+3}")
            a(f"v_cvt_pk_bf16_f32 v{o+2}, v{t1}, v{t1+1}")
            a(f"v_cvt_pk_bf16_f32 v{o+3}, v{t1+2}, v{t1+3}")
            a(f"buffer_store_dwordx4 v[{o}:{o+3}], v3, {srd(S_OUT)}, s{70+i} offen offset:{64*p}{['', ' sc1', ' nt', ' sc0 sc1'][OPT['OST']]}")
    a.lab("Y_done")

def kd(name, vgpr, accum, sgpr=102):
    return f""".p2align 6
.amdhsa_kernel {name}
  .amdhsa_next_free_vgpr {vgpr}
  .amdhsa_next_free_sgpr {sgpr}
  .amdhsa_accum_offset {accum}
  .amdhsa_group_segment_fixed_size 0
  .amdhsa_kernarg_size 72
  .amdhsa_user_sgpr_count 2
  .amdhsa_user_sgpr_kernarg_segment_ptr 1
  .amdhsa_system_sgpr_workgroup_id_x 1
.end_amdhsa_kernel
"""

HEADER = open("cdna_kernels/" + NAME + ".s.ref").read().split("; Override launch")[0]

def build():
    a = A()
    K = NAME + "_kernel"
    out = HEADER
    out += "; @launch grid=(256,1,1) block=(256,1,1) lds=163840\n"
    out += '.amdgcn_target "amdgcn-amd-amdhsa--gfx950"\n.text\n'
    a.l.append(f".globl {K}\n.p2align 8\n.type {K},@function\n{K}:")
    a("s_cmp_ge_u32 s2, 256")
    a("s_cbranch_scc1 K_end")
    if STAMPS:
        a("s_memrealtime s[94:95]")
        a("s_memtime s[96:97]")
    prologue(a)
    a(f"s_cmp_eq_u32 s2, {253 if OPT['MAP'] == 2 else 250}")
    a("s_cbranch_scc0 K_np")
    a(f"s_cmp_eq_u32 s{S_W}, 0")
    a("s_cbranch_scc0 K_np")
    a("s_memrealtime s[62:63]")
    a("s_waitcnt lgkmcnt(0)")
    a("s_or_b32 s62, s62, 1")
    a("v_mov_b32 v2, s62")
    a("s_mov_b64 exec, 1")
    a(f"buffer_store_dword v2, off, {srd(S_DBG)}, 0 sc1")
    a("s_mov_b64 exec, -1")
    a.lab("K_np")
    if OPT['CPF']:
        a(f"s_cmp_eq_u32 s{S_W}, 3")
        a("s_cbranch_scc0 K_ncpf")
        a("s_getpc_b64 s[62:63]")
        a.lab("K_pc")
        a(f"s_sub_u32 s62, s62, K_pc-{K}")
        a("s_subb_u32 s63, s63, 0")
        a(f"s_mov_b32 s64, K_code_end-{K}-4")
        a("v_lshlrev_b32 v2, 7, v0")
        for k in range(4):
            a(f"v_add_u32 v3, {k*8192}, v2")
            a("v_min_u32 v3, s64, v3")
            a("global_load_dword v255, v3, s[62:63]")
        a.lab("K_ncpf")
    if STAMPS:
        a("s_mov_b32 s76, s94")
        a.nst = 1
    a.stamp()
    a("s_and_b32 s62, s2, 7")
    a("s_lshr_b32 s63, s2, 3")
    a("s_and_b32 s64, s62, 3")
    a("s_lshl_b32 s64, s64, 2")
    a("s_and_b32 s65, s63, 3")
    a(f"s_add_u32 s{S_MB8}, s64, s65")
    a("s_lshr_b32 s64, s62, 2")
    a("s_lshl_b32 s64, s64, 3")
    a("s_lshr_b32 s65, s63, 2")
    a(f"s_add_u32 s{S_NBK}, s64, s65")
    if OPT['MAP'] == 0:
        a("s_lshr_b32 s64, s62, 1")
        a("s_and_b32 s65, s64, 1")
        a("s_sub_u32 s65, 6, s65")
        a("s_lshl_b32 s65, s65, 2")
        a("s_cmp_lt_u32 s63, s65")
        a("s_cbranch_scc0 K_notT")
        a("s_and_b32 s66, s62, 1")
        a("s_lshl_b32 s66, s66, 2")
        a("s_and_b32 s67, s63, 3")
        a(f"s_add_u32 s{S_A}, s66, s67")
        a("s_mul_i32 s64, s64, 11")
        a("s_add_u32 s64, s64, 1")
        a("s_lshr_b32 s64, s64, 1")
        a("s_lshr_b32 s66, s63, 2")
        a(f"s_add_u32 s{S_B}, s64, s66")
        a("s_mul_i32 s67, s67, 11")
        a("s_lshr_b32 s67, s67, 2")
        a("s_lshl_b32 s66, s66, 1")
        a("s_add_u32 s94, s67, s66")
        if OPT['SKEW']:
            a("s_and_b32 s66, s62, 1")
            a("s_mul_i32 s66, s66, 5")
            a("s_add_u32 s94, s94, s66")
    elif OPT['MAP'] == 1:
        a("s_mov_b32 s65, 22")
        a("s_cmp_lt_u32 s63, s65")
        a("s_cbranch_scc0 K_notT")
        a("s_mul_i32 s64, s62, 22")
        a("s_add_u32 s64, s64, s63")
        a(f"s_lshr_b32 s{S_B}, s64, 3")
        a(f"s_and_b32 s{S_A}, s64, 7")
        a(f"s_mul_i32 s67, s{S_A}, 11")
        a("s_lshr_b32 s67, s67, 3")
        a(f"s_and_b32 s66, s{S_B}, 3")
        a("s_mul_i32 s66, s66, 3")
        a("s_add_u32 s94, s67, s66")
    else:
        a("s_cmp_ge_u32 s62, 6")
        a("s_cbranch_scc1 K_xr")
        a("s_cmp_lt_u32 s62, 2")
        a("s_cselect_b32 s65, 30, 29")
        a("s_cmp_lt_u32 s63, s65")
        a("s_cbranch_scc0 K_spare")
        a("s_min_u32 s66, s62, 2")
        a("s_mul_i32 s64, s62, 29")
        a("s_add_u32 s64, s64, s66")
        a("s_add_u32 s64, s64, s63")
        a(f"s_lshr_b32 s{S_B}, s64, 3")
        a(f"s_and_b32 s{S_A}, s64, 7")
        a(f"s_mul_i32 s67, s{S_A}, 11")
        a("s_lshr_b32 s67, s67, 3")
        a(f"s_and_b32 s66, s{S_B}, 3")
        a("s_mul_i32 s66, s66, 3")
        a("s_add_u32 s94, s67, s66")
    nst0 = a.nst
    if OPT['DIAG'] == 2:
        a("s_branch K_fin")
    role_T(a, S_A, S_B, 94)
    if OPT['DIAG']:
        a.nst = 10
    nstT = a.nst
    a("s_branch K_y")
    a.lab("K_notT")
    if OPT['MAP'] == 2:
        a.lab("K_xr")
        a(f"s_and_b32 s{S_A}, s63, 3")
        a("s_lshr_b32 s65, s63, 2")
        a("s_sub_u32 s64, s62, 6")
        a("s_lshl_b32 s64, s64, 3")
        a(f"s_add_u32 s{S_B}, s64, s65")
        a(f"s_lshl_b32 s73, s{S_A}, 1")
        a("s_add_u32 s73, s73, s65")
    else:
        a("s_sub_u32 s63, s63, s65")
        a("s_cmp_lt_u32 s63, 8")
        a("s_cbranch_scc0 K_spare")
        if OPT['XMAP'] == 1:
            a(f"s_and_b32 s{S_A}, s63, 3")
            a("s_lshl_b32 s64, s62, 1")
            a("s_lshr_b32 s65, s63, 2")
            a(f"s_add_u32 s{S_B}, s64, s65")
            a(f"s_lshl_b32 s73, s{S_A}, 1")
            a("s_add_u32 s73, s73, s65")
            a("s_add_u32 s73, s73, s62")
        else:
            a("s_and_b32 s64, s62, 1")
            a("s_lshl_b32 s64, s64, 1")
            a("s_and_b32 s65, s63, 1")
            a(f"s_add_u32 s{S_A}, s64, s65")
            a("s_lshr_b32 s64, s62, 1")
            a("s_lshl_b32 s64, s64, 2")
            a("s_lshr_b32 s65, s63, 1")
            a(f"s_add_u32 s{S_B}, s64, s65")
            a("s_and_b32 s64, s63, 1")
            a("s_lshl_b32 s64, s64, 2")
            a("s_lshr_b32 s65, s63, 1")
            a("s_lshl_b32 s65, s65, 1")
            a("s_add_u32 s73, s64, s65")
            a("s_and_b32 s64, s62, 1")
            a("s_add_u32 s73, s73, s64")
    a.vm = []
    a.nst = nst0
    if OPT['DIAG'] == 1:
        a("s_branch K_fin")
    role_xr(a, S_A, S_B, 73)
    if OPT['DIAG'] == 2:
        a("s_branch K_fin")
    a("s_branch K_pre")
    a.lab("K_spare")
    if OPT['DIAG']:
        a("s_branch K_fin")
    a.vm = []
    n2 = a.nst
    a.nst = nst0
    nonce_get_all(a, 9)
    a("s_waitcnt vmcnt(0)")
    nonce_check_all(a, 9)
    while STAMPS and a.nst < n2:
        a.stamp()
    a.lab("K_pre")
    a.vm = []
    a(f"s_cmp_ge_u32 s{S_NBK}, 15")
    a("s_cbranch_scc1 K_fin")
    y_f3_addr(a, 18, 19)
    a("s_nop 0")
    wg_poll(a, 19, 18, "s67", sleep=8)
    y_xr_loads(a)
    y_f2_addr(a)
    wg_poll(a, 14, 12, "s68", sleep=4)
    a(f"v_mov_b32 v14, s{S_NONCE}")
    while STAMPS and a.nst < nstT:
        a.stamp()
    a.lab("K_y")
    a.nst = nstT
    a(f"s_cmp_ge_u32 s{S_NBK}, 15")
    a("s_cbranch_scc1 K_fin")
    role_y(a)
    a.lab("K_fin")
    if OPT['DBGSPAN']:
        a(f"s_cmp_eq_u32 s{S_W}, 0")
        a("s_cbranch_scc0 K_end")
        a("s_waitcnt vmcnt(0)")
        a("s_memrealtime s[62:63]")
        a("s_waitcnt lgkmcnt(0)")
        a(f"s_sub_u32 s62, s62, s{S_NONCE}")
        a("v_mov_b32 v2, s62")
        a("s_mov_b64 exec, 1")
        a(f"buffer_atomic_umax v2, off, {srd(S_DBG)}, 0 offset:4")
        a("s_waitcnt vmcnt(0)")
    stamp_flush(a)
    a.lab("K_end")
    a("s_endpgm")
    a.lab("K_code_end")
    out += a.text()
    out += '.section .rodata,"a"\n'
    out += kd(K, 512, 256)
    return out

if __name__ == "__main__":
    for arg in list(sys.argv):
        if arg.startswith("-O"):
            k, v = arg[2:].split("=")
            OPT[k] = int(v)
            sys.argv.remove(arg)
    if "--plain" in sys.argv:
        LDSC = ""
        sys.argv.remove("--plain")
    if "--stamps" in sys.argv:
        STAMPS = True
        sys.argv.remove("--stamps")
    dst = sys.argv[1] if len(sys.argv) > 1 else "cdna_kernels/" + NAME + ".s"
    open(dst, "w").write(build())
    print("wrote", dst)
```

```python
import sys

NAME = "standalone__weight_only_int_quip__prompt"
M, D, F = 2048, 512, 1376
WQF_OFF, WQF_SZ = 0x000000, 32 * 44 * 1024
XF_OFF, XF_SZ = 0x200000, 128 * 16 * 1024
TF_OFF, TF_SZ = 0x400000, 86 * 16 * 1024
FL_OFF, FL_SZ = 0x600000, 0x4000
F1_B, F2_B, F3_B = 0x0000, 0x1000, 0x2000
STAMPS = False
OPT = dict(NV0=0, NV1=3, WPRE=4, TPRE=4, XPRE=15, SKEW=1, DIAG=0, MAP=0, XMAP=0, CPF=1, OST=1, DBGSPAN=0, XQ=4, F1AT=9, F2S=0, F2G=1, PNT=0, VNT=0, SNT=0)
SPIN_MAX = 200000
LDSC = ' sc1'


class A:
    def __init__(s):
        s.l = []
        s.vm = []
        s.nst = 0
        s.uid = 0
    def __call__(s, x):
        s.l.append("  " + x)
    def lab(s, x):
        s.l.append(x + ":")
    def text(s):
        return "\n".join(s.l) + "\n"
    def vmem(s, x, tag):
        s(x); s.vm.append(tag)
    def wait(s, tag, extra=""):
        idx = [i for i, t in enumerate(s.vm) if t == tag]
        if not idx:
            return
        n = len(s.vm) - 1 - idx[-1]
        assert n <= 63, n
        s(f"s_waitcnt vmcnt({n}){extra}")
        s.vm = s.vm[idx[-1] + 1:]
    def waitall(s):
        s("s_waitcnt vmcnt(0)"); s.vm = []
    def new(s, p):
        s.uid += 1
        return f"{p}_{s.uid}"
    def stamp(s):
        if not STAMPS: return
        i = s.nst; s.nst += 1
        assert i < 24, i
        s("s_memrealtime s[100:101]")
        s("s_waitcnt lgkmcnt(0)")
        s(f"s_mov_b32 s{76+i}, s100")

S_X, S_QW, S_SC, S_ZR, S_U, S_V, S_OUT, S_WQF, S_XF, S_TF, S_FL, S_DBG = [8 + 4*i for i in range(12)]
S_W, S_NONCE, S_A, S_B, S_MB8, S_NBK = 56, 57, 58, 59, 60, 61
T0 = 62
def srd(i): return f"s[{i}:{i+3}]"

def prologue(a):
    a("s_load_dwordx16 s[76:91], s[0:1], 0")
    a("s_load_dwordx2 s[92:93], s[0:1], 64")
    a("v_lshrrev_b32 v1, 6, v0")
    a("v_and_b32 v0, 63, v0")
    a(f"v_readfirstlane_b32 s{S_W}, v1")
    a("s_waitcnt lgkmcnt(0)")
    tbl = [(S_X, 76, M*D*2), (S_QW, 78, D*F*4), (S_SC, 80, 4*F*2), (S_ZR, 82, 4*F*2),
           (S_U, 84, D*D*2), (S_V, 86, F*F*2), (S_OUT, 88, M*F*2), (S_DBG, 90, 256)]
    for r, p, sz in tbl:
        a(f"s_mov_b32 s{r}, s{p}")
        a(f"s_and_b32 s{r+1}, s{p+1}, 0xffff")
        a(f"s_mov_b32 s{r+2}, {sz}")
        a(f"s_mov_b32 s{r+3}, 0x20000")
    for r, off, sz in [(S_WQF, WQF_OFF, WQF_SZ), (S_XF, XF_OFF, XF_SZ), (S_TF, TF_OFF, TF_SZ), (S_FL, FL_OFF, FL_SZ)]:
        a(f"s_add_u32 s{r}, s92, {off}")
        a(f"s_addc_u32 s{r+1}, s93, 0")
        a(f"s_and_b32 s{r+1}, s{r+1}, 0xffff")
        a(f"s_mov_b32 s{r+2}, {sz}")
        a(f"s_mov_b32 s{r+3}, 0x20000")

def stamp_flush(a):
    if not STAMPS: return
    a.stamp()
    a("s_waitcnt vmcnt(0)")
    a.stamp()
    n = a.nst
    a("s_memtime s[98:99]")
    a("s_load_dwordx2 s[62:63], s[0:1], 64")
    a("s_waitcnt lgkmcnt(0)")
    a("s_add_u32 s8, s62, 0x800000")
    a("s_addc_u32 s9, s63, 0")
    a("s_and_b32 s9, s9, 0xffff")
    a("s_mov_b32 s10, 0x100000")
    a("s_mov_b32 s11, 0x20000")
    a("s_lshl_b32 s64, s2, 2")
    a(f"s_add_u32 s64, s64, s{S_W}")
    a("s_lshl_b32 s64, s64, 7")
    a("s_mov_b64 exec, 1")
    a("v_mov_b32 v3, 0")
    for i in range(n):
        a(f"v_mov_b32 v4, s{76+i}")
        a(f"buffer_store_dword v4, v3, s[8:11], s64 offen offset:{4*i}")
        a("s_nop 1")
    a("s_sub_u32 s98, s98, s96")
    a("v_mov_b32 v4, s98")
    a("buffer_store_dword v4, v3, s[8:11], s64 offen offset:120")

def nonce_get_all(a, vreg):
    a.vmem(f"buffer_load_dword v{vreg}, off, {srd(S_DBG)}, 0 sc1", "N")

def nonce_check_all(a, vreg):
    L, Dn = a.new("NC"), a.new("ND")
    a(f"v_readfirstlane_b32 s{S_NONCE}, v{vreg}")
    a(f"s_mov_b32 s{T0}, {SPIN_MAX}")
    a.lab(L)
    a(f"s_cmp_lg_u32 s{S_NONCE}, 0")
    a(f"s_cbranch_scc1 {Dn}")
    a(f"s_sub_u32 s{T0}, s{T0}, 1")
    a(f"s_cbranch_scc1 {Dn}")
    a("s_sleep 2")
    a(f"buffer_load_dword v{vreg}, off, {srd(S_DBG)}, 0 sc1")
    a("s_waitcnt vmcnt(0)")
    a(f"v_readfirstlane_b32 s{S_NONCE}, v{vreg}")
    a(f"s_branch {L}")
    a.lab(Dn)

def nonce_get(a, vreg, after_issue=None):
    sk = a.new("NG")
    a(f"s_cmp_eq_u32 s{S_W}, 0")
    a(f"s_cbranch_scc0 {sk}")
    a(f"buffer_load_dword v{vreg}, off, {srd(S_DBG)}, 0 sc1")
    a.lab(sk)

def nonce_check(a, vreg):
    L, Dn = a.new("NC"), a.new("ND")
    a(f"s_cmp_eq_u32 s{S_W}, 0")
    a(f"s_cbranch_scc0 {Dn}")
    a(f"v_readfirstlane_b32 s{S_NONCE}, v{vreg}")
    a(f"s_mov_b32 s{T0}, {SPIN_MAX}")
    a.lab(L)
    a(f"s_cmp_lg_u32 s{S_NONCE}, 0")
    a(f"s_cbranch_scc1 {Dn}")
    a(f"s_sub_u32 s{T0}, s{T0}, 1")
    a(f"s_cbranch_scc1 {Dn}")
    a("s_sleep 2")
    a(f"buffer_load_dword v{vreg}, off, {srd(S_DBG)}, 0 sc1")
    a("s_waitcnt vmcnt(0)")
    a(f"v_readfirstlane_b32 s{S_NONCE}, v{vreg}")
    a(f"s_branch {L}")
    a.lab(Dn)

def poll_issue(a, vreg, voff, soff, tag):
    a.vmem(f"buffer_load_dword v{vreg}, v{voff}, {srd(S_FL)}, {soff} offen sc1", tag)

def poll_check(a, regs, voffs, soff, sleep=4):
    L, Dn = a.new("PL"), a.new("PD")
    a(f"s_mov_b32 s{T0}, {SPIN_MAX}")
    a.lab(L)
    a(f"v_cmp_ne_u32 s[{T0+2}:{T0+3}], s{S_NONCE}, v{regs[0]}")
    for r in regs[1:]:
        a(f"v_cmp_ne_u32 s[{T0+4}:{T0+5}], s{S_NONCE}, v{r}")
        a(f"s_or_b64 s[{T0+2}:{T0+3}], s[{T0+2}:{T0+3}], s[{T0+4}:{T0+5}]")
    a(f"s_cmp_eq_u64 s[{T0+2}:{T0+3}], 0")
    a(f"s_cbranch_scc1 {Dn}")
    a(f"s_sub_u32 s{T0}, s{T0}, 1")
    a(f"s_cbranch_scc1 {Dn}")
    a(f"s_sleep {sleep}")
    for r, vo in zip(regs, voffs):
        a(f"buffer_load_dword v{r}, v{vo}, {srd(S_FL)}, {soff} offen sc1")
    a("s_waitcnt vmcnt(0)")
    a(f"s_branch {L}")
    a.lab(Dn)

def wg_flag(a, soff, vtmp):
    sk = a.new("WF")
    a("s_barrier")
    a(f"s_cmp_eq_u32 s{S_W}, 0")
    a(f"s_cbranch_scc0 {sk}")
    a(f"v_mov_b32 v{vtmp}, s{S_NONCE}")
    a("s_mov_b64 exec, 1")
    a(f"buffer_store_dword v{vtmp}, off, {srd(S_FL)}, {soff} sc1")
    a("s_mov_b64 exec, -1")
    a.lab(sk)

def wg_poll(a, reg, voff, soff, sleep=4, reg2=None, voff2=None):
    L, Dn, sk = a.new("PL"), a.new("PD"), a.new("PS")
    a(f"s_cmp_eq_u32 s{S_W}, 0")
    a(f"s_cbranch_scc0 {sk}")
    a(f"s_mov_b32 s{T0}, {SPIN_MAX}")
    a.lab(L)
    a(f"buffer_load_dword v{reg}, v{voff}, {srd(S_FL)}, {soff} offen sc1")
    if reg2 is not None:
        a(f"buffer_load_dword v{reg2}, v{voff2}, {srd(S_FL)}, {soff} offen sc1")
    a("s_waitcnt vmcnt(0)")
    a(f"v_cmp_ne_u32 s[{T0+2}:{T0+3}], s{S_NONCE}, v{reg}")
    if reg2 is not None:
        a(f"v_cmp_ne_u32 s[{T0+4}:{T0+5}], s{S_NONCE}, v{reg2}")
        a(f"s_or_b64 s[{T0+2}:{T0+3}], s[{T0+2}:{T0+3}], s[{T0+4}:{T0+5}]")
    a(f"s_cmp_eq_u64 s[{T0+2}:{T0+3}], 0")
    a(f"s_cbranch_scc1 {Dn}")
    a(f"s_sub_u32 s{T0}, s{T0}, 1")
    a(f"s_cbranch_scc1 {Dn}")
    a(f"s_sleep {sleep}")
    a(f"s_branch {L}")
    a.lab(Dn)
    a.lab(sk)
    a("s_barrier")

def poll_check_mask(a, reg, voff, soff, smask, sleep=4):
    L, Dn = a.new("PM"), a.new("PN")
    a(f"s_mov_b32 s{T0}, {SPIN_MAX}")
    a.lab(L)
    a(f"v_cmp_ne_u32 s[{T0+2}:{T0+3}], s{S_NONCE}, v{reg}")
    a(f"s_and_b32 s{T0+2}, s{T0+2}, s{smask}")
    a(f"s_cbranch_scc0 {Dn}")
    a(f"s_sub_u32 s{T0}, s{T0}, 1")
    a(f"s_cbranch_scc1 {Dn}")
    a(f"s_sleep {sleep}")
    a(f"buffer_load_dword v{reg}, v{voff}, {srd(S_FL)}, {soff} offen sc1")
    a("s_waitcnt vmcnt(0)")
    a(f"s_branch {L}")
    a.lab(Dn)

def flag_store(a, soff, vtmp, vzero):
    a(f"v_mov_b32 v{vtmp}, s{S_NONCE}")
    a("s_mov_b64 exec, 1")
    a.vmem(f"buffer_store_dword v{vtmp}, off, {srd(S_FL)}, {soff} sc1", "F")
    a("s_mov_b64 exec, -1")

def prep_issue(a, s_db, s_kb, V):
    t = T0
    a(f"v_lshrrev_b32 v{V+1}, 3, v0")
    a(f"v_and_b32 v{V+2}, 7, v0")
    a(f"v_mul_u32_u24 v{V+3}, 5504, v{V+1}")
    a(f"v_lshl_add_u32 v{V+3}, v{V+2}, 4, v{V+3}")
    a(f"v_lshlrev_b32 v{V+4}, 3, v{V+2}")
    a(f"s_cmp_eq_u32 s{s_kb}, 21")
    a(f"s_cselect_b32 s{t}, 0x40000000, 128")
    a(f"s_cselect_b32 s{t+1}, 0x40000000, 64")
    a(f"v_add_u32 v{V+5}, s{t}, v{V+3}")
    a(f"v_add_u32 v{V+6}, s{t+1}, v{V+4}")
    a(f"s_mul_i32 s{t+2}, s{s_db}, 88064")
    a(f"s_lshl_b32 s{t+3}, s{s_kb}, 8")
    a(f"s_add_u32 s{t+2}, s{t+2}, s{t+3}")
    a(f"s_add_u32 s{t+3}, s{t+2}, 44032")
    a(f"s_lshr_b32 s{t+4}, s{s_db}, 3")
    a(f"s_mul_i32 s{t+4}, s{t+4}, 2752")
    a(f"s_lshl_b32 s{t+5}, s{s_kb}, 7")
    a(f"s_add_u32 s{t+4}, s{t+4}, s{t+5}")
    a.vmem(f"buffer_load_dwordx4 v[{V+8}:{V+11}], v{V+3}, {srd(S_QW)}, s{t+2} offen{' nt' if OPT['PNT'] else ''}", "P")
    a.vmem(f"buffer_load_dwordx4 v[{V+12}:{V+15}], v{V+5}, {srd(S_QW)}, s{t+2} offen{' nt' if OPT['PNT'] else ''}", "P")
    a.vmem(f"buffer_load_dwordx4 v[{V+16}:{V+19}], v{V+3}, {srd(S_QW)}, s{t+3} offen{' nt' if OPT['PNT'] else ''}", "P")
    a.vmem(f"buffer_load_dwordx4 v[{V+20}:{V+23}], v{V+5}, {srd(S_QW)}, s{t+3} offen{' nt' if OPT['PNT'] else ''}", "P")
    a.vmem(f"buffer_load_dwordx2 v[{V+24}:{V+25}], v{V+4}, {srd(S_SC)}, s{t+4} offen", "P")
    a.vmem(f"buffer_load_dwordx2 v[{V+26}:{V+27}], v{V+6}, {srd(S_SC)}, s{t+4} offen", "P")
    a.vmem(f"buffer_load_dwordx2 v[{V+28}:{V+29}], v{V+4}, {srd(S_ZR)}, s{t+4} offen", "P")
    a.vmem(f"buffer_load_dwordx2 v[{V+30}:{V+31}], v{V+6}, {srd(S_ZR)}, s{t+4} offen", "P")
    a(f"v_lshrrev_b32 v{V+7}, 2, v{V+2}")
    a(f"v_lshlrev_b32 v{V+7}, 10, v{V+7}")
    a(f"v_and_b32 v{V+32}, 3, v{V+2}")
    a(f"v_lshl_add_u32 v{V+7}, v{V+32}, 8, v{V+7}")
    a(f"v_lshl_add_u32 v{V+7}, v{V+1}, 4, v{V+7}")

def prep_finish(a, s_db, s_kb, V):
    t = T0
    a(f"s_mul_i32 s{t}, s{s_db}, 44")
    a(f"s_lshl_b32 s{t+1}, s{s_kb}, 1")
    a(f"s_add_u32 s{t}, s{t}, s{t+1}")
    a(f"s_lshl_b32 s{t}, s{t}, 10")
    a(f"s_mov_b32 s{t+1}, 0xffff0000")
    for i in range(4):
        a(f"v_lshlrev_b32 v{V+32+2*i}, 16, v{V+24+i}")
        a(f"v_and_b32 v{V+33+2*i}, s{t+1}, v{V+24+i}")
        a(f"v_lshlrev_b32 v{V+40+2*i}, 16, v{V+28+i}")
        a(f"v_and_b32 v{V+41+2*i}, s{t+1}, v{V+28+i}")
    for rh in range(2):
        q = V + 8 + 8 * rh
        for i in range(8):
            a(f"v_cvt_f32_i32 v{q+i}, v{q+i}")
        for i in range(8):
            a(f"v_sub_f32 v{q+i}, v{q+i}, v{V+40+i}")
        for i in range(4):
            a(f"v_cvt_pk_bf16_f32 v{V+48+i}, v{q+2*i}, v{q+2*i+1}")
        for i in range(4):
            a(f"v_lshlrev_b32 v{q+2*i}, 16, v{V+48+i}")
            a(f"v_and_b32 v{q+2*i+1}, s{t+1}, v{V+48+i}")
        for i in range(8):
            a(f"v_mul_f32 v{q+i}, v{q+i}, v{V+32+i}")
        o = V + 52 + 4 * rh
        for i in range(4):
            a(f"v_cvt_pk_bf16_f32 v{o+i}, v{q+2*i}, v{q+2*i+1}")
        a.vmem(f"buffer_store_dwordx4 v[{o}:{o+3}], v{V+7}, {srd(S_WQF)}, s{t} offen offset:{128*rh} sc1", "S")

def interleave(main, side):
    out = []
    n, m = len(main), len(side)
    k = 0
    for i, x in enumerate(main):
        out.append(x)
        while k < m and (k + 1) * n <= (i + 1) * m + (n - 1) * 0:
            out.append(side[k]); k += 1
    out.extend(side[k:])
    return out

def role_xr(a, s_eb, s_mb8, s_rot):
    s_w = S_W
    SWE, SWM, UB, XB, LB, TT = 64, 65, 66, 67, 68, 69
    a(f"s_and_b32 s{SWE}, s{s_w}, 1")
    a(f"s_lshr_b32 s{SWM}, s{s_w}, 1")
    a("v_lshrrev_b32 v1, 4, v0")
    a("v_and_b32 v2, 15, v0")
    a("v_lshlrev_b32 v3, 1, v1")
    a("v_xor_b32 v4, v2, v3")
    a("v_xor_b32 v5, 8, v4")
    a("v_lshlrev_b32 v6, 10, v1")
    a("v_lshl_add_u32 v10, v4, 4, v6")
    a("v_lshl_add_u32 v11, v5, 4, v6")
    a("v_lshrrev_b32 v1, 3, v0")
    a("v_and_b32 v2, 7, v0")
    a("v_lshrrev_b32 v3, 1, v1")
    a("v_xor_b32 v4, v2, v3")
    a("v_xor_b32 v5, 4, v4")
    a("v_lshlrev_b32 v6, 10, v1")
    a("v_lshl_add_u32 v12, v4, 4, v6")
    a("v_lshl_add_u32 v13, v5, 4, v6")
    a(f"s_lshl_b32 s{UB}, s{s_w}, 14")
    a(f"s_lshl_b32 s{TT}, s{s_eb}, 8")
    a(f"s_add_u32 s{UB}, s{UB}, s{TT}")
    a(f"s_lshl_b32 s{XB}, s{s_mb8}, 17")
    a(f"s_lshl_b32 s{TT}, s{s_w}, 15")
    a(f"s_add_u32 s{XB}, s{XB}, s{TT}")
    a(f"s_lshl_b32 s{LB}, s{s_w}, 12")
    NSL = 4
    def dma_items(st):
        slot = st % NSL
        items = []
        def setup():
            a(f"s_add_u32 s70, s{s_rot}, {st}")
            a("s_and_b32 s70, s70, 7")
            a("s_lshl_b32 s71, s70, 16")
            a(f"s_add_u32 s71, s71, s{UB}")
            a("s_lshl_b32 s72, s70, 7")
            a(f"s_add_u32 s72, s72, s{XB}")
        for aa in range(4):
            def f(aa=aa):
                if aa == 0: setup()
                a(f"s_add_u32 m0, s{LB}, {slot*32768 + aa*1024}")
                a(f"s_add_u32 s{TT}, s71, {aa*4096}")
                a.vmem(f"buffer_load_dwordx4 v{10 + (aa>>1)}, {srd(S_U)}, s{TT} offen lds", f"X{st}")
            items.append(f)
        for bb in range(4):
            def f(bb=bb):
                a(f"s_add_u32 m0, s{LB}, {slot*32768 + 16384 + bb*1024}")
                a(f"s_add_u32 s{TT}, s72, {bb*8192}")
                a.vmem(f"buffer_load_dwordx4 v{12 + (bb&1)}, {srd(S_X)}, s{TT} offen lds", f"X{st}")
            items.append(f)
        return items
    XPRE = OPT['XPRE']
    if XPRE == 15:
        for f in dma_items(0): f()
        d1 = dma_items(1)
        for f in d1[:4]: f()
    else:
        for st in range(XPRE):
            for f in dma_items(st): f()
    a.stamp()
    a("v_lshrrev_b32 v1, 4, v0")
    a("v_bfe_u32 v2, v0, 2, 2")
    a("v_and_b32 v3, 3, v0")
    a("v_lshl_add_u32 v4, v1, 3, v2")
    a("v_lshlrev_b32 v4, 8, v4")
    a("v_and_b32 v5, 1, v1")
    a("v_lshlrev_b32 v5, 3, v5")
    a("v_lshl_add_u32 v5, v2, 1, v5")
    a("v_lshrrev_b32 v6, 1, v3")
    a(f"s_lshl_b32 s{TT}, s{SWE}, 3")
    a(f"v_or_b32 v6, s{TT}, v6")
    a("v_xor_b32 v5, v5, v6")
    a("v_lshl_add_u32 v4, v5, 4, v4")
    a("v_and_b32 v6, 1, v3")
    a("v_lshl_add_u32 v4, v6, 3, v4")
    for i in range(4):
        a(f"v_xor_b32 v{16+i}, {i<<5}, v4")
        a(f"v_add_u32 v{20+i}, 0x10000, v{16+i}")
    a("v_and_b32 v2, 15, v0")
    a("v_lshrrev_b32 v3, 1, v2")
    a("v_xor_b32 v3, v3, v1")
    a("v_lshlrev_b32 v4, 7, v2")
    a("v_lshl_add_u32 v4, v3, 4, v4")
    a(f"s_lshl_b32 s{TT}, s{SWM}, 13")
    a(f"s_add_u32 s{TT}, s{TT}, 16384")
    a(f"v_add_u32 v24, s{TT}, v4")
    a("v_xor_b32 v25, 64, v24")
    a("v_add_u32 v26, 0x10000, v24")
    a("v_add_u32 v27, 0x10000, v25")
    ACC = 64
    for r in range(64):
        a(f"v_mov_b32 v{ACC+r}, 0")
    def read_items(hh):
        st, h2, buf = hh >> 1, hh & 1, hh & 1
        slot = st % NSL
        hi = slot >> 1
        so = (slot & 1) * 32768
        FA = 128 + 32 * buf
        FB = 144 + 32 * buf
        items = []
        for j in range(4):
            items.append(lambda j=j: a(f"ds_read_b128 v[{FB+4*j}:{FB+4*j+3}], v{24+2*hi+h2} offset:{so + j*2048}"))
        for i in range(4):
            for q in range(2):
                items.append(lambda i=i, q=q: a(f"ds_read_b64_tr_b16 v[{FA+4*i+2*q}:{FA+4*i+2*q+1}], v{16+4*hi+i} offset:{so + h2*8192 + q*1024}"))
        return items
    def mfma_items(buf):
        FA = 128 + 32 * buf
        FB = 144 + 32 * buf
        items = []
        for i in range(4):
            for j in range(4):
                c = ACC + 16*i + 4*j
                items.append(lambda c=c, i=i, j=j: a(f"v_mfma_f32_16x16x32_bf16 v[{c}:{c+3}], v[{FA+4*i}:{FA+4*i+3}], v[{FB+4*j}:{FB+4*j+3}], v[{c}:{c+3}]"))
        return items
    a.wait("X0")
    a("s_barrier")
    a.stamp()
    for f in read_items(0): f()
    for hh in range(16):
        st = hh >> 1
        a("s_waitcnt lgkmcnt(0)")
        if (hh & 1) and st + 1 < 8:
            a.wait(f"X{st+1}")
            a("s_barrier")
        side = []
        if hh + 1 < 16:
            side += read_items(hh + 1)
        dm = []
        if XPRE == 15 and hh < 2:
            if hh == 0:
                dm = d1[4:] + dma_items(2)
            else:
                dm = dma_items(3)[:4]
        elif XPRE == 3 or XPRE == 15:
            if hh & 1:
                S = st + 3
                if S < 8: dm = dma_items(S)[:4]
            else:
                S = st + 2
                if st >= 1 and S < 8: dm = dma_items(S)[4:]
        else:
            S = st + 2
            if S < 8:
                dm = dma_items(S)[:4] if (hh & 1) == 0 else dma_items(S)[4:]
        if hh == 9:
            dm = dm + [lambda: nonce_get_all(a, 28)]
        m = mfma_items(hh & 1)
        seq = interleave(m, side)
        seq = interleave(seq, dm)
        for f in seq: f()
    a("s_nop 7")
    a("s_nop 1")
    a.stamp()
    a("v_lshlrev_b32 v1, 4, v0")
    a(f"s_lshl_b32 s70, s{s_mb8}, 7")
    a(f"s_lshl_b32 s71, s{SWM}, 6")
    a("s_add_u32 s70, s70, s71")
    a(f"s_lshl_b32 s71, s{s_eb}, 2")
    a("s_add_u32 s70, s70, s71")
    a(f"s_lshl_b32 s71, s{SWE}, 1")
    a("s_add_u32 s70, s70, s71")
    a("s_lshl_b32 s70, s70, 10")
    for j in range(4):
        a(f"s_add_u32 s71, s70, {j*16*1024}")
        for sh in range(2):
            t0 = ACC + 16*(2*sh) + 4*j
            t1 = ACC + 16*(2*sh+1) + 4*j
            o = 128 + 4*(2*j+sh)
            a(f"v_cvt_pk_bf16_f32 v{o}, v{t0}, v{t0+1}")
            a(f"v_cvt_pk_bf16_f32 v{o+1}, v{t0+2}, v{t0+3}")
            a(f"v_cvt_pk_bf16_f32 v{o+2}, v{t1}, v{t1+1}")
            a(f"v_cvt_pk_bf16_f32 v{o+3}, v{t1+2}, v{t1+3}")
            a.vmem(f"buffer_store_dwordx4 v[{o}:{o+3}], v1, {srd(S_XF)}, s71 offen offset:{sh*1024} sc1", "S")
    a.wait("S")
    nonce_check_all(a, 28)
    a(f"s_lshl_b32 s70, s{s_mb8}, 7")
    a(f"s_lshl_b32 s71, s{s_eb}, 2")
    a("s_add_u32 s70, s70, s71")
    a(f"s_add_u32 s70, s70, {F3_B}")
    wg_flag(a, "s70", 2)
    a.stamp()

def role_T(a, s_rb, s_cb, s_rot):
    s_w = S_W
    NSL = 10
    DBS, DBS2 = 68, 95
    TB, CBO, LB, WBASE = 69, 70, 71, 72
    a("v_lshrrev_b32 v1, 3, v0")
    a("v_and_b32 v2, 7, v0")
    a("v_bfe_u32 v3, v1, 1, 1")
    a("v_lshlrev_b32 v3, 2, v3")
    a("v_xor_b32 v2, v2, v3")
    a("v_mul_u32_u24 v10, 2752, v1")
    a("v_lshl_add_u32 v10, v2, 4, v10")
    a(f"s_mul_i32 s73, s{s_w}, 11")
    a(f"s_add_u32 s{TB}, s{s_rot}, s73")
    a(f"s_lshl_b32 s{CBO}, s{s_cb}, 7")
    a(f"s_mul_i32 s{LB}, s{s_w}, {NSL*4096}")
    def step_t(i, dst):
        a(f"s_add_u32 s{dst}, s{TB}, {i}")
        a(f"s_cmp_ge_u32 s{dst}, 44")
        a(f"s_cselect_b32 s75, 44, 0")
        a(f"s_sub_u32 s{dst}, s{dst}, s75")
    def issueV(i):
        slot = i % NSL
        step_t(i, 73)
        a("s_lshr_b32 s74, s73, 1")
        a("s_lshl_b32 s74, s74, 6")
        a("s_and_b32 s73, s73, 1")
        a("s_lshl_b32 s73, s73, 4")
        a("s_add_u32 s73, s73, s74")
        a("s_mul_i32 s73, s73, 2752")
        a(f"s_add_u32 s73, s73, s{CBO}")
        for p, ro in enumerate((0, 8, 32, 40)):
            a(f"s_add_u32 m0, s{LB}, {slot*4096 + p*1024}")
            a(f"s_add_u32 s74, s73, {ro*2752}")
            a.vmem(f"buffer_load_dwordx4 v10, {srd(S_V)}, s74 offen{' nt' if OPT['VNT'] else ''} lds", f"V{i}")
    def addr_setup():
        a("v_lshrrev_b32 v1, 4, v0")
        a("v_bfe_u32 v2, v0, 2, 2")
        a("v_and_b32 v3, 3, v0")
        a("v_lshl_add_u32 v4, v1, 2, v2")
        a("v_lshlrev_b32 v4, 7, v4")
        a("v_lshl_add_u32 v4, v3, 4, v4")
        a("v_lshrrev_b32 v5, 1, v2")
        a("v_lshl_add_u32 v4, v5, 6, v4")
        a(f"v_add_u32 v11, s{LB}, v4")
        a("v_xor_b32 v12, 64, v11")
        a("v_lshlrev_b32 v13, 4, v0")
        a("v_lshlrev_b32 v14, 2, v0")
        a("v_add_u32 v15, 64, v0")
        a("v_min_u32 v15, 87, v15")
        a("v_lshlrev_b32 v15, 2, v15")
    NV0, NV1 = OPT['NV0'], OPT['NV1']
    a(f"s_lshl_b32 s{DBS}, s{s_rb}, 2")
    a(f"s_add_u32 s{DBS}, s{DBS}, s{s_w}")
    PVA = 160
    prep_issue(a, DBS, s_cb, PVA)
    for i in range(NV0):
        issueV(i)
    a.stamp()
    addr_setup()
    a.wait("P")
    a.stamp()
    nonce_get_all(a, 9)
    prep_finish(a, DBS, s_cb, PVA)
    for i in range(NV0, NV1):
        issueV(i)
    a.wait("S")
    a.stamp()
    nonce_check_all(a, 9)
    a(f"s_lshl_b32 s73, s{s_rb}, 9")
    a(f"s_lshl_b32 s74, s{s_cb}, 4")
    a("s_add_u32 s73, s73, s74")
    a(f"s_lshl_b32 s74, s{s_w}, 2")
    a("s_add_u32 s73, s73, s74")
    a(f"s_add_u32 s73, s73, {F1_B}")
    flag_store(a, "s73", 2, None)
    for i in range(NV1, NSL):
        issueV(i)
    def trreads(i):
        slot = i % NSL
        for j in range(4):
            pp, ab = j >> 1, j & 1
            for q in range(2):
                r = 16*i + 4*j + 2*q
                a(f"ds_read_b64_tr_b16 a[{r}:{r+1}], v{11+pp} offset:{slot*4096 + q*2048 + ab*8}")
    a.wait("V0")
    trreads(0)
    a("s_waitcnt lgkmcnt(0)")
    issueV(10)
    a(f"s_lshl_b32 s68, s{s_rb}, 9")
    a(f"s_add_u32 s68, s68, {F1_B}")
    ACC = 176
    for i in range(1, NSL):
        a.wait(f"V{i}")
        trreads(i)
        if i <= 4:
            for r in range(16*(i-1), 16*i):
                a(f"v_accvgpr_write_b32 a{ACC+r}, 0")
        if i == OPT['F1AT']:
            poll_issue(a, 16, 14, "s68", "Q")
            poll_issue(a, 17, 15, "s68", "Q")
    a.wait("V10")
    trreads(10)
    a.wait("Q")
    a.stamp()
    poll_check(a, [16, 17], [14, 15], "s68", sleep=6)
    a.stamp()
    a(f"s_mul_i32 s{WBASE}, s{s_rb}, {4*44}")
    WB = 64
    def w_items(i):
        items = []
        for d in range(4):
            def f(d=d):
                if d == 0:
                    step_t(i, 73)
                    a(f"s_add_u32 s73, s73, s{WBASE}")
                    a("s_lshl_b32 s73, s73, 10")
                    a("s_mov_b32 s74, s73")
                else:
                    a(f"s_add_u32 s74, s73, {d*44*1024}")
                r = WB + 16*i + 4*d
                a.vmem(f"buffer_load_dwordx4 v[{r}:{r+3}], v13, {srd(S_WQF)}, s74 offen{LDSC}", f"W{i}")
            items.append(f)
        return items
    PRE = OPT['WPRE']
    for i in range(PRE):
        for f in w_items(i): f()
    y_f3_addr(a, 18, 19)
    a("s_waitcnt lgkmcnt(0)")
    a("s_barrier")
    for i in range(11):
        a.wait(f"W{i}")
        m = []
        for d in range(4):
            for j in range(4):
                c = ACC + 16*d + 4*j
                ra = WB + 16*i + 4*d
                rb_ = 16*i + 4*j
                m.append(lambda c=c, ra=ra, rb_=rb_: a(f"v_mfma_f32_16x16x32_bf16 a[{c}:{c+3}], v[{ra}:{ra+3}], a[{rb_}:{rb_+3}], a[{c}:{c+3}]"))
        side = w_items(i + PRE) if i + PRE < 11 else []
        if i == 8:
            side = side + [lambda: poll_issue(a, 19, 18, "s67", "Q3")]
        for f in interleave(m, side): f()
    a("s_nop 7")
    a.stamp()
    a("v_lshlrev_b32 v14, 4, v0")
    for w in range(4):
        sk = a.new("TR")
        a(f"s_cmp_eq_u32 s{s_w}, {w}")
        a(f"s_cbranch_scc0 {sk}")
        for o in range(4):
            if o == w: continue
            rank = (w - o - 1) % 4
            sh, jh = o >> 1, o & 1
            tl = 0
            for d in (2*sh, 2*sh+1):
                for j in (2*jh, 2*jh+1):
                    c = ACC + 16*d + 4*j
                    a(f"ds_write_b128 v14, a[{c}:{c+3}] offset:{o*12288 + (rank*4+tl)*1024}")
                    tl += 1
        sh, jh = w >> 1, w & 1
        tl = 0
        for d in (2*sh, 2*sh+1):
            for j in (2*jh, 2*jh+1):
                c = ACC + 16*d + 4*j
                for r in range(4):
                    a(f"v_accvgpr_read_b32 v{20+4*tl+r}, a{c+r}")
                tl += 1
        a.lab(sk)
    a("s_waitcnt lgkmcnt(0)")
    a("s_barrier")
    a(f"s_mul_i32 s73, s{s_w}, 12288")
    a("v_add_u32 v15, s73, v14")
    for k in range(12):
        a(f"ds_read_b128 v[{36+4*k}:{36+4*k+3}], v15 offset:{k*1024}")
    a(f"s_lshr_b32 s62, s{s_w}, 1")
    a(f"s_and_b32 s63, s{s_w}, 1")
    a(f"s_lshl_b32 s64, s{s_cb}, 1")
    a("s_add_u32 s64, s64, s63")
    a(f"s_lshl_b32 s65, s{s_rb}, 1")
    a("s_add_u32 s65, s65, s62")
    a("s_lshl_b32 s70, s64, 5")
    a("s_add_u32 s70, s70, s65")
    a("s_lshl_b32 s70, s70, 10")
    a("s_add_u32 s71, s70, 16384")
    a(f"s_lshl_b32 s64, s{s_cb}, 7")
    a(f"s_lshl_b32 s65, s{s_rb}, 2")
    a("s_add_u32 s64, s64, s65")
    a(f"s_add_u32 s72, s64, {F2_B}")
    for rank in range(3):
        a(f"s_waitcnt lgkmcnt({8-4*rank})")
        for r in range(16):
            a(f"v_add_f32 v{20+r}, v{20+r}, v{36+16*rank+r}")
    for jj in range(2):
        t0, t1, o = 20 + 4*jj, 20 + 4*(2+jj), 88 + 4*jj
        a(f"v_cvt_pk_bf16_f32 v{o}, v{t0}, v{t0+1}")
        a(f"v_cvt_pk_bf16_f32 v{o+1}, v{t0+2}, v{t0+3}")
        a(f"v_cvt_pk_bf16_f32 v{o+2}, v{t1}, v{t1+1}")
        a(f"v_cvt_pk_bf16_f32 v{o+3}, v{t1+2}, v{t1+3}")
        a.vmem(f"buffer_store_dwordx4 v[{o}:{o+3}], v14, {srd(S_TF)}, s{70+jj} offen sc1", "S2")
    a.stamp()
    poll_check(a, [19], [18], "s67")
    a.wait("S2")
    wg_flag(a, "s72", 2)
    y_f2_addr(a)
    y_xr_loads(a, 0, 12)
    a(f"buffer_load_dword v14, v12, {srd(S_FL)}, s68 offen sc1")
    y_xr_loads(a, 12, 16)
    a.stamp()

def y_f2_addr(a):
    a("v_and_b32 v12, 7, v0")
    a("v_lshlrev_b32 v12, 2, v12")
    a("v_bfe_u32 v13, v0, 3, 1")
    a(f"s_cmp_eq_u32 s{S_NBK}, 14")
    a("s_cselect_b32 s63, 0, 128")
    a("v_mul_u32_u24 v13, s63, v13")
    a("v_add_u32 v12, v12, v13")
    a(f"s_min_u32 s68, s{S_NBK}, 14")
    a("s_mul_i32 s68, s68, 3")
    a("s_lshr_b32 s68, s68, 1")
    a("s_lshl_b32 s68, s68, 7")
    a(f"s_add_u32 s68, s68, {F2_B}")

def y_f3_addr(a, vo, vt):
    a(f"v_and_b32 v{vo}, 3, v0")
    a(f"v_lshlrev_b32 v{vo}, 2, v{vo}")
    a(f"s_lshl_b32 s67, s{S_MB8}, 7")
    a(f"s_add_u32 s67, s67, {F3_B}")

def y_rot(a):
    a(f"s_and_b32 s74, s{S_MB8}, 3")
    a("s_lshl_b32 s74, s74, 2")
    a(f"s_and_b32 s75, s{S_NBK}, 7")
    a("s_lshl_b32 s75, s75, 1")
    a("s_add_u32 s74, s74, s75")

def y_xr_loads(a, q0=0, q1=16):
    sk = a.new("YX")
    a(f"s_cmp_ge_u32 s{S_NBK}, 15")
    a(f"s_cbranch_scc1 {sk}")
    y_rot(a)
    a("v_lshlrev_b32 v10, 4, v0")
    a(f"s_lshl_b32 s69, s{S_MB8}, 17")
    a(f"s_lshl_b32 s75, s{S_W}, 15")
    a("s_add_u32 s69, s69, s75")
    for q in range(q0, q1):
        a(f"s_add_u32 s75, s74, {q}")
        a("s_and_b32 s75, s75, 15")
        a("s_lshl_b32 s75, s75, 10")
        a("s_add_u32 s75, s75, s69")
        for i in range(2):
            reg = 8*q + 4*i
            a.vmem(f"buffer_load_dwordx4 a[{reg}:{reg+3}], v10, {srd(S_XF)}, s75 offen{LDSC}", "XR")
            if i == 0:
                a("s_add_u32 s75, s75, 16384")
    a.lab(sk)

def role_y(a):
    s_w, s_mb8, s_nbk = S_W, S_MB8, S_NBK
    a.vm = []
    y_rot(a)
    a("v_lshlrev_b32 v10, 4, v0")
    a("v_add_u32 v11, 0x10000, v10")
    ACC = 16
    for r in range(48):
        a(f"v_mov_b32 v{ACC+r}, 0")
    a("s_waitcnt vmcnt(8)")
    if OPT['F2S']:
        NS1 = OPT['F2S']
        a("s_lshr_b32 s66, s74, 1")
        a("s_and_b32 s66, s66, 7")
        a(f"s_lshl_b32 s67, {(1 << NS1) - 1}, s66")
        a("s_lshr_b32 s75, s67, 8")
        a("s_or_b32 s67, s67, s75")
        a("s_and_b32 s67, s67, 0xff")
        a("s_lshl_b32 s75, s67, 8")
        a("s_or_b32 s67, s67, s75")
        poll_check_mask(a, 14, 12, "s68", 67, sleep=4)
    else:
        poll_check(a, [14], [12], "s68", sleep=6)
    a.stamp()
    a(f"s_mul_i32 s69, s{s_nbk}, {6*16*1024}")
    a(f"s_and_b32 s71, s{s_w}, 1")
    a("s_mul_i32 s71, s71, 49152")
    a("s_add_u32 s69, s69, s71")
    a(f"s_lshr_b32 s73, s{s_w}, 1")
    a("s_add_u32 s73, s73, s74")
    a(f"s_mul_i32 s72, s{s_w}, 3072")
    NG = 8
    def t_items(g):
        items = []
        for k in range(3):
            def f(k=k):
                if k == 0:
                    a(f"s_add_u32 s70, s73, {2*g}")
                    a("s_and_b32 s70, s70, 15")
                    a("s_lshl_b32 s70, s70, 10")
                    a("s_add_u32 s70, s70, s69")
                a(f"s_add_u32 m0, s72, {(12*g + k)*1024}")
                a(f"s_add_u32 s71, s70, {k*16384}")
                a.vmem(f"buffer_load_dwordx4 v10, {srd(S_TF)}, s71 offen{LDSC} lds", f"T{g}")
            items.append(f)
        return items
    PRE = OPT['TPRE']
    if OPT['F2S']:
        PRE = OPT['F2S']
    for g in range(PRE):
        for f in t_items(g): f()
    FA = 64
    def read_items(g):
        items = []
        for qq in range(2):
            q = 2*g + qq
            for j in range(6):
                r = FA + 48*(g & 1) + 24*qq + 4*j
                idx = q*6 + j
                if idx < 64:
                    items.append(lambda r=r, idx=idx: a(f"ds_read_b128 v[{r}:{r+3}], v10 offset:{idx*1024}"))
                else:
                    items.append(lambda r=r, idx=idx: a(f"ds_read_b128 v[{r}:{r+3}], v11 offset:{(idx-64)*1024}"))
        return items
    def mfma_items(g):
        items = []
        for qq in range(2):
            q = 2*g + qq
            for j in range(6):
                for i in range(2):
                    c = ACC + 8*j + 4*i
                    ra = FA + 48*(g & 1) + 24*qq + 4*j
                    rb_ = 8*q + 4*i
                    items.append(lambda c=c, ra=ra, rb_=rb_: a(f"v_mfma_f32_16x16x32_bf16 v[{c}:{c+3}], v[{ra}:{ra+3}], a[{rb_}:{rb_+3}], v[{c}:{c+3}]"))
        return items
    a.wait("T0")
    a("s_barrier")
    a.stamp()
    for f in read_items(0): f()
    for g in range(NG):
        if g + 1 < NG:
            a.wait(f"T{g+1}")
            a("s_waitcnt lgkmcnt(0)")
            a("s_barrier")
        else:
            a("s_waitcnt lgkmcnt(0)")
        side = read_items(g + 1) if g + 1 < NG else []
        if OPT['F2S']:
            G2 = OPT['F2G']
            dm = []
            if g == G2:
                a(f"buffer_load_dword v14, v12, {srd(S_FL)}, s68 offen sc1")
                a("s_waitcnt vmcnt(0)")
                a.vm = []
                poll_check(a, [14], [12], "s68", sleep=4)
                for gg in range(PRE, NG):
                    dm += t_items(gg)
        else:
            dm = t_items(g + PRE) if g + PRE < NG else []
        seq = interleave(mfma_items(g), side)
        seq = interleave(seq, dm)
        for f in seq: f()
    a("s_nop 7")
    a("s_nop 1")
    a.stamp()
    a("v_and_b32 v1, 15, v0")
    a("v_lshrrev_b32 v2, 4, v0")
    a("v_mul_u32_u24 v3, 2752, v1")
    a("v_lshl_add_u32 v3, v2, 4, v3")
    a(f"s_lshl_b32 s70, s{s_mb8}, 7")
    a(f"s_lshl_b32 s71, s{s_w}, 5")
    a("s_add_u32 s70, s70, s71")
    a("s_mul_i32 s70, s70, 2752")
    a(f"s_mul_i32 s71, s{s_nbk}, 192")
    a("s_add_u32 s70, s70, s71")
    a(f"s_add_u32 s71, s70, {16*2752}")
    for p in range(3):
        if p == 1:
            a(f"s_cmp_eq_u32 s{s_nbk}, 14")
            a("s_cbranch_scc1 Y_done")
        for i in range(2):
            t0 = ACC + 8*(2*p) + 4*i
            t1 = ACC + 8*(2*p+1) + 4*i
            o = 160 + 4*(2*p+i)
            a(f"v_cvt_pk_bf16_f32 v{o}, v{t0}, v{t0+1}")
            a(f"v_cvt_pk_bf16_f32 v{o+1}, v{t0+2}, v{t0+3}")
            a(f"v_cvt_pk_bf16_f32 v{o+2}, v{t1}, v{t1+1}")
            a(f"v_cvt_pk_bf16_f32 v{o+3}, v{t1+2}, v{t1+3}")
            a(f"buffer_store_dwordx4 v[{o}:{o+3}], v3, {srd(S_OUT)}, s{70+i} offen offset:{64*p}{['', ' sc1', ' nt', ' sc0 sc1'][OPT['OST']]}")
    a.lab("Y_done")

def kd(name, vgpr, accum, sgpr=102):
    return f""".p2align 6
.amdhsa_kernel {name}
  .amdhsa_next_free_vgpr {vgpr}
  .amdhsa_next_free_sgpr {sgpr}
  .amdhsa_accum_offset {accum}
  .amdhsa_group_segment_fixed_size 0
  .amdhsa_kernarg_size 72
  .amdhsa_user_sgpr_count 2
  .amdhsa_user_sgpr_kernarg_segment_ptr 1
  .amdhsa_system_sgpr_workgroup_id_x 1
.end_amdhsa_kernel
"""

HEADER = open("cdna_kernels/" + NAME + ".s.ref").read().split("; Override launch")[0]

def build():
    a = A()
    K = NAME + "_kernel"
    out = HEADER
    out += "; @launch grid=(256,1,1) block=(256,1,1) lds=163840\n"
    out += '.amdgcn_target "amdgcn-amd-amdhsa--gfx950"\n.text\n'
    a.l.append(f".globl {K}\n.p2align 8\n.type {K},@function\n{K}:")
    a("s_cmp_ge_u32 s2, 256")
    a("s_cbranch_scc1 K_end")
    if STAMPS:
        a("s_memrealtime s[94:95]")
        a("s_memtime s[96:97]")
    prologue(a)
    a(f"s_cmp_eq_u32 s2, {253 if OPT['MAP'] in (2, 3) else 250}")
    a("s_cbranch_scc0 K_np")
    a(f"s_cmp_eq_u32 s{S_W}, 0")
    a("s_cbranch_scc0 K_np")
    a("s_memrealtime s[62:63]")
    a("s_waitcnt lgkmcnt(0)")
    a("s_or_b32 s62, s62, 1")
    a("v_mov_b32 v2, s62")
    a("s_mov_b64 exec, 1")
    a(f"buffer_store_dword v2, off, {srd(S_DBG)}, 0 sc1")
    a("s_mov_b64 exec, -1")
    a.lab("K_np")
    if OPT['CPF']:
        a(f"s_cmp_eq_u32 s{S_W}, 3")
        a("s_cbranch_scc0 K_ncpf")
        a("s_getpc_b64 s[62:63]")
        a.lab("K_pc")
        a(f"s_sub_u32 s62, s62, K_pc-{K}")
        a("s_subb_u32 s63, s63, 0")
        a(f"s_mov_b32 s64, K_code_end-{K}-4")
        a("v_lshlrev_b32 v2, 7, v0")
        for k in range(4):
            a(f"v_add_u32 v3, {k*8192}, v2")
            a("v_min_u32 v3, s64, v3")
            a("global_load_dword v255, v3, s[62:63]")
        a.lab("K_ncpf")
    if STAMPS:
        a("s_mov_b32 s76, s94")
        a.nst = 1
    a.stamp()
    a("s_and_b32 s62, s2, 7")
    a("s_lshr_b32 s63, s2, 3")
    a("s_and_b32 s64, s62, 3")
    a("s_lshl_b32 s64, s64, 2")
    a("s_and_b32 s65, s63, 3")
    a(f"s_add_u32 s{S_MB8}, s64, s65")
    a("s_lshr_b32 s64, s62, 2")
    a("s_lshl_b32 s64, s64, 3")
    a("s_lshr_b32 s65, s63, 2")
    a(f"s_add_u32 s{S_NBK}, s64, s65")
    if OPT['MAP'] == 0:
        a("s_lshr_b32 s64, s62, 1")
        a("s_and_b32 s65, s64, 1")
        a("s_sub_u32 s65, 6, s65")
        a("s_lshl_b32 s65, s65, 2")
        a("s_cmp_lt_u32 s63, s65")
        a("s_cbranch_scc0 K_notT")
        a("s_and_b32 s66, s62, 1")
        a("s_lshl_b32 s66, s66, 2")
        a("s_and_b32 s67, s63, 3")
        a(f"s_add_u32 s{S_A}, s66, s67")
        a("s_mul_i32 s64, s64, 11")
        a("s_add_u32 s64, s64, 1")
        a("s_lshr_b32 s64, s64, 1")
        a("s_lshr_b32 s66, s63, 2")
        a(f"s_add_u32 s{S_B}, s64, s66")
        a("s_mul_i32 s67, s67, 11")
        a("s_lshr_b32 s67, s67, 2")
        a("s_lshl_b32 s66, s66, 1")
        a("s_add_u32 s94, s67, s66")
        if OPT['SKEW']:
            a("s_and_b32 s66, s62, 1")
            a("s_mul_i32 s66, s66, 5")
            a("s_add_u32 s94, s94, s66")
    elif OPT['MAP'] == 1:
        a("s_mov_b32 s65, 22")
        a("s_cmp_lt_u32 s63, s65")
        a("s_cbranch_scc0 K_notT")
        a("s_mul_i32 s64, s62, 22")
        a("s_add_u32 s64, s64, s63")
        a(f"s_lshr_b32 s{S_B}, s64, 3")
        a(f"s_and_b32 s{S_A}, s64, 7")
        a(f"s_mul_i32 s67, s{S_A}, 11")
        a("s_lshr_b32 s67, s67, 3")
        a(f"s_and_b32 s66, s{S_B}, 3")
        a("s_mul_i32 s66, s66, 3")
        a("s_add_u32 s94, s67, s66")
    elif OPT['MAP'] == 3:
        a("s_cmp_lt_u32 s62, 4")
        a("s_cselect_b32 s65, 16, 28")
        a("s_cmp_lt_u32 s63, s65")
        a("s_cbranch_scc0 K_notT")
        a("s_and_b32 s66, s62, 1")
        a("s_lshl_b32 s66, s66, 2")
        a("s_and_b32 s67, s63, 3")
        a(f"s_add_u32 s{S_A}, s66, s67")
        a("s_lshr_b32 s64, s62, 1")
        a("s_lshl_b32 s66, s64, 2")
        a("s_mul_i32 s65, s64, 7")
        a("s_sub_u32 s65, s65, 6")
        a("s_cmp_lt_u32 s62, 4")
        a("s_cselect_b32 s64, s66, s65")
        a("s_lshr_b32 s66, s63, 2")
        a(f"s_add_u32 s{S_B}, s64, s66")
        a("s_mul_i32 s67, s67, 11")
        a("s_lshr_b32 s67, s67, 2")
        a("s_mul_i32 s66, s66, 3")
        a("s_lshr_b32 s66, s66, 1")
        a("s_add_u32 s94, s67, s66")
        a("s_and_b32 s66, s62, 1")
        a("s_mul_i32 s66, s66, 5")
        a("s_add_u32 s94, s94, s66")
    else:
        a("s_cmp_ge_u32 s62, 6")
        a("s_cbranch_scc1 K_xr")
        a("s_cmp_lt_u32 s62, 2")
        a("s_cselect_b32 s65, 30, 29")
        a("s_cmp_lt_u32 s63, s65")
        a("s_cbranch_scc0 K_spare")
        a("s_min_u32 s66, s62, 2")
        a("s_mul_i32 s64, s62, 29")
        a("s_add_u32 s64, s64, s66")
        a("s_add_u32 s64, s64, s63")
        a(f"s_lshr_b32 s{S_B}, s64, 3")
        a(f"s_and_b32 s{S_A}, s64, 7")
        a(f"s_mul_i32 s67, s{S_A}, 11")
        a("s_lshr_b32 s67, s67, 3")
        a(f"s_and_b32 s66, s{S_B}, 3")
        a("s_mul_i32 s66, s66, 3")
        a("s_add_u32 s94, s67, s66")
    nst0 = a.nst
    if OPT['DIAG'] == 2:
        a("s_branch K_fin")
    role_T(a, S_A, S_B, 94)
    if OPT['DIAG']:
        a.nst = 10
    nstT = a.nst
    a("s_branch K_y")
    a.lab("K_notT")
    if OPT['MAP'] == 3:
        a("s_cmp_ge_u32 s62, 4")
        a("s_cbranch_scc1 K_spare")
        a("s_sub_u32 s63, s63, 16")
        a(f"s_and_b32 s{S_A}, s63, 3")
        a("s_lshr_b32 s65, s63, 2")
        a("s_lshl_b32 s64, s62, 2")
        a(f"s_add_u32 s{S_B}, s64, s65")
        a(f"s_lshl_b32 s73, s{S_A}, 1")
        a("s_lshl_b32 s65, s65, 1")
        a("s_add_u32 s73, s73, s65")
        a("s_add_u32 s73, s73, s62")
    elif OPT['MAP'] == 2:
        a.lab("K_xr")
        a(f"s_and_b32 s{S_A}, s63, 3")
        a("s_lshr_b32 s65, s63, 2")
        a("s_sub_u32 s64, s62, 6")
        a("s_lshl_b32 s64, s64, 3")
        a(f"s_add_u32 s{S_B}, s64, s65")
        a(f"s_lshl_b32 s73, s{S_A}, 1")
        a("s_add_u32 s73, s73, s65")
    else:
        a("s_sub_u32 s63, s63, s65")
        a("s_cmp_lt_u32 s63, 8")
        a("s_cbranch_scc0 K_spare")
        if OPT['XMAP'] == 1:
            a(f"s_and_b32 s{S_A}, s63, 3")
            a("s_lshl_b32 s64, s62, 1")
            a("s_lshr_b32 s65, s63, 2")
            a(f"s_add_u32 s{S_B}, s64, s65")
            a(f"s_lshl_b32 s73, s{S_A}, 1")
            a("s_add_u32 s73, s73, s65")
            a("s_add_u32 s73, s73, s62")
        else:
            a("s_and_b32 s64, s62, 1")
            a("s_lshl_b32 s64, s64, 1")
            a("s_and_b32 s65, s63, 1")
            a(f"s_add_u32 s{S_A}, s64, s65")
            a("s_lshr_b32 s64, s62, 1")
            a("s_lshl_b32 s64, s64, 2")
            a("s_lshr_b32 s65, s63, 1")
            a(f"s_add_u32 s{S_B}, s64, s65")
            a("s_and_b32 s64, s63, 1")
            a("s_lshl_b32 s64, s64, 2")
            a("s_lshr_b32 s65, s63, 1")
            a("s_lshl_b32 s65, s65, 1")
            a("s_add_u32 s73, s64, s65")
            a("s_and_b32 s64, s62, 1")
            a("s_add_u32 s73, s73, s64")
    a.vm = []
    a.nst = nst0
    if OPT['DIAG'] == 1:
        a("s_branch K_fin")
    role_xr(a, S_A, S_B, 73)
    if OPT['DIAG'] == 2:
        a("s_branch K_fin")
    a("s_branch K_pre")
    a.lab("K_spare")
    if OPT['DIAG']:
        a("s_branch K_fin")
    a.vm = []
    n2 = a.nst
    a.nst = nst0
    nonce_get_all(a, 9)
    a("s_waitcnt vmcnt(0)")
    nonce_check_all(a, 9)
    while STAMPS and a.nst < n2:
        a.stamp()
    a.lab("K_pre")
    a.vm = []
    a(f"s_cmp_ge_u32 s{S_NBK}, 15")
    a("s_cbranch_scc1 K_fin")
    y_f3_addr(a, 18, 19)
    a("s_nop 0")
    wg_poll(a, 19, 18, "s67", sleep=8)
    y_xr_loads(a)
    y_f2_addr(a)
    wg_poll(a, 14, 12, "s68", sleep=4)
    a(f"v_mov_b32 v14, s{S_NONCE}")
    while STAMPS and a.nst < nstT:
        a.stamp()
    a.lab("K_y")
    a.nst = nstT
    a(f"s_cmp_ge_u32 s{S_NBK}, 15")
    a("s_cbranch_scc1 K_fin")
    role_y(a)
    a.lab("K_fin")
    if OPT['DBGSPAN']:
        a(f"s_cmp_eq_u32 s{S_W}, 0")
        a("s_cbranch_scc0 K_end")
        a("s_waitcnt vmcnt(0)")
        a("s_memrealtime s[62:63]")
        a("s_waitcnt lgkmcnt(0)")
        a(f"s_sub_u32 s62, s62, s{S_NONCE}")
        a("v_mov_b32 v2, s62")
        a("s_mov_b64 exec, 1")
        a(f"buffer_atomic_umax v2, off, {srd(S_DBG)}, 0 offset:4")
        a("s_waitcnt vmcnt(0)")
    stamp_flush(a)
    a.lab("K_end")
    a("s_endpgm")
    a.lab("K_code_end")
    out += a.text()
    out += '.section .rodata,"a"\n'
    out += kd(K, 512, 256)
    return out

if __name__ == "__main__":
    for arg in list(sys.argv):
        if arg.startswith("-O"):
            k, v = arg[2:].split("=")
            OPT[k] = int(v)
            sys.argv.remove(arg)
    if "--plain" in sys.argv:
        LDSC = ""
        sys.argv.remove("--plain")
    if "--stamps" in sys.argv:
        STAMPS = True
        sys.argv.remove("--stamps")
    dst = sys.argv[1] if len(sys.argv) > 1 else "cdna_kernels/" + NAME + ".s"
    open(dst, "w").write(build())
    print("wrote", dst)
```

```python
import sys

NAME = "standalone__weight_only_int_quip__prompt"
M, D, F = 2048, 512, 1376
WQF_OFF, WQF_SZ = 0x000000, 32 * 44 * 1024
XF_OFF, XF_SZ = 0x200000, 128 * 16 * 1024
TF_OFF, TF_SZ = 0x400000, 86 * 16 * 1024
FL_OFF, FL_SZ = 0x600000, 0x4000
F1_B, F2_B, F3_B = 0x0000, 0x1000, 0x2000
STAMPS = False
OPT = dict(NV0=0, NV1=3, WPRE=4, TPRE=4, XPRE=15, SKEW=1, DIAG=0, MAP=0, XMAP=0, CPF=1, OST=2, DBGSPAN=0, XQ=4, F1AT=9, F2S=0, F2G=1, PNT=0, VNT=0, SNT=0)
SPIN_MAX = 200000
LDSC = ' sc1'


class A:
    def __init__(s):
        s.l = []
        s.vm = []
        s.nst = 0
        s.uid = 0
    def __call__(s, x):
        s.l.append("  " + x)
    def lab(s, x):
        s.l.append(x + ":")
    def text(s):
        return "\n".join(s.l) + "\n"
    def vmem(s, x, tag):
        s(x); s.vm.append(tag)
    def wait(s, tag, extra=""):
        idx = [i for i, t in enumerate(s.vm) if t == tag]
        if not idx:
            return
        n = len(s.vm) - 1 - idx[-1]
        assert n <= 63, n
        s(f"s_waitcnt vmcnt({n}){extra}")
        s.vm = s.vm[idx[-1] + 1:]
    def waitall(s):
        s("s_waitcnt vmcnt(0)"); s.vm = []
    def new(s, p):
        s.uid += 1
        return f"{p}_{s.uid}"
    def stamp(s):
        if not STAMPS: return
        i = s.nst; s.nst += 1
        assert i < 24, i
        s("s_memrealtime s[100:101]")
        s("s_waitcnt lgkmcnt(0)")
        s(f"s_mov_b32 s{76+i}, s100")

S_X, S_QW, S_SC, S_ZR, S_U, S_V, S_OUT, S_WQF, S_XF, S_TF, S_FL, S_DBG = [8 + 4*i for i in range(12)]
S_W, S_NONCE, S_A, S_B, S_MB8, S_NBK = 56, 57, 58, 59, 60, 61
T0 = 62
def srd(i): return f"s[{i}:{i+3}]"

def prologue(a):
    tbl = [(S_QW, 8, D*F*4), (S_SC, 16, 4*F*2), (S_ZR, 24, 4*F*2), (S_U, 32, D*D*2), (S_X, 0, M*D*2),
           (S_V, 40, F*F*2), (S_OUT, 48, M*F*2), (S_DBG, 56, 256)]
    for r, off, sz in tbl:
        a(f"s_load_dwordx2 s[{r}:{r+1}], s[0:1], {off}")
    a("s_load_dwordx2 s[92:93], s[0:1], 64")
    a("v_lshrrev_b32 v1, 6, v0")
    a("v_and_b32 v0, 63, v0")
    a(f"v_readfirstlane_b32 s{S_W}, v1")
    for r, off, sz in tbl:
        a(f"s_mov_b32 s{r+2}, {sz}")
        a(f"s_mov_b32 s{r+3}, 0x20000")
    for r, off, sz in [(S_WQF, WQF_OFF, WQF_SZ), (S_XF, XF_OFF, XF_SZ), (S_TF, TF_OFF, TF_SZ), (S_FL, FL_OFF, FL_SZ)]:
        a(f"s_mov_b32 s{r+2}, {sz}")
        a(f"s_mov_b32 s{r+3}, 0x20000")

def kwait(a):
    a("s_waitcnt lgkmcnt(0)")

def late_srds(a):
    for r, off, sz in [(S_WQF, WQF_OFF, WQF_SZ), (S_FL, FL_OFF, FL_SZ), (S_XF, XF_OFF, XF_SZ), (S_TF, TF_OFF, TF_SZ)]:
        a(f"s_add_u32 s{r}, s92, {off}")
        a(f"s_addc_u32 s{r+1}, s93, 0")

def stamp_flush(a):
    if not STAMPS: return
    a.stamp()
    a("s_waitcnt vmcnt(0)")
    a.stamp()
    n = a.nst
    a("s_memtime s[98:99]")
    a("s_load_dwordx2 s[62:63], s[0:1], 64")
    a("s_waitcnt lgkmcnt(0)")
    a("s_add_u32 s8, s62, 0x800000")
    a("s_addc_u32 s9, s63, 0")
    a("s_and_b32 s9, s9, 0xffff")
    a("s_mov_b32 s10, 0x100000")
    a("s_mov_b32 s11, 0x20000")
    a("s_lshl_b32 s64, s2, 2")
    a(f"s_add_u32 s64, s64, s{S_W}")
    a("s_lshl_b32 s64, s64, 7")
    a("s_mov_b64 exec, 1")
    a("v_mov_b32 v3, 0")
    for i in range(n):
        a(f"v_mov_b32 v4, s{76+i}")
        a(f"buffer_store_dword v4, v3, s[8:11], s64 offen offset:{4*i}")
        a("s_nop 1")
    a("s_sub_u32 s98, s98, s96")
    a("v_mov_b32 v4, s98")
    a("buffer_store_dword v4, v3, s[8:11], s64 offen offset:120")

def nonce_get_all(a, vreg):
    a.vmem(f"buffer_load_dword v{vreg}, off, {srd(S_DBG)}, 0 sc1", "N")

def nonce_check_all(a, vreg):
    L, Dn = a.new("NC"), a.new("ND")
    a(f"v_readfirstlane_b32 s{S_NONCE}, v{vreg}")
    a(f"s_mov_b32 s{T0}, {SPIN_MAX}")
    a.lab(L)
    a(f"s_cmp_lg_u32 s{S_NONCE}, 0")
    a(f"s_cbranch_scc1 {Dn}")
    a(f"s_sub_u32 s{T0}, s{T0}, 1")
    a(f"s_cbranch_scc1 {Dn}")
    a("s_sleep 2")
    a(f"buffer_load_dword v{vreg}, off, {srd(S_DBG)}, 0 sc1")
    a("s_waitcnt vmcnt(0)")
    a(f"v_readfirstlane_b32 s{S_NONCE}, v{vreg}")
    a(f"s_branch {L}")
    a.lab(Dn)

def nonce_get(a, vreg, after_issue=None):
    sk = a.new("NG")
    a(f"s_cmp_eq_u32 s{S_W}, 0")
    a(f"s_cbranch_scc0 {sk}")
    a(f"buffer_load_dword v{vreg}, off, {srd(S_DBG)}, 0 sc1")
    a.lab(sk)

def nonce_check(a, vreg):
    L, Dn = a.new("NC"), a.new("ND")
    a(f"s_cmp_eq_u32 s{S_W}, 0")
    a(f"s_cbranch_scc0 {Dn}")
    a(f"v_readfirstlane_b32 s{S_NONCE}, v{vreg}")
    a(f"s_mov_b32 s{T0}, {SPIN_MAX}")
    a.lab(L)
    a(f"s_cmp_lg_u32 s{S_NONCE}, 0")
    a(f"s_cbranch_scc1 {Dn}")
    a(f"s_sub_u32 s{T0}, s{T0}, 1")
    a(f"s_cbranch_scc1 {Dn}")
    a("s_sleep 2")
    a(f"buffer_load_dword v{vreg}, off, {srd(S_DBG)}, 0 sc1")
    a("s_waitcnt vmcnt(0)")
    a(f"v_readfirstlane_b32 s{S_NONCE}, v{vreg}")
    a(f"s_branch {L}")
    a.lab(Dn)

def poll_issue(a, vreg, voff, soff, tag):
    a.vmem(f"buffer_load_dword v{vreg}, v{voff}, {srd(S_FL)}, {soff} offen sc1", tag)

def poll_check(a, regs, voffs, soff, sleep=4):
    L, Dn = a.new("PL"), a.new("PD")
    a(f"s_mov_b32 s{T0}, {SPIN_MAX}")
    a.lab(L)
    a(f"v_cmp_ne_u32 s[{T0+2}:{T0+3}], s{S_NONCE}, v{regs[0]}")
    for r in regs[1:]:
        a(f"v_cmp_ne_u32 s[{T0+4}:{T0+5}], s{S_NONCE}, v{r}")
        a(f"s_or_b64 s[{T0+2}:{T0+3}], s[{T0+2}:{T0+3}], s[{T0+4}:{T0+5}]")
    a(f"s_cmp_eq_u64 s[{T0+2}:{T0+3}], 0")
    a(f"s_cbranch_scc1 {Dn}")
    a(f"s_sub_u32 s{T0}, s{T0}, 1")
    a(f"s_cbranch_scc1 {Dn}")
    a(f"s_sleep {sleep}")
    for r, vo in zip(regs, voffs):
        a(f"buffer_load_dword v{r}, v{vo}, {srd(S_FL)}, {soff} offen sc1")
    a("s_waitcnt vmcnt(0)")
    a(f"s_branch {L}")
    a.lab(Dn)

def wg_flag(a, soff, vtmp):
    sk = a.new("WF")
    a("s_barrier")
    a(f"s_cmp_eq_u32 s{S_W}, 0")
    a(f"s_cbranch_scc0 {sk}")
    a(f"v_mov_b32 v{vtmp}, s{S_NONCE}")
    a("s_mov_b64 exec, 1")
    a(f"buffer_store_dword v{vtmp}, off, {srd(S_FL)}, {soff} sc1")
    a("s_mov_b64 exec, -1")
    a.lab(sk)

def wg_poll(a, reg, voff, soff, sleep=4, reg2=None, voff2=None):
    L, Dn, sk = a.new("PL"), a.new("PD"), a.new("PS")
    a(f"s_cmp_eq_u32 s{S_W}, 0")
    a(f"s_cbranch_scc0 {sk}")
    a(f"s_mov_b32 s{T0}, {SPIN_MAX}")
    a.lab(L)
    a(f"buffer_load_dword v{reg}, v{voff}, {srd(S_FL)}, {soff} offen sc1")
    if reg2 is not None:
        a(f"buffer_load_dword v{reg2}, v{voff2}, {srd(S_FL)}, {soff} offen sc1")
    a("s_waitcnt vmcnt(0)")
    a(f"v_cmp_ne_u32 s[{T0+2}:{T0+3}], s{S_NONCE}, v{reg}")
    if reg2 is not None:
        a(f"v_cmp_ne_u32 s[{T0+4}:{T0+5}], s{S_NONCE}, v{reg2}")
        a(f"s_or_b64 s[{T0+2}:{T0+3}], s[{T0+2}:{T0+3}], s[{T0+4}:{T0+5}]")
    a(f"s_cmp_eq_u64 s[{T0+2}:{T0+3}], 0")
    a(f"s_cbranch_scc1 {Dn}")
    a(f"s_sub_u32 s{T0}, s{T0}, 1")
    a(f"s_cbranch_scc1 {Dn}")
    a(f"s_sleep {sleep}")
    a(f"s_branch {L}")
    a.lab(Dn)
    a.lab(sk)
    a("s_barrier")

def poll_check_mask(a, reg, voff, soff, smask, sleep=4):
    L, Dn = a.new("PM"), a.new("PN")
    a(f"s_mov_b32 s{T0}, {SPIN_MAX}")
    a.lab(L)
    a(f"v_cmp_ne_u32 s[{T0+2}:{T0+3}], s{S_NONCE}, v{reg}")
    a(f"s_and_b32 s{T0+2}, s{T0+2}, s{smask}")
    a(f"s_cbranch_scc0 {Dn}")
    a(f"s_sub_u32 s{T0}, s{T0}, 1")
    a(f"s_cbranch_scc1 {Dn}")
    a(f"s_sleep {sleep}")
    a(f"buffer_load_dword v{reg}, v{voff}, {srd(S_FL)}, {soff} offen sc1")
    a("s_waitcnt vmcnt(0)")
    a(f"s_branch {L}")
    a.lab(Dn)

def flag_store(a, soff, vtmp, vzero):
    a(f"v_mov_b32 v{vtmp}, s{S_NONCE}")
    a("s_mov_b64 exec, 1")
    a.vmem(f"buffer_store_dword v{vtmp}, off, {srd(S_FL)}, {soff} sc1", "F")
    a("s_mov_b64 exec, -1")

def prep_issue(a, s_db, s_kb, V):
    t = T0
    a(f"v_lshrrev_b32 v{V+1}, 3, v0")
    a(f"v_and_b32 v{V+2}, 7, v0")
    a(f"v_mul_u32_u24 v{V+3}, 5504, v{V+1}")
    a(f"v_lshl_add_u32 v{V+3}, v{V+2}, 4, v{V+3}")
    a(f"v_lshlrev_b32 v{V+4}, 3, v{V+2}")
    a(f"s_cmp_eq_u32 s{s_kb}, 21")
    a(f"s_cselect_b32 s{t}, 0x40000000, 128")
    a(f"s_cselect_b32 s{t+1}, 0x40000000, 64")
    a(f"v_add_u32 v{V+5}, s{t}, v{V+3}")
    a(f"v_add_u32 v{V+6}, s{t+1}, v{V+4}")
    a(f"s_mul_i32 s{t+2}, s{s_db}, 88064")
    a(f"s_lshl_b32 s{t+3}, s{s_kb}, 8")
    a(f"s_add_u32 s{t+2}, s{t+2}, s{t+3}")
    a(f"s_add_u32 s{t+3}, s{t+2}, 44032")
    a(f"s_lshr_b32 s{t+4}, s{s_db}, 3")
    a(f"s_mul_i32 s{t+4}, s{t+4}, 2752")
    a(f"s_lshl_b32 s{t+5}, s{s_kb}, 7")
    a(f"s_add_u32 s{t+4}, s{t+4}, s{t+5}")
    kwait(a)
    a.vmem(f"buffer_load_dwordx4 v[{V+8}:{V+11}], v{V+3}, {srd(S_QW)}, s{t+2} offen{' nt' if OPT['PNT'] else ''}", "P")
    a.vmem(f"buffer_load_dwordx4 v[{V+12}:{V+15}], v{V+5}, {srd(S_QW)}, s{t+2} offen{' nt' if OPT['PNT'] else ''}", "P")
    a.vmem(f"buffer_load_dwordx4 v[{V+16}:{V+19}], v{V+3}, {srd(S_QW)}, s{t+3} offen{' nt' if OPT['PNT'] else ''}", "P")
    a.vmem(f"buffer_load_dwordx4 v[{V+20}:{V+23}], v{V+5}, {srd(S_QW)}, s{t+3} offen{' nt' if OPT['PNT'] else ''}", "P")
    a.vmem(f"buffer_load_dwordx2 v[{V+24}:{V+25}], v{V+4}, {srd(S_SC)}, s{t+4} offen", "P")
    a.vmem(f"buffer_load_dwordx2 v[{V+26}:{V+27}], v{V+6}, {srd(S_SC)}, s{t+4} offen", "P")
    a.vmem(f"buffer_load_dwordx2 v[{V+28}:{V+29}], v{V+4}, {srd(S_ZR)}, s{t+4} offen", "P")
    a.vmem(f"buffer_load_dwordx2 v[{V+30}:{V+31}], v{V+6}, {srd(S_ZR)}, s{t+4} offen", "P")
    late_srds(a)
    a(f"v_lshrrev_b32 v{V+7}, 2, v{V+2}")
    a(f"v_lshlrev_b32 v{V+7}, 10, v{V+7}")
    a(f"v_and_b32 v{V+32}, 3, v{V+2}")
    a(f"v_lshl_add_u32 v{V+7}, v{V+32}, 8, v{V+7}")
    a(f"v_lshl_add_u32 v{V+7}, v{V+1}, 4, v{V+7}")

def prep_finish(a, s_db, s_kb, V):
    t = T0
    a(f"s_mul_i32 s{t}, s{s_db}, 44")
    a(f"s_lshl_b32 s{t+1}, s{s_kb}, 1")
    a(f"s_add_u32 s{t}, s{t}, s{t+1}")
    a(f"s_lshl_b32 s{t}, s{t}, 10")
    a(f"s_mov_b32 s{t+1}, 0xffff0000")
    for i in range(4):
        a(f"v_lshlrev_b32 v{V+32+2*i}, 16, v{V+24+i}")
        a(f"v_and_b32 v{V+33+2*i}, s{t+1}, v{V+24+i}")
        a(f"v_lshlrev_b32 v{V+40+2*i}, 16, v{V+28+i}")
        a(f"v_and_b32 v{V+41+2*i}, s{t+1}, v{V+28+i}")
    for rh in range(2):
        q = V + 8 + 8 * rh
        for i in range(8):
            a(f"v_cvt_f32_i32 v{q+i}, v{q+i}")
        for i in range(8):
            a(f"v_sub_f32 v{q+i}, v{q+i}, v{V+40+i}")
        for i in range(4):
            a(f"v_cvt_pk_bf16_f32 v{V+48+i}, v{q+2*i}, v{q+2*i+1}")
        for i in range(4):
            a(f"v_lshlrev_b32 v{q+2*i}, 16, v{V+48+i}")
            a(f"v_and_b32 v{q+2*i+1}, s{t+1}, v{V+48+i}")
        for i in range(8):
            a(f"v_mul_f32 v{q+i}, v{q+i}, v{V+32+i}")
        o = V + 52 + 4 * rh
        for i in range(4):
            a(f"v_cvt_pk_bf16_f32 v{o+i}, v{q+2*i}, v{q+2*i+1}")
        a.vmem(f"buffer_store_dwordx4 v[{o}:{o+3}], v{V+7}, {srd(S_WQF)}, s{t} offen offset:{128*rh} sc1", "S")

def interleave(main, side):
    out = []
    n, m = len(main), len(side)
    k = 0
    for i, x in enumerate(main):
        out.append(x)
        while k < m and (k + 1) * n <= (i + 1) * m + (n - 1) * 0:
            out.append(side[k]); k += 1
    out.extend(side[k:])
    return out

def role_xr(a, s_eb, s_mb8, s_rot):
    s_w = S_W
    SWE, SWM, UB, XB, LB, TT = 64, 65, 66, 67, 68, 69
    a(f"s_and_b32 s{SWE}, s{s_w}, 1")
    a(f"s_lshr_b32 s{SWM}, s{s_w}, 1")
    a("v_lshrrev_b32 v1, 4, v0")
    a("v_and_b32 v2, 15, v0")
    a("v_lshlrev_b32 v3, 1, v1")
    a("v_xor_b32 v4, v2, v3")
    a("v_xor_b32 v5, 8, v4")
    a("v_lshlrev_b32 v6, 10, v1")
    a("v_lshl_add_u32 v10, v4, 4, v6")
    a("v_lshl_add_u32 v11, v5, 4, v6")
    a("v_lshrrev_b32 v1, 3, v0")
    a("v_and_b32 v2, 7, v0")
    a("v_lshrrev_b32 v3, 1, v1")
    a("v_xor_b32 v4, v2, v3")
    a("v_xor_b32 v5, 4, v4")
    a("v_lshlrev_b32 v6, 10, v1")
    a("v_lshl_add_u32 v12, v4, 4, v6")
    a("v_lshl_add_u32 v13, v5, 4, v6")
    a(f"s_lshl_b32 s{UB}, s{s_w}, 14")
    a(f"s_lshl_b32 s{TT}, s{s_eb}, 8")
    a(f"s_add_u32 s{UB}, s{UB}, s{TT}")
    a(f"s_lshl_b32 s{XB}, s{s_mb8}, 17")
    a(f"s_lshl_b32 s{TT}, s{s_w}, 15")
    a(f"s_add_u32 s{XB}, s{XB}, s{TT}")
    a(f"s_lshl_b32 s{LB}, s{s_w}, 12")
    NSL = 4
    def dma_items(st):
        slot = st % NSL
        items = []
        def setup():
            a(f"s_add_u32 s70, s{s_rot}, {st}")
            a("s_and_b32 s70, s70, 7")
            a("s_lshl_b32 s71, s70, 16")
            a(f"s_add_u32 s71, s71, s{UB}")
            a("s_lshl_b32 s72, s70, 7")
            a(f"s_add_u32 s72, s72, s{XB}")
        for aa in range(4):
            def f(aa=aa):
                if aa == 0: setup()
                a(f"s_add_u32 m0, s{LB}, {slot*32768 + aa*1024}")
                a(f"s_add_u32 s{TT}, s71, {aa*4096}")
                a.vmem(f"buffer_load_dwordx4 v{10 + (aa>>1)}, {srd(S_U)}, s{TT} offen lds", f"X{st}")
            items.append(f)
        for bb in range(4):
            def f(bb=bb):
                a(f"s_add_u32 m0, s{LB}, {slot*32768 + 16384 + bb*1024}")
                a(f"s_add_u32 s{TT}, s72, {bb*8192}")
                a.vmem(f"buffer_load_dwordx4 v{12 + (bb&1)}, {srd(S_X)}, s{TT} offen lds", f"X{st}")
            items.append(f)
        return items
    XPRE = OPT['XPRE']
    kwait(a)
    if XPRE == 15:
        for f in dma_items(0): f()
        d1 = dma_items(1)
        for f in d1[:4]: f()
    else:
        for st in range(XPRE):
            for f in dma_items(st): f()
    late_srds(a)
    a.stamp()
    a("v_lshrrev_b32 v1, 4, v0")
    a("v_bfe_u32 v2, v0, 2, 2")
    a("v_and_b32 v3, 3, v0")
    a("v_lshl_add_u32 v4, v1, 3, v2")
    a("v_lshlrev_b32 v4, 8, v4")
    a("v_and_b32 v5, 1, v1")
    a("v_lshlrev_b32 v5, 3, v5")
    a("v_lshl_add_u32 v5, v2, 1, v5")
    a("v_lshrrev_b32 v6, 1, v3")
    a(f"s_lshl_b32 s{TT}, s{SWE}, 3")
    a(f"v_or_b32 v6, s{TT}, v6")
    a("v_xor_b32 v5, v5, v6")
    a("v_lshl_add_u32 v4, v5, 4, v4")
    a("v_and_b32 v6, 1, v3")
    a("v_lshl_add_u32 v4, v6, 3, v4")
    for i in range(4):
        a(f"v_xor_b32 v{16+i}, {i<<5}, v4")
        a(f"v_add_u32 v{20+i}, 0x10000, v{16+i}")
    a("v_and_b32 v2, 15, v0")
    a("v_lshrrev_b32 v3, 1, v2")
    a("v_xor_b32 v3, v3, v1")
    a("v_lshlrev_b32 v4, 7, v2")
    a("v_lshl_add_u32 v4, v3, 4, v4")
    a(f"s_lshl_b32 s{TT}, s{SWM}, 13")
    a(f"s_add_u32 s{TT}, s{TT}, 16384")
    a(f"v_add_u32 v24, s{TT}, v4")
    a("v_xor_b32 v25, 64, v24")
    a("v_add_u32 v26, 0x10000, v24")
    a("v_add_u32 v27, 0x10000, v25")
    ACC = 64
    for r in range(64):
        a(f"v_mov_b32 v{ACC+r}, 0")
    def read_items(hh):
        st, h2, buf = hh >> 1, hh & 1, hh & 1
        slot = st % NSL
        hi = slot >> 1
        so = (slot & 1) * 32768
        FA = 128 + 32 * buf
        FB = 144 + 32 * buf
        items = []
        for j in range(4):
            items.append(lambda j=j: a(f"ds_read_b128 v[{FB+4*j}:{FB+4*j+3}], v{24+2*hi+h2} offset:{so + j*2048}"))
        for i in range(4):
            for q in range(2):
                items.append(lambda i=i, q=q: a(f"ds_read_b64_tr_b16 v[{FA+4*i+2*q}:{FA+4*i+2*q+1}], v{16+4*hi+i} offset:{so + h2*8192 + q*1024}"))
        return items
    def mfma_items(buf):
        FA = 128 + 32 * buf
        FB = 144 + 32 * buf
        items = []
        for i in range(4):
            for j in range(4):
                c = ACC + 16*i + 4*j
                items.append(lambda c=c, i=i, j=j: a(f"v_mfma_f32_16x16x32_bf16 v[{c}:{c+3}], v[{FA+4*i}:{FA+4*i+3}], v[{FB+4*j}:{FB+4*j+3}], v[{c}:{c+3}]"))
        return items
    a.wait("X0")
    a("s_barrier")
    a.stamp()
    for f in read_items(0): f()
    for hh in range(16):
        st = hh >> 1
        a("s_waitcnt lgkmcnt(0)")
        if (hh & 1) and st + 1 < 8:
            a.wait(f"X{st+1}")
            a("s_barrier")
        side = []
        if hh + 1 < 16:
            side += read_items(hh + 1)
        dm = []
        if XPRE == 15 and hh < 2:
            if hh == 0:
                dm = d1[4:] + dma_items(2)
            else:
                dm = dma_items(3)[:4]
        elif XPRE == 3 or XPRE == 15:
            if hh & 1:
                S = st + 3
                if S < 8: dm = dma_items(S)[:4]
            else:
                S = st + 2
                if st >= 1 and S < 8: dm = dma_items(S)[4:]
        else:
            S = st + 2
            if S < 8:
                dm = dma_items(S)[:4] if (hh & 1) == 0 else dma_items(S)[4:]
        if hh == 9:
            dm = dm + [lambda: nonce_get_all(a, 28)]
        m = mfma_items(hh & 1)
        seq = interleave(m, side)
        seq = interleave(seq, dm)
        for f in seq: f()
    a("s_nop 7")
    a("s_nop 1")
    a.stamp()
    a("v_lshlrev_b32 v1, 4, v0")
    a(f"s_lshl_b32 s70, s{s_mb8}, 7")
    a(f"s_lshl_b32 s71, s{SWM}, 6")
    a("s_add_u32 s70, s70, s71")
    a(f"s_lshl_b32 s71, s{s_eb}, 2")
    a("s_add_u32 s70, s70, s71")
    a(f"s_lshl_b32 s71, s{SWE}, 1")
    a("s_add_u32 s70, s70, s71")
    a("s_lshl_b32 s70, s70, 10")
    for j in range(4):
        a(f"s_add_u32 s71, s70, {j*16*1024}")
        for sh in range(2):
            t0 = ACC + 16*(2*sh) + 4*j
            t1 = ACC + 16*(2*sh+1) + 4*j
            o = 128 + 4*(2*j+sh)
            a(f"v_cvt_pk_bf16_f32 v{o}, v{t0}, v{t0+1}")
            a(f"v_cvt_pk_bf16_f32 v{o+1}, v{t0+2}, v{t0+3}")
            a(f"v_cvt_pk_bf16_f32 v{o+2}, v{t1}, v{t1+1}")
            a(f"v_cvt_pk_bf16_f32 v{o+3}, v{t1+2}, v{t1+3}")
            a.vmem(f"buffer_store_dwordx4 v[{o}:{o+3}], v1, {srd(S_XF)}, s71 offen offset:{sh*1024} sc1", "S")
    a.wait("S")
    nonce_check_all(a, 28)
    a(f"s_lshl_b32 s70, s{s_mb8}, 7")
    a(f"s_lshl_b32 s71, s{s_eb}, 2")
    a("s_add_u32 s70, s70, s71")
    a(f"s_add_u32 s70, s70, {F3_B}")
    wg_flag(a, "s70", 2)
    a.stamp()

def role_T(a, s_rb, s_cb, s_rot):
    s_w = S_W
    NSL = 10
    DBS, DBS2 = 68, 95
    TB, CBO, LB, WBASE = 69, 70, 71, 72
    a("v_lshrrev_b32 v1, 3, v0")
    a("v_and_b32 v2, 7, v0")
    a("v_bfe_u32 v3, v1, 1, 1")
    a("v_lshlrev_b32 v3, 2, v3")
    a("v_xor_b32 v2, v2, v3")
    a("v_mul_u32_u24 v10, 2752, v1")
    a("v_lshl_add_u32 v10, v2, 4, v10")
    a(f"s_mul_i32 s73, s{s_w}, 11")
    a(f"s_add_u32 s{TB}, s{s_rot}, s73")
    a(f"s_lshl_b32 s{CBO}, s{s_cb}, 7")
    a(f"s_mul_i32 s{LB}, s{s_w}, {NSL*4096}")
    def step_t(i, dst):
        a(f"s_add_u32 s{dst}, s{TB}, {i}")
        a(f"s_cmp_ge_u32 s{dst}, 44")
        a(f"s_cselect_b32 s75, 44, 0")
        a(f"s_sub_u32 s{dst}, s{dst}, s75")
    def issueV(i):
        slot = i % NSL
        step_t(i, 73)
        a("s_lshr_b32 s74, s73, 1")
        a("s_lshl_b32 s74, s74, 6")
        a("s_and_b32 s73, s73, 1")
        a("s_lshl_b32 s73, s73, 4")
        a("s_add_u32 s73, s73, s74")
        a("s_mul_i32 s73, s73, 2752")
        a(f"s_add_u32 s73, s73, s{CBO}")
        for p, ro in enumerate((0, 8, 32, 40)):
            a(f"s_add_u32 m0, s{LB}, {slot*4096 + p*1024}")
            a(f"s_add_u32 s74, s73, {ro*2752}")
            a.vmem(f"buffer_load_dwordx4 v10, {srd(S_V)}, s74 offen{' nt' if OPT['VNT'] else ''} lds", f"V{i}")
    def addr_setup():
        a("v_lshrrev_b32 v1, 4, v0")
        a("v_bfe_u32 v2, v0, 2, 2")
        a("v_and_b32 v3, 3, v0")
        a("v_lshl_add_u32 v4, v1, 2, v2")
        a("v_lshlrev_b32 v4, 7, v4")
        a("v_lshl_add_u32 v4, v3, 4, v4")
        a("v_lshrrev_b32 v5, 1, v2")
        a("v_lshl_add_u32 v4, v5, 6, v4")
        a(f"v_add_u32 v11, s{LB}, v4")
        a("v_xor_b32 v12, 64, v11")
        a("v_lshlrev_b32 v13, 4, v0")
        a("v_lshlrev_b32 v14, 2, v0")
        a("v_add_u32 v15, 64, v0")
        a("v_min_u32 v15, 87, v15")
        a("v_lshlrev_b32 v15, 2, v15")
    NV0, NV1 = OPT['NV0'], OPT['NV1']
    a(f"s_lshl_b32 s{DBS}, s{s_rb}, 2")
    a(f"s_add_u32 s{DBS}, s{DBS}, s{s_w}")
    PVA = 160
    prep_issue(a, DBS, s_cb, PVA)
    for i in range(NV0):
        issueV(i)
    a.stamp()
    addr_setup()
    a.wait("P")
    a.stamp()
    nonce_get_all(a, 9)
    prep_finish(a, DBS, s_cb, PVA)
    for i in range(NV0, NV1):
        issueV(i)
    a.wait("S")
    a.stamp()
    nonce_check_all(a, 9)
    a(f"s_lshl_b32 s73, s{s_rb}, 9")
    a(f"s_lshl_b32 s74, s{s_cb}, 4")
    a("s_add_u32 s73, s73, s74")
    a(f"s_lshl_b32 s74, s{s_w}, 2")
    a("s_add_u32 s73, s73, s74")
    a(f"s_add_u32 s73, s73, {F1_B}")
    flag_store(a, "s73", 2, None)
    for i in range(NV1, NSL):
        issueV(i)
    def trreads(i):
        slot = i % NSL
        for j in range(4):
            pp, ab = j >> 1, j & 1
            for q in range(2):
                r = 16*i + 4*j + 2*q
                a(f"ds_read_b64_tr_b16 a[{r}:{r+1}], v{11+pp} offset:{slot*4096 + q*2048 + ab*8}")
    a.wait("V0")
    trreads(0)
    a("s_waitcnt lgkmcnt(0)")
    issueV(10)
    a(f"s_lshl_b32 s68, s{s_rb}, 9")
    a(f"s_add_u32 s68, s68, {F1_B}")
    ACC = 176
    for i in range(1, NSL):
        a.wait(f"V{i}")
        trreads(i)
        if i <= 4:
            for r in range(16*(i-1), 16*i):
                a(f"v_accvgpr_write_b32 a{ACC+r}, 0")
        if i == OPT['F1AT']:
            poll_issue(a, 16, 14, "s68", "Q")
            poll_issue(a, 17, 15, "s68", "Q")
    a.wait("V10")
    trreads(10)
    a.wait("Q")
    a.stamp()
    poll_check(a, [16, 17], [14, 15], "s68", sleep=6)
    a.stamp()
    a(f"s_mul_i32 s{WBASE}, s{s_rb}, {4*44}")
    WB = 64
    def w_items(i):
        items = []
        for d in range(4):
            def f(d=d):
                if d == 0:
                    step_t(i, 73)
                    a(f"s_add_u32 s73, s73, s{WBASE}")
                    a("s_lshl_b32 s73, s73, 10")
                    a("s_mov_b32 s74, s73")
                else:
                    a(f"s_add_u32 s74, s73, {d*44*1024}")
                r = WB + 16*i + 4*d
                a.vmem(f"buffer_load_dwordx4 v[{r}:{r+3}], v13, {srd(S_WQF)}, s74 offen{LDSC}", f"W{i}")
            items.append(f)
        return items
    PRE = OPT['WPRE']
    for i in range(PRE):
        for f in w_items(i): f()
    y_f3_addr(a, 18, 19)
    a("s_waitcnt lgkmcnt(0)")
    a("s_barrier")
    for i in range(11):
        a.wait(f"W{i}")
        m = []
        for d in range(4):
            for j in range(4):
                c = ACC + 16*d + 4*j
                ra = WB + 16*i + 4*d
                rb_ = 16*i + 4*j
                m.append(lambda c=c, ra=ra, rb_=rb_: a(f"v_mfma_f32_16x16x32_bf16 a[{c}:{c+3}], v[{ra}:{ra+3}], a[{rb_}:{rb_+3}], a[{c}:{c+3}]"))
        side = w_items(i + PRE) if i + PRE < 11 else []
        if i == 8:
            side = side + [lambda: poll_issue(a, 19, 18, "s67", "Q3")]
        for f in interleave(m, side): f()
    a("s_nop 7")
    a.stamp()
    a("v_lshlrev_b32 v14, 4, v0")
    for w in range(4):
        sk = a.new("TR")
        a(f"s_cmp_eq_u32 s{s_w}, {w}")
        a(f"s_cbranch_scc0 {sk}")
        for o in range(4):
            if o == w: continue
            rank = (w - o - 1) % 4
            sh, jh = o >> 1, o & 1
            tl = 0
            for d in (2*sh, 2*sh+1):
                for j in (2*jh, 2*jh+1):
                    c = ACC + 16*d + 4*j
                    a(f"ds_write_b128 v14, a[{c}:{c+3}] offset:{o*12288 + (rank*4+tl)*1024}")
                    tl += 1
        sh, jh = w >> 1, w & 1
        tl = 0
        for d in (2*sh, 2*sh+1):
            for j in (2*jh, 2*jh+1):
                c = ACC + 16*d + 4*j
                for r in range(4):
                    a(f"v_accvgpr_read_b32 v{20+4*tl+r}, a{c+r}")
                tl += 1
        a.lab(sk)
    a("s_waitcnt lgkmcnt(0)")
    a("s_barrier")
    a(f"s_mul_i32 s73, s{s_w}, 12288")
    a("v_add_u32 v15, s73, v14")
    for k in range(12):
        a(f"ds_read_b128 v[{36+4*k}:{36+4*k+3}], v15 offset:{k*1024}")
    a(f"s_lshr_b32 s62, s{s_w}, 1")
    a(f"s_and_b32 s63, s{s_w}, 1")
    a(f"s_lshl_b32 s64, s{s_cb}, 1")
    a("s_add_u32 s64, s64, s63")
    a(f"s_lshl_b32 s65, s{s_rb}, 1")
    a("s_add_u32 s65, s65, s62")
    a("s_lshl_b32 s70, s64, 5")
    a("s_add_u32 s70, s70, s65")
    a("s_lshl_b32 s70, s70, 10")
    a("s_add_u32 s71, s70, 16384")
    a(f"s_lshl_b32 s64, s{s_cb}, 7")
    a(f"s_lshl_b32 s65, s{s_rb}, 2")
    a("s_add_u32 s64, s64, s65")
    a(f"s_add_u32 s72, s64, {F2_B}")
    for rank in range(3):
        a(f"s_waitcnt lgkmcnt({8-4*rank})")
        for r in range(16):
            a(f"v_add_f32 v{20+r}, v{20+r}, v{36+16*rank+r}")
    for jj in range(2):
        t0, t1, o = 20 + 4*jj, 20 + 4*(2+jj), 88 + 4*jj
        a(f"v_cvt_pk_bf16_f32 v{o}, v{t0}, v{t0+1}")
        a(f"v_cvt_pk_bf16_f32 v{o+1}, v{t0+2}, v{t0+3}")
        a(f"v_cvt_pk_bf16_f32 v{o+2}, v{t1}, v{t1+1}")
        a(f"v_cvt_pk_bf16_f32 v{o+3}, v{t1+2}, v{t1+3}")
        a.vmem(f"buffer_store_dwordx4 v[{o}:{o+3}], v14, {srd(S_TF)}, s{70+jj} offen sc1", "S2")
    a.stamp()
    poll_check(a, [19], [18], "s67")
    a.wait("S2")
    wg_flag(a, "s72", 2)
    y_f2_addr(a)
    y_xr_loads(a, 0, 12)
    a(f"buffer_load_dword v14, v12, {srd(S_FL)}, s68 offen sc1")
    y_xr_loads(a, 12, 16)
    a.stamp()

def y_f2_addr(a):
    a("v_and_b32 v12, 7, v0")
    a("v_lshlrev_b32 v12, 2, v12")
    a("v_bfe_u32 v13, v0, 3, 1")
    a(f"s_cmp_eq_u32 s{S_NBK}, 14")
    a("s_cselect_b32 s63, 0, 128")
    a("v_mul_u32_u24 v13, s63, v13")
    a("v_add_u32 v12, v12, v13")
    a(f"s_min_u32 s68, s{S_NBK}, 14")
    a("s_mul_i32 s68, s68, 3")
    a("s_lshr_b32 s68, s68, 1")
    a("s_lshl_b32 s68, s68, 7")
    a(f"s_add_u32 s68, s68, {F2_B}")

def y_f3_addr(a, vo, vt):
    a(f"v_and_b32 v{vo}, 3, v0")
    a(f"v_lshlrev_b32 v{vo}, 2, v{vo}")
    a(f"s_lshl_b32 s67, s{S_MB8}, 7")
    a(f"s_add_u32 s67, s67, {F3_B}")

def y_rot(a):
    a(f"s_and_b32 s74, s{S_MB8}, 3")
    a("s_lshl_b32 s74, s74, 2")
    a(f"s_and_b32 s75, s{S_NBK}, 7")
    a("s_lshl_b32 s75, s75, 1")
    a("s_add_u32 s74, s74, s75")

def y_xr_loads(a, q0=0, q1=16):
    sk = a.new("YX")
    a(f"s_cmp_ge_u32 s{S_NBK}, 15")
    a(f"s_cbranch_scc1 {sk}")
    y_rot(a)
    a("v_lshlrev_b32 v10, 4, v0")
    a(f"s_lshl_b32 s69, s{S_MB8}, 17")
    a(f"s_lshl_b32 s75, s{S_W}, 15")
    a("s_add_u32 s69, s69, s75")
    for q in range(q0, q1):
        a(f"s_add_u32 s75, s74, {q}")
        a("s_and_b32 s75, s75, 15")
        a("s_lshl_b32 s75, s75, 10")
        a("s_add_u32 s75, s75, s69")
        for i in range(2):
            reg = 8*q + 4*i
            a.vmem(f"buffer_load_dwordx4 a[{reg}:{reg+3}], v10, {srd(S_XF)}, s75 offen{LDSC}", "XR")
            if i == 0:
                a("s_add_u32 s75, s75, 16384")
    a.lab(sk)

def role_y(a):
    s_w, s_mb8, s_nbk = S_W, S_MB8, S_NBK
    a.vm = []
    y_rot(a)
    a("v_lshlrev_b32 v10, 4, v0")
    a("v_add_u32 v11, 0x10000, v10")
    ACC = 16
    for r in range(48):
        a(f"v_mov_b32 v{ACC+r}, 0")
    a("s_waitcnt vmcnt(8)")
    if OPT['F2S']:
        NS1 = OPT['F2S']
        a("s_lshr_b32 s66, s74, 1")
        a("s_and_b32 s66, s66, 7")
        a(f"s_lshl_b32 s67, {(1 << NS1) - 1}, s66")
        a("s_lshr_b32 s75, s67, 8")
        a("s_or_b32 s67, s67, s75")
        a("s_and_b32 s67, s67, 0xff")
        a("s_lshl_b32 s75, s67, 8")
        a("s_or_b32 s67, s67, s75")
        poll_check_mask(a, 14, 12, "s68", 67, sleep=4)
    else:
        poll_check(a, [14], [12], "s68", sleep=6)
    a.stamp()
    a(f"s_mul_i32 s69, s{s_nbk}, {6*16*1024}")
    a(f"s_and_b32 s71, s{s_w}, 1")
    a("s_mul_i32 s71, s71, 49152")
    a("s_add_u32 s69, s69, s71")
    a(f"s_lshr_b32 s73, s{s_w}, 1")
    a("s_add_u32 s73, s73, s74")
    a(f"s_mul_i32 s72, s{s_w}, 3072")
    NG = 8
    def t_items(g):
        items = []
        for k in range(3):
            def f(k=k):
                if k == 0:
                    a(f"s_add_u32 s70, s73, {2*g}")
                    a("s_and_b32 s70, s70, 15")
                    a("s_lshl_b32 s70, s70, 10")
                    a("s_add_u32 s70, s70, s69")
                a(f"s_add_u32 m0, s72, {(12*g + k)*1024}")
                a(f"s_add_u32 s71, s70, {k*16384}")
                a.vmem(f"buffer_load_dwordx4 v10, {srd(S_TF)}, s71 offen{LDSC} lds", f"T{g}")
            items.append(f)
        return items
    PRE = OPT['TPRE']
    if OPT['F2S']:
        PRE = OPT['F2S']
    for g in range(PRE):
        for f in t_items(g): f()
    FA = 64
    def read_items(g):
        items = []
        for qq in range(2):
            q = 2*g + qq
            for j in range(6):
                r = FA + 48*(g & 1) + 24*qq + 4*j
                idx = q*6 + j
                if idx < 64:
                    items.append(lambda r=r, idx=idx: a(f"ds_read_b128 v[{r}:{r+3}], v10 offset:{idx*1024}"))
                else:
                    items.append(lambda r=r, idx=idx: a(f"ds_read_b128 v[{r}:{r+3}], v11 offset:{(idx-64)*1024}"))
        return items
    def mfma_items(g):
        items = []
        for qq in range(2):
            q = 2*g + qq
            for j in range(6):
                for i in range(2):
                    c = ACC + 8*j + 4*i
                    ra = FA + 48*(g & 1) + 24*qq + 4*j
                    rb_ = 8*q + 4*i
                    items.append(lambda c=c, ra=ra, rb_=rb_: a(f"v_mfma_f32_16x16x32_bf16 v[{c}:{c+3}], v[{ra}:{ra+3}], a[{rb_}:{rb_+3}], v[{c}:{c+3}]"))
        return items
    a.wait("T0")
    a("s_barrier")
    a.stamp()
    for f in read_items(0): f()
    for g in range(NG):
        if g + 1 < NG:
            a.wait(f"T{g+1}")
            a("s_waitcnt lgkmcnt(0)")
            a("s_barrier")
        else:
            a("s_waitcnt lgkmcnt(0)")
        side = read_items(g + 1) if g + 1 < NG else []
        if OPT['F2S']:
            G2 = OPT['F2G']
            dm = []
            if g == G2:
                a(f"buffer_load_dword v14, v12, {srd(S_FL)}, s68 offen sc1")
                a("s_waitcnt vmcnt(0)")
                a.vm = []
                poll_check(a, [14], [12], "s68", sleep=4)
                for gg in range(PRE, NG):
                    dm += t_items(gg)
        else:
            dm = t_items(g + PRE) if g + PRE < NG else []
        seq = interleave(mfma_items(g), side)
        seq = interleave(seq, dm)
        for f in seq: f()
    a("s_nop 7")
    a("s_nop 1")
    a.stamp()
    a("v_and_b32 v1, 15, v0")
    a("v_lshrrev_b32 v2, 4, v0")
    a("v_mul_u32_u24 v3, 2752, v1")
    a("v_lshl_add_u32 v3, v2, 4, v3")
    a(f"s_lshl_b32 s70, s{s_mb8}, 7")
    a(f"s_lshl_b32 s71, s{s_w}, 5")
    a("s_add_u32 s70, s70, s71")
    a("s_mul_i32 s70, s70, 2752")
    a(f"s_mul_i32 s71, s{s_nbk}, 192")
    a("s_add_u32 s70, s70, s71")
    a(f"s_add_u32 s71, s70, {16*2752}")
    for p in range(3):
        if p == 1:
            a(f"s_cmp_eq_u32 s{s_nbk}, 14")
            a("s_cbranch_scc1 Y_done")
        for i in range(2):
            t0 = ACC + 8*(2*p) + 4*i
            t1 = ACC + 8*(2*p+1) + 4*i
            o = 160 + 4*(2*p+i)
            a(f"v_cvt_pk_bf16_f32 v{o}, v{t0}, v{t0+1}")
            a(f"v_cvt_pk_bf16_f32 v{o+1}, v{t0+2}, v{t0+3}")
            a(f"v_cvt_pk_bf16_f32 v{o+2}, v{t1}, v{t1+1}")
            a(f"v_cvt_pk_bf16_f32 v{o+3}, v{t1+2}, v{t1+3}")
            a(f"buffer_store_dwordx4 v[{o}:{o+3}], v3, {srd(S_OUT)}, s{70+i} offen offset:{64*p}{['', ' sc1', ' nt', ' sc0 sc1'][OPT['OST']]}")
    a.lab("Y_done")

def kd(name, vgpr, accum, sgpr=102):
    return f""".p2align 6
.amdhsa_kernel {name}
  .amdhsa_next_free_vgpr {vgpr}
  .amdhsa_next_free_sgpr {sgpr}
  .amdhsa_accum_offset {accum}
  .amdhsa_group_segment_fixed_size 0
  .amdhsa_kernarg_size 72
  .amdhsa_user_sgpr_count 2
  .amdhsa_user_sgpr_kernarg_segment_ptr 1
  .amdhsa_system_sgpr_workgroup_id_x 1
.end_amdhsa_kernel
"""

HEADER = open("cdna_kernels/" + NAME + ".s.ref").read().split("; Override launch")[0]

def build():
    a = A()
    K = NAME + "_kernel"
    out = HEADER
    out += "; @launch grid=(256,1,1) block=(256,1,1) lds=163840\n"
    out += '.amdgcn_target "amdgcn-amd-amdhsa--gfx950"\n.text\n'
    a.l.append(f".globl {K}\n.p2align 8\n.type {K},@function\n{K}:")
    a("s_cmp_ge_u32 s2, 256")
    a("s_cbranch_scc1 K_end")
    if STAMPS:
        a("s_memrealtime s[94:95]")
        a("s_memtime s[96:97]")
    prologue(a)
    a(f"s_cmp_eq_u32 s2, {253 if OPT['MAP'] in (2, 3) else 250}")
    a("s_cbranch_scc0 K_np")
    a(f"s_cmp_eq_u32 s{S_W}, 0")
    a("s_cbranch_scc0 K_np")
    kwait(a)
    a("s_memrealtime s[62:63]")
    a("s_waitcnt lgkmcnt(0)")
    a("s_or_b32 s62, s62, 1")
    a("v_mov_b32 v2, s62")
    a("s_mov_b64 exec, 1")
    a(f"buffer_store_dword v2, off, {srd(S_DBG)}, 0 sc1")
    a("s_mov_b64 exec, -1")
    a.lab("K_np")
    if OPT['CPF']:
        a(f"s_cmp_eq_u32 s{S_W}, 3")
        a("s_cbranch_scc0 K_ncpf")
        a("s_getpc_b64 s[62:63]")
        a.lab("K_pc")
        a(f"s_sub_u32 s62, s62, K_pc-{K}")
        a("s_subb_u32 s63, s63, 0")
        a(f"s_mov_b32 s64, K_code_end-{K}-4")
        a("v_lshlrev_b32 v2, 7, v0")
        for k in range(4):
            a(f"v_add_u32 v3, {k*8192}, v2")
            a("v_min_u32 v3, s64, v3")
            a("global_load_dword v255, v3, s[62:63]")
        a.lab("K_ncpf")
    if STAMPS:
        a("s_mov_b32 s76, s94")
        a.nst = 1
    a.stamp()
    a("s_and_b32 s62, s2, 7")
    a("s_lshr_b32 s63, s2, 3")
    a("s_and_b32 s64, s62, 3")
    a("s_lshl_b32 s64, s64, 2")
    a("s_and_b32 s65, s63, 3")
    a(f"s_add_u32 s{S_MB8}, s64, s65")
    a("s_lshr_b32 s64, s62, 2")
    a("s_lshl_b32 s64, s64, 3")
    a("s_lshr_b32 s65, s63, 2")
    a(f"s_add_u32 s{S_NBK}, s64, s65")
    if OPT['MAP'] == 0:
        a("s_lshr_b32 s64, s62, 1")
        a("s_and_b32 s65, s64, 1")
        a("s_sub_u32 s65, 6, s65")
        a("s_lshl_b32 s65, s65, 2")
        a("s_cmp_lt_u32 s63, s65")
        a("s_cbranch_scc0 K_notT")
        a("s_and_b32 s66, s62, 1")
        a("s_lshl_b32 s66, s66, 2")
        a("s_and_b32 s67, s63, 3")
        a(f"s_add_u32 s{S_A}, s66, s67")
        a("s_mul_i32 s64, s64, 11")
        a("s_add_u32 s64, s64, 1")
        a("s_lshr_b32 s64, s64, 1")
        a("s_lshr_b32 s66, s63, 2")
        a(f"s_add_u32 s{S_B}, s64, s66")
        a("s_mul_i32 s67, s67, 11")
        a("s_lshr_b32 s67, s67, 2")
        a("s_lshl_b32 s66, s66, 1")
        a("s_add_u32 s94, s67, s66")
        if OPT['SKEW']:
            a("s_and_b32 s66, s62, 1")
            a("s_mul_i32 s66, s66, 5")
            a("s_add_u32 s94, s94, s66")
    elif OPT['MAP'] == 1:
        a("s_mov_b32 s65, 22")
        a("s_cmp_lt_u32 s63, s65")
        a("s_cbranch_scc0 K_notT")
        a("s_mul_i32 s64, s62, 22")
        a("s_add_u32 s64, s64, s63")
        a(f"s_lshr_b32 s{S_B}, s64, 3")
        a(f"s_and_b32 s{S_A}, s64, 7")
        a(f"s_mul_i32 s67, s{S_A}, 11")
        a("s_lshr_b32 s67, s67, 3")
        a(f"s_and_b32 s66, s{S_B}, 3")
        a("s_mul_i32 s66, s66, 3")
        a("s_add_u32 s94, s67, s66")
    elif OPT['MAP'] == 3:
        a("s_cmp_lt_u32 s62, 4")
        a("s_cselect_b32 s65, 16, 28")
        a("s_cmp_lt_u32 s63, s65")
        a("s_cbranch_scc0 K_notT")
        a("s_and_b32 s66, s62, 1")
        a("s_lshl_b32 s66, s66, 2")
        a("s_and_b32 s67, s63, 3")
        a(f"s_add_u32 s{S_A}, s66, s67")
        a("s_lshr_b32 s64, s62, 1")
        a("s_lshl_b32 s66, s64, 2")
        a("s_mul_i32 s65, s64, 7")
        a("s_sub_u32 s65, s65, 6")
        a("s_cmp_lt_u32 s62, 4")
        a("s_cselect_b32 s64, s66, s65")
        a("s_lshr_b32 s66, s63, 2")
        a(f"s_add_u32 s{S_B}, s64, s66")
        a("s_mul_i32 s67, s67, 11")
        a("s_lshr_b32 s67, s67, 2")
        a("s_mul_i32 s66, s66, 3")
        a("s_lshr_b32 s66, s66, 1")
        a("s_add_u32 s94, s67, s66")
        a("s_and_b32 s66, s62, 1")
        a("s_mul_i32 s66, s66, 5")
        a("s_add_u32 s94, s94, s66")
    else:
        a("s_cmp_ge_u32 s62, 6")
        a("s_cbranch_scc1 K_xr")
        a("s_cmp_lt_u32 s62, 2")
        a("s_cselect_b32 s65, 30, 29")
        a("s_cmp_lt_u32 s63, s65")
        a("s_cbranch_scc0 K_spare")
        a("s_min_u32 s66, s62, 2")
        a("s_mul_i32 s64, s62, 29")
        a("s_add_u32 s64, s64, s66")
        a("s_add_u32 s64, s64, s63")
        a(f"s_lshr_b32 s{S_B}, s64, 3")
        a(f"s_and_b32 s{S_A}, s64, 7")
        a(f"s_mul_i32 s67, s{S_A}, 11")
        a("s_lshr_b32 s67, s67, 3")
        a(f"s_and_b32 s66, s{S_B}, 3")
        a("s_mul_i32 s66, s66, 3")
        a("s_add_u32 s94, s67, s66")
    nst0 = a.nst
    if OPT['DIAG'] == 2:
        a("s_branch K_fin")
    role_T(a, S_A, S_B, 94)
    if OPT['DIAG']:
        a.nst = 10
    nstT = a.nst
    a.lab("K_y")
    a.nst = nstT
    a(f"s_cmp_ge_u32 s{S_NBK}, 15")
    a("s_cbranch_scc1 K_fin")
    role_y(a)
    a.lab("K_fin")
    if OPT['DBGSPAN']:
        a(f"s_cmp_eq_u32 s{S_W}, 0")
        a("s_cbranch_scc0 K_end")
        a("s_waitcnt vmcnt(0)")
        a("s_memrealtime s[62:63]")
        a("s_waitcnt lgkmcnt(0)")
        a(f"s_sub_u32 s62, s62, s{S_NONCE}")
        a("v_mov_b32 v2, s62")
        a("s_mov_b64 exec, 1")
        a(f"buffer_atomic_umax v2, off, {srd(S_DBG)}, 0 offset:4")
        a("s_waitcnt vmcnt(0)")
    stamp_flush(a)
    a.lab("K_end")
    a("s_endpgm")
    a.lab("K_notT")
    if OPT['MAP'] == 3:
        a("s_cmp_ge_u32 s62, 4")
        a("s_cbranch_scc1 K_spare")
        a("s_sub_u32 s63, s63, 16")
        a(f"s_and_b32 s{S_A}, s63, 3")
        a("s_lshr_b32 s65, s63, 2")
        a("s_lshl_b32 s64, s62, 2")
        a(f"s_add_u32 s{S_B}, s64, s65")
        a(f"s_lshl_b32 s73, s{S_A}, 1")
        a("s_lshl_b32 s65, s65, 1")
        a("s_add_u32 s73, s73, s65")
        a("s_add_u32 s73, s73, s62")
    elif OPT['MAP'] == 2:
        a.lab("K_xr")
        a(f"s_and_b32 s{S_A}, s63, 3")
        a("s_lshr_b32 s65, s63, 2")
        a("s_sub_u32 s64, s62, 6")
        a("s_lshl_b32 s64, s64, 3")
        a(f"s_add_u32 s{S_B}, s64, s65")
        a(f"s_lshl_b32 s73, s{S_A}, 1")
        a("s_add_u32 s73, s73, s65")
    else:
        a("s_sub_u32 s63, s63, s65")
        a("s_cmp_lt_u32 s63, 8")
        a("s_cbranch_scc0 K_spare")
        if OPT['XMAP'] == 1:
            a(f"s_and_b32 s{S_A}, s63, 3")
            a("s_lshl_b32 s64, s62, 1")
            a("s_lshr_b32 s65, s63, 2")
            a(f"s_add_u32 s{S_B}, s64, s65")
            a(f"s_lshl_b32 s73, s{S_A}, 1")
            a("s_add_u32 s73, s73, s65")
            a("s_add_u32 s73, s73, s62")
        else:
            a("s_and_b32 s64, s62, 1")
            a("s_lshl_b32 s64, s64, 1")
            a("s_and_b32 s65, s63, 1")
            a(f"s_add_u32 s{S_A}, s64, s65")
            a("s_lshr_b32 s64, s62, 1")
            a("s_lshl_b32 s64, s64, 2")
            a("s_lshr_b32 s65, s63, 1")
            a(f"s_add_u32 s{S_B}, s64, s65")
            a("s_and_b32 s64, s63, 1")
            a("s_lshl_b32 s64, s64, 2")
            a("s_lshr_b32 s65, s63, 1")
            a("s_lshl_b32 s65, s65, 1")
            a("s_add_u32 s73, s64, s65")
            a("s_and_b32 s64, s62, 1")
            a("s_add_u32 s73, s73, s64")
    a.vm = []
    a.nst = nst0
    if OPT['DIAG'] == 1:
        a("s_branch K_fin")
    role_xr(a, S_A, S_B, 73)
    if OPT['DIAG'] == 2:
        a("s_branch K_fin")
    a("s_branch K_pre")
    a.lab("K_spare")
    if OPT['DIAG']:
        a("s_branch K_fin")
    a.vm = []
    n2 = a.nst
    a.nst = nst0
    kwait(a)
    late_srds(a)
    nonce_get_all(a, 9)
    a("s_waitcnt vmcnt(0)")
    nonce_check_all(a, 9)
    while STAMPS and a.nst < n2:
        a.stamp()
    a.lab("K_pre")
    a.vm = []
    a(f"s_cmp_ge_u32 s{S_NBK}, 15")
    a("s_cbranch_scc1 K_fin")
    y_f3_addr(a, 18, 19)
    a("s_nop 0")
    wg_poll(a, 19, 18, "s67", sleep=8)
    y_xr_loads(a)
    y_f2_addr(a)
    wg_poll(a, 14, 12, "s68", sleep=4)
    a(f"v_mov_b32 v14, s{S_NONCE}")
    while STAMPS and a.nst < nstT:
        a.stamp()
    a("s_branch K_y")
    a.lab("K_code_end")
    out += a.text()
    out += '.section .rodata,"a"\n'
    out += kd(K, 512, 256)
    return out

if __name__ == "__main__":
    for arg in list(sys.argv):
        if arg.startswith("-O"):
            k, v = arg[2:].split("=")
            OPT[k] = int(v)
            sys.argv.remove(arg)
    if "--plain" in sys.argv:
        LDSC = ""
        sys.argv.remove("--plain")
    if "--stamps" in sys.argv:
        STAMPS = True
        sys.argv.remove("--stamps")
    dst = sys.argv[1] if len(sys.argv) > 1 else "cdna_kernels/" + NAME + ".s"
    open(dst, "w").write(build())
    print("wrote", dst)
```

```python
import sys

NAME = "standalone__weight_only_int_quip__prompt"
M, D, F = 2048, 512, 1376
WQF_OFF, WQF_SZ = 0x000000, 32 * 44 * 1024
XF_OFF, XF_SZ = 0x200000, 128 * 16 * 1024
TF_OFF, TF_SZ = 0x400000, 86 * 16 * 1024
FL_OFF, FL_SZ = 0x600000, 0x4000
F1_B, F2_B, F3_B = 0x0000, 0x1000, 0x2000
STAMPS = False
OPT = dict(NV0=0, NV1=3, WPRE=4, TPRE=4, XPRE=15, SKEW=1, DIAG=0, MAP=0, XMAP=0, CPF=1, OST=2, DBGSPAN=0, XQ=4, F1AT=9, F2S=0, F2G=1, PNT=0, VNT=0, SNT=0)
SPIN_MAX = 200000
LDSC = ' sc1'


class A:
    def __init__(s):
        s.l = []
        s.vm = []
        s.nst = 0
        s.uid = 0
    def __call__(s, x):
        s.l.append("  " + x)
    def lab(s, x):
        s.l.append(x + ":")
    def text(s):
        return "\n".join(s.l) + "\n"
    def vmem(s, x, tag):
        s(x); s.vm.append(tag)
    def wait(s, tag, extra=""):
        idx = [i for i, t in enumerate(s.vm) if t == tag]
        if not idx:
            return
        n = len(s.vm) - 1 - idx[-1]
        assert n <= 63, n
        s(f"s_waitcnt vmcnt({n}){extra}")
        s.vm = s.vm[idx[-1] + 1:]
    def waitall(s):
        s("s_waitcnt vmcnt(0)"); s.vm = []
    def new(s, p):
        s.uid += 1
        return f"{p}_{s.uid}"
    def stamp(s):
        if not STAMPS: return
        i = s.nst; s.nst += 1
        assert i < 24, i
        s("s_memrealtime s[100:101]")
        s("s_waitcnt lgkmcnt(0)")
        s(f"s_mov_b32 s{76+i}, s100")

S_X, S_QW, S_SC, S_ZR, S_U, S_V, S_OUT, S_WQF, S_XF, S_TF, S_FL, S_DBG = [8 + 4*i for i in range(12)]
S_W, S_NONCE, S_A, S_B, S_MB8, S_NBK = 56, 57, 58, 59, 60, 61
T0 = 62
def srd(i): return f"s[{i}:{i+3}]"

def prologue(a):
    tbl = [(S_QW, 8, D*F*4), (S_SC, 16, 4*F*2), (S_ZR, 24, 4*F*2), (S_U, 32, D*D*2), (S_X, 0, M*D*2),
           (S_V, 40, F*F*2), (S_OUT, 48, M*F*2), (S_DBG, 56, 256)]
    for r, off, sz in tbl:
        a(f"s_load_dwordx2 s[{r}:{r+1}], s[0:1], {off}")
    a("s_load_dwordx2 s[92:93], s[0:1], 64")
    a("v_lshrrev_b32 v1, 6, v0")
    a("v_and_b32 v0, 63, v0")
    a(f"v_readfirstlane_b32 s{S_W}, v1")
    for r, off, sz in tbl:
        a(f"s_mov_b32 s{r+2}, {sz}")
        a(f"s_mov_b32 s{r+3}, 0x20000")
    for r, off, sz in [(S_WQF, WQF_OFF, WQF_SZ), (S_XF, XF_OFF, XF_SZ), (S_TF, TF_OFF, TF_SZ), (S_FL, FL_OFF, FL_SZ)]:
        a(f"s_mov_b32 s{r+2}, {sz}")
        a(f"s_mov_b32 s{r+3}, 0x20000")

def kwait(a):
    a("s_waitcnt lgkmcnt(0)")

def late_srds(a):
    for r, off, sz in [(S_WQF, WQF_OFF, WQF_SZ), (S_FL, FL_OFF, FL_SZ), (S_XF, XF_OFF, XF_SZ), (S_TF, TF_OFF, TF_SZ)]:
        a(f"s_add_u32 s{r}, s92, {off}")
        a(f"s_addc_u32 s{r+1}, s93, 0")

def stamp_flush(a):
    if not STAMPS: return
    a.stamp()
    a("s_waitcnt vmcnt(0)")
    a.stamp()
    n = a.nst
    a("s_memtime s[98:99]")
    a("s_load_dwordx2 s[62:63], s[0:1], 64")
    a("s_waitcnt lgkmcnt(0)")
    a("s_add_u32 s8, s62, 0x800000")
    a("s_addc_u32 s9, s63, 0")
    a("s_and_b32 s9, s9, 0xffff")
    a("s_mov_b32 s10, 0x100000")
    a("s_mov_b32 s11, 0x20000")
    a("s_lshl_b32 s64, s2, 2")
    a(f"s_add_u32 s64, s64, s{S_W}")
    a("s_lshl_b32 s64, s64, 7")
    a("s_mov_b64 exec, 1")
    a("v_mov_b32 v3, 0")
    for i in range(n):
        a(f"v_mov_b32 v4, s{76+i}")
        a(f"buffer_store_dword v4, v3, s[8:11], s64 offen offset:{4*i}")
        a("s_nop 1")
    a("s_sub_u32 s98, s98, s96")
    a("v_mov_b32 v4, s98")
    a("buffer_store_dword v4, v3, s[8:11], s64 offen offset:120")

def nonce_get_all(a, vreg):
    a.vmem(f"buffer_load_dword v{vreg}, off, {srd(S_DBG)}, 0 sc1", "N")

def nonce_check_all(a, vreg):
    L, Dn = a.new("NC"), a.new("ND")
    a(f"v_readfirstlane_b32 s{S_NONCE}, v{vreg}")
    a(f"s_mov_b32 s{T0}, {SPIN_MAX}")
    a.lab(L)
    a(f"s_cmp_lg_u32 s{S_NONCE}, 0")
    a(f"s_cbranch_scc1 {Dn}")
    a(f"s_sub_u32 s{T0}, s{T0}, 1")
    a(f"s_cbranch_scc1 {Dn}")
    a("s_sleep 2")
    a(f"buffer_load_dword v{vreg}, off, {srd(S_DBG)}, 0 sc1")
    a("s_waitcnt vmcnt(0)")
    a(f"v_readfirstlane_b32 s{S_NONCE}, v{vreg}")
    a(f"s_branch {L}")
    a.lab(Dn)

def nonce_get(a, vreg, after_issue=None):
    sk = a.new("NG")
    a(f"s_cmp_eq_u32 s{S_W}, 0")
    a(f"s_cbranch_scc0 {sk}")
    a(f"buffer_load_dword v{vreg}, off, {srd(S_DBG)}, 0 sc1")
    a.lab(sk)

def nonce_check(a, vreg):
    L, Dn = a.new("NC"), a.new("ND")
    a(f"s_cmp_eq_u32 s{S_W}, 0")
    a(f"s_cbranch_scc0 {Dn}")
    a(f"v_readfirstlane_b32 s{S_NONCE}, v{vreg}")
    a(f"s_mov_b32 s{T0}, {SPIN_MAX}")
    a.lab(L)
    a(f"s_cmp_lg_u32 s{S_NONCE}, 0")
    a(f"s_cbranch_scc1 {Dn}")
    a(f"s_sub_u32 s{T0}, s{T0}, 1")
    a(f"s_cbranch_scc1 {Dn}")
    a("s_sleep 2")
    a(f"buffer_load_dword v{vreg}, off, {srd(S_DBG)}, 0 sc1")
    a("s_waitcnt vmcnt(0)")
    a(f"v_readfirstlane_b32 s{S_NONCE}, v{vreg}")
    a(f"s_branch {L}")
    a.lab(Dn)

def poll_issue(a, vreg, voff, soff, tag):
    a.vmem(f"buffer_load_dword v{vreg}, v{voff}, {srd(S_FL)}, {soff} offen sc1", tag)

def poll_check(a, regs, voffs, soff, sleep=4):
    L, Dn = a.new("PL"), a.new("PD")
    a(f"s_mov_b32 s{T0}, {SPIN_MAX}")
    a.lab(L)
    a(f"v_cmp_ne_u32 s[{T0+2}:{T0+3}], s{S_NONCE}, v{regs[0]}")
    for r in regs[1:]:
        a(f"v_cmp_ne_u32 s[{T0+4}:{T0+5}], s{S_NONCE}, v{r}")
        a(f"s_or_b64 s[{T0+2}:{T0+3}], s[{T0+2}:{T0+3}], s[{T0+4}:{T0+5}]")
    a(f"s_cmp_eq_u64 s[{T0+2}:{T0+3}], 0")
    a(f"s_cbranch_scc1 {Dn}")
    a(f"s_sub_u32 s{T0}, s{T0}, 1")
    a(f"s_cbranch_scc1 {Dn}")
    a(f"s_sleep {sleep}")
    for r, vo in zip(regs, voffs):
        a(f"buffer_load_dword v{r}, v{vo}, {srd(S_FL)}, {soff} offen sc1")
    a("s_waitcnt vmcnt(0)")
    a(f"s_branch {L}")
    a.lab(Dn)

def wg_flag(a, soff, vtmp):
    sk = a.new("WF")
    a("s_barrier")
    a(f"s_cmp_eq_u32 s{S_W}, 0")
    a(f"s_cbranch_scc0 {sk}")
    a(f"v_mov_b32 v{vtmp}, s{S_NONCE}")
    a("s_mov_b64 exec, 1")
    a(f"buffer_store_dword v{vtmp}, off, {srd(S_FL)}, {soff} sc1")
    a("s_mov_b64 exec, -1")
    a.lab(sk)

def wg_poll(a, reg, voff, soff, sleep=4, reg2=None, voff2=None):
    L, Dn, sk = a.new("PL"), a.new("PD"), a.new("PS")
    a(f"s_cmp_eq_u32 s{S_W}, 0")
    a(f"s_cbranch_scc0 {sk}")
    a(f"s_mov_b32 s{T0}, {SPIN_MAX}")
    a.lab(L)
    a(f"buffer_load_dword v{reg}, v{voff}, {srd(S_FL)}, {soff} offen sc1")
    if reg2 is not None:
        a(f"buffer_load_dword v{reg2}, v{voff2}, {srd(S_FL)}, {soff} offen sc1")
    a("s_waitcnt vmcnt(0)")
    a(f"v_cmp_ne_u32 s[{T0+2}:{T0+3}], s{S_NONCE}, v{reg}")
    if reg2 is not None:
        a(f"v_cmp_ne_u32 s[{T0+4}:{T0+5}], s{S_NONCE}, v{reg2}")
        a(f"s_or_b64 s[{T0+2}:{T0+3}], s[{T0+2}:{T0+3}], s[{T0+4}:{T0+5}]")
    a(f"s_cmp_eq_u64 s[{T0+2}:{T0+3}], 0")
    a(f"s_cbranch_scc1 {Dn}")
    a(f"s_sub_u32 s{T0}, s{T0}, 1")
    a(f"s_cbranch_scc1 {Dn}")
    a(f"s_sleep {sleep}")
    a(f"s_branch {L}")
    a.lab(Dn)
    a.lab(sk)
    a("s_barrier")

def poll_check_mask(a, reg, voff, soff, smask, sleep=4):
    L, Dn = a.new("PM"), a.new("PN")
    a(f"s_mov_b32 s{T0}, {SPIN_MAX}")
    a.lab(L)
    a(f"v_cmp_ne_u32 s[{T0+2}:{T0+3}], s{S_NONCE}, v{reg}")
    a(f"s_and_b32 s{T0+2}, s{T0+2}, s{smask}")
    a(f"s_cbranch_scc0 {Dn}")
    a(f"s_sub_u32 s{T0}, s{T0}, 1")
    a(f"s_cbranch_scc1 {Dn}")
    a(f"s_sleep {sleep}")
    a(f"buffer_load_dword v{reg}, v{voff}, {srd(S_FL)}, {soff} offen sc1")
    a("s_waitcnt vmcnt(0)")
    a(f"s_branch {L}")
    a.lab(Dn)

def flag_store(a, soff, vtmp, vzero):
    a(f"v_mov_b32 v{vtmp}, s{S_NONCE}")
    a("s_mov_b64 exec, 1")
    a.vmem(f"buffer_store_dword v{vtmp}, off, {srd(S_FL)}, {soff} sc1", "F")
    a("s_mov_b64 exec, -1")

def prep_issue(a, s_db, s_kb, V):
    t = T0
    a(f"v_lshrrev_b32 v{V+1}, 3, v0")
    a(f"v_and_b32 v{V+2}, 7, v0")
    a(f"v_mul_u32_u24 v{V+3}, 5504, v{V+1}")
    a(f"v_lshl_add_u32 v{V+3}, v{V+2}, 4, v{V+3}")
    a(f"v_lshlrev_b32 v{V+4}, 3, v{V+2}")
    a(f"s_cmp_eq_u32 s{s_kb}, 21")
    a(f"s_cselect_b32 s{t}, 0x40000000, 128")
    a(f"s_cselect_b32 s{t+1}, 0x40000000, 64")
    a(f"v_add_u32 v{V+5}, s{t}, v{V+3}")
    a(f"v_add_u32 v{V+6}, s{t+1}, v{V+4}")
    a(f"s_mul_i32 s{t+2}, s{s_db}, 88064")
    a(f"s_lshl_b32 s{t+3}, s{s_kb}, 8")
    a(f"s_add_u32 s{t+2}, s{t+2}, s{t+3}")
    a(f"s_add_u32 s{t+3}, s{t+2}, 44032")
    a(f"s_lshr_b32 s{t+4}, s{s_db}, 3")
    a(f"s_mul_i32 s{t+4}, s{t+4}, 2752")
    a(f"s_lshl_b32 s{t+5}, s{s_kb}, 7")
    a(f"s_add_u32 s{t+4}, s{t+4}, s{t+5}")
    kwait(a)
    a.vmem(f"buffer_load_dwordx4 v[{V+8}:{V+11}], v{V+3}, {srd(S_QW)}, s{t+2} offen{' nt' if OPT['PNT'] else ''}", "P")
    a.vmem(f"buffer_load_dwordx4 v[{V+12}:{V+15}], v{V+5}, {srd(S_QW)}, s{t+2} offen{' nt' if OPT['PNT'] else ''}", "P")
    a.vmem(f"buffer_load_dwordx4 v[{V+16}:{V+19}], v{V+3}, {srd(S_QW)}, s{t+3} offen{' nt' if OPT['PNT'] else ''}", "P")
    a.vmem(f"buffer_load_dwordx4 v[{V+20}:{V+23}], v{V+5}, {srd(S_QW)}, s{t+3} offen{' nt' if OPT['PNT'] else ''}", "P")
    a.vmem(f"buffer_load_dwordx2 v[{V+24}:{V+25}], v{V+4}, {srd(S_SC)}, s{t+4} offen", "P")
    a.vmem(f"buffer_load_dwordx2 v[{V+26}:{V+27}], v{V+6}, {srd(S_SC)}, s{t+4} offen", "P")
    a.vmem(f"buffer_load_dwordx2 v[{V+28}:{V+29}], v{V+4}, {srd(S_ZR)}, s{t+4} offen", "P")
    a.vmem(f"buffer_load_dwordx2 v[{V+30}:{V+31}], v{V+6}, {srd(S_ZR)}, s{t+4} offen", "P")
    late_srds(a)
    a(f"v_lshrrev_b32 v{V+7}, 2, v{V+2}")
    a(f"v_lshlrev_b32 v{V+7}, 10, v{V+7}")
    a(f"v_and_b32 v{V+32}, 3, v{V+2}")
    a(f"v_lshl_add_u32 v{V+7}, v{V+32}, 8, v{V+7}")
    a(f"v_lshl_add_u32 v{V+7}, v{V+1}, 4, v{V+7}")

def prep_finish(a, s_db, s_kb, V):
    t = T0
    a(f"s_mul_i32 s{t}, s{s_db}, 44")
    a(f"s_lshl_b32 s{t+1}, s{s_kb}, 1")
    a(f"s_add_u32 s{t}, s{t}, s{t+1}")
    a(f"s_lshl_b32 s{t}, s{t}, 10")
    a(f"s_mov_b32 s{t+1}, 0xffff0000")
    for i in range(4):
        a(f"v_lshlrev_b32 v{V+32+2*i}, 16, v{V+24+i}")
        a(f"v_and_b32 v{V+33+2*i}, s{t+1}, v{V+24+i}")
        a(f"v_lshlrev_b32 v{V+40+2*i}, 16, v{V+28+i}")
        a(f"v_and_b32 v{V+41+2*i}, s{t+1}, v{V+28+i}")
    for rh in range(2):
        q = V + 8 + 8 * rh
        for i in range(8):
            a(f"v_cvt_f32_i32 v{q+i}, v{q+i}")
        for i in range(8):
            a(f"v_sub_f32 v{q+i}, v{q+i}, v{V+40+i}")
        for i in range(4):
            a(f"v_cvt_pk_bf16_f32 v{V+48+i}, v{q+2*i}, v{q+2*i+1}")
        for i in range(4):
            a(f"v_lshlrev_b32 v{q+2*i}, 16, v{V+48+i}")
            a(f"v_and_b32 v{q+2*i+1}, s{t+1}, v{V+48+i}")
        for i in range(8):
            a(f"v_mul_f32 v{q+i}, v{q+i}, v{V+32+i}")
        o = V + 52 + 4 * rh
        for i in range(4):
            a(f"v_cvt_pk_bf16_f32 v{o+i}, v{q+2*i}, v{q+2*i+1}")
        a.vmem(f"buffer_store_dwordx4 v[{o}:{o+3}], v{V+7}, {srd(S_WQF)}, s{t} offen offset:{128*rh} sc1", "S")

def interleave(main, side):
    out = []
    n, m = len(main), len(side)
    k = 0
    for i, x in enumerate(main):
        out.append(x)
        while k < m and (k + 1) * n <= (i + 1) * m + (n - 1) * 0:
            out.append(side[k]); k += 1
    out.extend(side[k:])
    return out

def role_xr(a, s_eb, s_mb8, s_rot):
    s_w = S_W
    SWE, SWM, UB, XB, LB, TT = 64, 65, 66, 67, 68, 69
    a(f"s_and_b32 s{SWE}, s{s_w}, 1")
    a(f"s_lshr_b32 s{SWM}, s{s_w}, 1")
    a("v_lshrrev_b32 v1, 4, v0")
    a("v_and_b32 v2, 15, v0")
    a("v_lshlrev_b32 v3, 1, v1")
    a("v_xor_b32 v4, v2, v3")
    a("v_xor_b32 v5, 8, v4")
    a("v_lshlrev_b32 v6, 10, v1")
    a("v_lshl_add_u32 v10, v4, 4, v6")
    a("v_lshl_add_u32 v11, v5, 4, v6")
    a("v_lshrrev_b32 v1, 3, v0")
    a("v_and_b32 v2, 7, v0")
    a("v_lshrrev_b32 v3, 1, v1")
    a("v_xor_b32 v4, v2, v3")
    a("v_xor_b32 v5, 4, v4")
    a("v_lshlrev_b32 v6, 10, v1")
    a("v_lshl_add_u32 v12, v4, 4, v6")
    a("v_lshl_add_u32 v13, v5, 4, v6")
    a(f"s_lshl_b32 s{UB}, s{s_w}, 14")
    a(f"s_lshl_b32 s{TT}, s{s_eb}, 8")
    a(f"s_add_u32 s{UB}, s{UB}, s{TT}")
    a(f"s_lshl_b32 s{XB}, s{s_mb8}, 17")
    a(f"s_lshl_b32 s{TT}, s{s_w}, 15")
    a(f"s_add_u32 s{XB}, s{XB}, s{TT}")
    a(f"s_lshl_b32 s{LB}, s{s_w}, 12")
    NSL = 4
    def dma_items(st):
        slot = st % NSL
        items = []
        def setup():
            a(f"s_add_u32 s70, s{s_rot}, {st}")
            a("s_and_b32 s70, s70, 7")
            a("s_lshl_b32 s71, s70, 16")
            a(f"s_add_u32 s71, s71, s{UB}")
            a("s_lshl_b32 s72, s70, 7")
            a(f"s_add_u32 s72, s72, s{XB}")
        for aa in range(4):
            def f(aa=aa):
                if aa == 0: setup()
                a(f"s_add_u32 m0, s{LB}, {slot*32768 + aa*1024}")
                a(f"s_add_u32 s{TT}, s71, {aa*4096}")
                a.vmem(f"buffer_load_dwordx4 v{10 + (aa>>1)}, {srd(S_U)}, s{TT} offen lds", f"X{st}")
            items.append(f)
        for bb in range(4):
            def f(bb=bb):
                a(f"s_add_u32 m0, s{LB}, {slot*32768 + 16384 + bb*1024}")
                a(f"s_add_u32 s{TT}, s72, {bb*8192}")
                a.vmem(f"buffer_load_dwordx4 v{12 + (bb&1)}, {srd(S_X)}, s{TT} offen lds", f"X{st}")
            items.append(f)
        return items
    XPRE = OPT['XPRE']
    kwait(a)
    if XPRE == 15:
        for f in dma_items(0): f()
        d1 = dma_items(1)
        for f in d1[:4]: f()
    else:
        for st in range(XPRE):
            for f in dma_items(st): f()
    late_srds(a)
    a.stamp()
    a("v_lshrrev_b32 v1, 4, v0")
    a("v_bfe_u32 v2, v0, 2, 2")
    a("v_and_b32 v3, 3, v0")
    a("v_lshl_add_u32 v4, v1, 3, v2")
    a("v_lshlrev_b32 v4, 8, v4")
    a("v_and_b32 v5, 1, v1")
    a("v_lshlrev_b32 v5, 3, v5")
    a("v_lshl_add_u32 v5, v2, 1, v5")
    a("v_lshrrev_b32 v6, 1, v3")
    a(f"s_lshl_b32 s{TT}, s{SWE}, 3")
    a(f"v_or_b32 v6, s{TT}, v6")
    a("v_xor_b32 v5, v5, v6")
    a("v_lshl_add_u32 v4, v5, 4, v4")
    a("v_and_b32 v6, 1, v3")
    a("v_lshl_add_u32 v4, v6, 3, v4")
    for i in range(4):
        a(f"v_xor_b32 v{16+i}, {i<<5}, v4")
        a(f"v_add_u32 v{20+i}, 0x10000, v{16+i}")
    a("v_and_b32 v2, 15, v0")
    a("v_lshrrev_b32 v3, 1, v2")
    a("v_xor_b32 v3, v3, v1")
    a("v_lshlrev_b32 v4, 7, v2")
    a("v_lshl_add_u32 v4, v3, 4, v4")
    a(f"s_lshl_b32 s{TT}, s{SWM}, 13")
    a(f"s_add_u32 s{TT}, s{TT}, 16384")
    a(f"v_add_u32 v24, s{TT}, v4")
    a("v_xor_b32 v25, 64, v24")
    a("v_add_u32 v26, 0x10000, v24")
    a("v_add_u32 v27, 0x10000, v25")
    ACC = 64
    for r in range(64):
        a(f"v_mov_b32 v{ACC+r}, 0")
    def read_items(hh):
        st, h2, buf = hh >> 1, hh & 1, hh & 1
        slot = st % NSL
        hi = slot >> 1
        so = (slot & 1) * 32768
        FA = 128 + 32 * buf
        FB = 144 + 32 * buf
        items = []
        for j in range(4):
            items.append(lambda j=j: a(f"ds_read_b128 v[{FB+4*j}:{FB+4*j+3}], v{24+2*hi+h2} offset:{so + j*2048}"))
        for i in range(4):
            for q in range(2):
                items.append(lambda i=i, q=q: a(f"ds_read_b64_tr_b16 v[{FA+4*i+2*q}:{FA+4*i+2*q+1}], v{16+4*hi+i} offset:{so + h2*8192 + q*1024}"))
        return items
    def mfma_items(buf):
        FA = 128 + 32 * buf
        FB = 144 + 32 * buf
        items = []
        for i in range(4):
            for j in range(4):
                c = ACC + 16*i + 4*j
                items.append(lambda c=c, i=i, j=j: a(f"v_mfma_f32_16x16x32_bf16 v[{c}:{c+3}], v[{FA+4*i}:{FA+4*i+3}], v[{FB+4*j}:{FB+4*j+3}], v[{c}:{c+3}]"))
        return items
    a.wait("X0")
    a("s_barrier")
    a.stamp()
    for f in read_items(0): f()
    for hh in range(16):
        st = hh >> 1
        a("s_waitcnt lgkmcnt(0)")
        if (hh & 1) and st + 1 < 8:
            a.wait(f"X{st+1}")
            a("s_barrier")
        side = []
        if hh + 1 < 16:
            side += read_items(hh + 1)
        dm = []
        if XPRE == 15 and hh < 2:
            if hh == 0:
                dm = d1[4:] + dma_items(2)
            else:
                dm = dma_items(3)[:4]
        elif XPRE == 3 or XPRE == 15:
            if hh & 1:
                S = st + 3
                if S < 8: dm = dma_items(S)[:4]
            else:
                S = st + 2
                if st >= 1 and S < 8: dm = dma_items(S)[4:]
        else:
            S = st + 2
            if S < 8:
                dm = dma_items(S)[:4] if (hh & 1) == 0 else dma_items(S)[4:]
        if hh == 9:
            dm = dm + [lambda: nonce_get_all(a, 28)]
        m = mfma_items(hh & 1)
        seq = interleave(m, side)
        seq = interleave(seq, dm)
        for f in seq: f()
    a("s_nop 7")
    a("s_nop 1")
    a.stamp()
    a("v_lshlrev_b32 v1, 4, v0")
    a(f"s_lshl_b32 s70, s{s_mb8}, 7")
    a(f"s_lshl_b32 s71, s{SWM}, 6")
    a("s_add_u32 s70, s70, s71")
    a(f"s_lshl_b32 s71, s{s_eb}, 2")
    a("s_add_u32 s70, s70, s71")
    a(f"s_lshl_b32 s71, s{SWE}, 1")
    a("s_add_u32 s70, s70, s71")
    a("s_lshl_b32 s70, s70, 10")
    for j in range(4):
        a(f"s_add_u32 s71, s70, {j*16*1024}")
        for sh in range(2):
            t0 = ACC + 16*(2*sh) + 4*j
            t1 = ACC + 16*(2*sh+1) + 4*j
            o = 128 + 4*(2*j+sh)
            a(f"v_cvt_pk_bf16_f32 v{o}, v{t0}, v{t0+1}")
            a(f"v_cvt_pk_bf16_f32 v{o+1}, v{t0+2}, v{t0+3}")
            a(f"v_cvt_pk_bf16_f32 v{o+2}, v{t1}, v{t1+1}")
            a(f"v_cvt_pk_bf16_f32 v{o+3}, v{t1+2}, v{t1+3}")
            a.vmem(f"buffer_store_dwordx4 v[{o}:{o+3}], v1, {srd(S_XF)}, s71 offen offset:{sh*1024} sc1", "S")
    a.wait("S")
    nonce_check_all(a, 28)
    a(f"s_lshl_b32 s70, s{s_mb8}, 7")
    a(f"s_lshl_b32 s71, s{s_eb}, 2")
    a("s_add_u32 s70, s70, s71")
    a(f"s_add_u32 s70, s70, {F3_B}")
    wg_flag(a, "s70", 2)
    a.stamp()

def role_T(a, s_rb, s_cb, s_rot):
    s_w = S_W
    NSL = 10
    DBS, DBS2 = 68, 95
    TB, CBO, LB, WBASE = 69, 70, 71, 72
    a("v_lshrrev_b32 v1, 3, v0")
    a("v_and_b32 v2, 7, v0")
    a("v_bfe_u32 v3, v1, 1, 1")
    a("v_lshlrev_b32 v3, 2, v3")
    a("v_xor_b32 v2, v2, v3")
    a("v_mul_u32_u24 v10, 2752, v1")
    a("v_lshl_add_u32 v10, v2, 4, v10")
    a(f"s_mul_i32 s73, s{s_w}, 11")
    a(f"s_add_u32 s{TB}, s{s_rot}, s73")
    a(f"s_lshl_b32 s{CBO}, s{s_cb}, 7")
    a(f"s_mul_i32 s{LB}, s{s_w}, {NSL*4096}")
    def step_t(i, dst):
        a(f"s_add_u32 s{dst}, s{TB}, {i}")
        a(f"s_cmp_ge_u32 s{dst}, 44")
        a(f"s_cselect_b32 s75, 44, 0")
        a(f"s_sub_u32 s{dst}, s{dst}, s75")
    def issueV(i):
        slot = i % NSL
        step_t(i, 73)
        a("s_lshr_b32 s74, s73, 1")
        a("s_lshl_b32 s74, s74, 6")
        a("s_and_b32 s73, s73, 1")
        a("s_lshl_b32 s73, s73, 4")
        a("s_add_u32 s73, s73, s74")
        a("s_mul_i32 s73, s73, 2752")
        a(f"s_add_u32 s73, s73, s{CBO}")
        for p, ro in enumerate((0, 8, 32, 40)):
            a(f"s_add_u32 m0, s{LB}, {slot*4096 + p*1024}")
            a(f"s_add_u32 s74, s73, {ro*2752}")
            a.vmem(f"buffer_load_dwordx4 v10, {srd(S_V)}, s74 offen{' nt' if OPT['VNT'] else ''} lds", f"V{i}")
    def addr_setup():
        a("v_lshrrev_b32 v1, 4, v0")
        a("v_bfe_u32 v2, v0, 2, 2")
        a("v_and_b32 v3, 3, v0")
        a("v_lshl_add_u32 v4, v1, 2, v2")
        a("v_lshlrev_b32 v4, 7, v4")
        a("v_lshl_add_u32 v4, v3, 4, v4")
        a("v_lshrrev_b32 v5, 1, v2")
        a("v_lshl_add_u32 v4, v5, 6, v4")
        a(f"v_add_u32 v11, s{LB}, v4")
        a("v_xor_b32 v12, 64, v11")
        a("v_lshlrev_b32 v13, 4, v0")
        a("v_lshlrev_b32 v14, 2, v0")
        a("v_add_u32 v15, 64, v0")
        a("v_min_u32 v15, 87, v15")
        a("v_lshlrev_b32 v15, 2, v15")
    NV0, NV1 = OPT['NV0'], OPT['NV1']
    a(f"s_lshl_b32 s{DBS}, s{s_rb}, 2")
    a(f"s_add_u32 s{DBS}, s{DBS}, s{s_w}")
    PVA = 160
    prep_issue(a, DBS, s_cb, PVA)
    for i in range(NV0):
        issueV(i)
    a.stamp()
    addr_setup()
    a.wait("P")
    a.stamp()
    nonce_get_all(a, 9)
    prep_finish(a, DBS, s_cb, PVA)
    for i in range(NV0, NV1):
        issueV(i)
    a.wait("S")
    a.stamp()
    nonce_check_all(a, 9)
    a(f"s_lshl_b32 s73, s{s_rb}, 9")
    a(f"s_lshl_b32 s74, s{s_cb}, 4")
    a("s_add_u32 s73, s73, s74")
    a(f"s_lshl_b32 s74, s{s_w}, 2")
    a("s_add_u32 s73, s73, s74")
    a(f"s_add_u32 s73, s73, {F1_B}")
    flag_store(a, "s73", 2, None)
    for i in range(NV1, NSL):
        issueV(i)
    def trreads(i):
        slot = i % NSL
        for j in range(4):
            pp, ab = j >> 1, j & 1
            for q in range(2):
                r = 16*i + 4*j + 2*q
                a(f"ds_read_b64_tr_b16 a[{r}:{r+1}], v{11+pp} offset:{slot*4096 + q*2048 + ab*8}")
    a.wait("V0")
    trreads(0)
    a("s_waitcnt lgkmcnt(0)")
    issueV(10)
    a(f"s_lshl_b32 s68, s{s_rb}, 9")
    a(f"s_add_u32 s68, s68, {F1_B}")
    ACC = 176
    for i in range(1, NSL):
        a.wait(f"V{i}")
        trreads(i)
        if i <= 4:
            for r in range(16*(i-1), 16*i):
                a(f"v_accvgpr_write_b32 a{ACC+r}, 0")
        if i == OPT['F1AT']:
            poll_issue(a, 16, 14, "s68", "Q")
            poll_issue(a, 17, 15, "s68", "Q")
    a.wait("V10")
    trreads(10)
    a.wait("Q")
    a.stamp()
    poll_check(a, [16, 17], [14, 15], "s68", sleep=6)
    a.stamp()
    a(f"s_mul_i32 s{WBASE}, s{s_rb}, {4*44}")
    WB = 64
    def w_items(i):
        items = []
        for d in range(4):
            def f(d=d):
                if d == 0:
                    step_t(i, 73)
                    a(f"s_add_u32 s73, s73, s{WBASE}")
                    a("s_lshl_b32 s73, s73, 10")
                    a("s_mov_b32 s74, s73")
                else:
                    a(f"s_add_u32 s74, s73, {d*44*1024}")
                r = WB + 16*i + 4*d
                a.vmem(f"buffer_load_dwordx4 v[{r}:{r+3}], v13, {srd(S_WQF)}, s74 offen{LDSC}", f"W{i}")
            items.append(f)
        return items
    PRE = OPT['WPRE']
    for i in range(PRE):
        for f in w_items(i): f()
    y_f3_addr(a, 18, 19)
    a("s_waitcnt lgkmcnt(0)")
    a("s_barrier")
    for i in range(11):
        a.wait(f"W{i}")
        m = []
        for d in range(4):
            for j in range(4):
                c = ACC + 16*d + 4*j
                ra = WB + 16*i + 4*d
                rb_ = 16*i + 4*j
                m.append(lambda c=c, ra=ra, rb_=rb_: a(f"v_mfma_f32_16x16x32_bf16 a[{c}:{c+3}], v[{ra}:{ra+3}], a[{rb_}:{rb_+3}], a[{c}:{c+3}]"))
        side = w_items(i + PRE) if i + PRE < 11 else []
        if i == 8:
            side = side + [lambda: poll_issue(a, 19, 18, "s67", "Q3")]
        for f in interleave(m, side): f()
    a("s_nop 7")
    a.stamp()
    a("v_lshlrev_b32 v14, 4, v0")
    for w in range(4):
        sk = a.new("TR")
        a(f"s_cmp_eq_u32 s{s_w}, {w}")
        a(f"s_cbranch_scc0 {sk}")
        for o in range(4):
            if o == w: continue
            rank = (w - o - 1) % 4
            sh, jh = o >> 1, o & 1
            tl = 0
            for d in (2*sh, 2*sh+1):
                for j in (2*jh, 2*jh+1):
                    c = ACC + 16*d + 4*j
                    a(f"ds_write_b128 v14, a[{c}:{c+3}] offset:{o*12288 + (rank*4+tl)*1024}")
                    tl += 1
        sh, jh = w >> 1, w & 1
        tl = 0
        for d in (2*sh, 2*sh+1):
            for j in (2*jh, 2*jh+1):
                c = ACC + 16*d + 4*j
                for r in range(4):
                    a(f"v_accvgpr_read_b32 v{20+4*tl+r}, a{c+r}")
                tl += 1
        a.lab(sk)
    a("s_waitcnt lgkmcnt(0)")
    a("s_barrier")
    a(f"s_mul_i32 s73, s{s_w}, 12288")
    a("v_add_u32 v15, s73, v14")
    for k in range(12):
        a(f"ds_read_b128 v[{36+4*k}:{36+4*k+3}], v15 offset:{k*1024}")
    a(f"s_lshr_b32 s62, s{s_w}, 1")
    a(f"s_and_b32 s63, s{s_w}, 1")
    a(f"s_lshl_b32 s64, s{s_cb}, 1")
    a("s_add_u32 s64, s64, s63")
    a(f"s_lshl_b32 s65, s{s_rb}, 1")
    a("s_add_u32 s65, s65, s62")
    a("s_lshl_b32 s70, s64, 5")
    a("s_add_u32 s70, s70, s65")
    a("s_lshl_b32 s70, s70, 10")
    a("s_add_u32 s71, s70, 16384")
    a(f"s_lshl_b32 s64, s{s_cb}, 7")
    a(f"s_lshl_b32 s65, s{s_rb}, 2")
    a("s_add_u32 s64, s64, s65")
    a(f"s_add_u32 s72, s64, {F2_B}")
    for rank in range(3):
        a(f"s_waitcnt lgkmcnt({8-4*rank})")
        for r in range(16):
            a(f"v_add_f32 v{20+r}, v{20+r}, v{36+16*rank+r}")
    for jj in range(2):
        t0, t1, o = 20 + 4*jj, 20 + 4*(2+jj), 88 + 4*jj
        a(f"v_cvt_pk_bf16_f32 v{o}, v{t0}, v{t0+1}")
        a(f"v_cvt_pk_bf16_f32 v{o+1}, v{t0+2}, v{t0+3}")
        a(f"v_cvt_pk_bf16_f32 v{o+2}, v{t1}, v{t1+1}")
        a(f"v_cvt_pk_bf16_f32 v{o+3}, v{t1+2}, v{t1+3}")
        a.vmem(f"buffer_store_dwordx4 v[{o}:{o+3}], v14, {srd(S_TF)}, s{70+jj} offen sc1", "S2")
    a.stamp()
    poll_check(a, [19], [18], "s67")
    a.wait("S2")
    wg_flag(a, "s72", 2)
    y_f2_addr(a)
    y_xr_loads(a, 0, 12)
    a(f"buffer_load_dword v14, v12, {srd(S_FL)}, s68 offen sc1")
    y_xr_loads(a, 12, 16)
    a.stamp()

def y_f2_addr(a):
    a("v_and_b32 v12, 7, v0")
    a("v_lshlrev_b32 v12, 2, v12")
    a("v_bfe_u32 v13, v0, 3, 1")
    a(f"s_cmp_eq_u32 s{S_NBK}, 14")
    a("s_cselect_b32 s63, 0, 128")
    a("v_mul_u32_u24 v13, s63, v13")
    a("v_add_u32 v12, v12, v13")
    a(f"s_min_u32 s68, s{S_NBK}, 14")
    a("s_mul_i32 s68, s68, 3")
    a("s_lshr_b32 s68, s68, 1")
    a("s_lshl_b32 s68, s68, 7")
    a(f"s_add_u32 s68, s68, {F2_B}")

def y_f3_addr(a, vo, vt):
    a(f"v_and_b32 v{vo}, 3, v0")
    a(f"v_lshlrev_b32 v{vo}, 2, v{vo}")
    a(f"s_lshl_b32 s67, s{S_MB8}, 7")
    a(f"s_add_u32 s67, s67, {F3_B}")

def y_rot(a):
    a(f"s_and_b32 s74, s{S_MB8}, 3")
    a("s_lshl_b32 s74, s74, 2")
    a(f"s_and_b32 s75, s{S_NBK}, 7")
    a("s_lshl_b32 s75, s75, 1")
    a("s_add_u32 s74, s74, s75")

def y_xr_loads(a, q0=0, q1=16):
    sk = a.new("YX")
    a(f"s_cmp_ge_u32 s{S_NBK}, 15")
    a(f"s_cbranch_scc1 {sk}")
    y_rot(a)
    a("v_lshlrev_b32 v10, 4, v0")
    a(f"s_lshl_b32 s69, s{S_MB8}, 17")
    a(f"s_lshl_b32 s75, s{S_W}, 15")
    a("s_add_u32 s69, s69, s75")
    for q in range(q0, q1):
        a(f"s_add_u32 s75, s74, {q}")
        a("s_and_b32 s75, s75, 15")
        a("s_lshl_b32 s75, s75, 10")
        a("s_add_u32 s75, s75, s69")
        for i in range(2):
            reg = 8*q + 4*i
            a.vmem(f"buffer_load_dwordx4 a[{reg}:{reg+3}], v10, {srd(S_XF)}, s75 offen{LDSC}", "XR")
            if i == 0:
                a("s_add_u32 s75, s75, 16384")
    a.lab(sk)

def role_y(a):
    s_w, s_mb8, s_nbk = S_W, S_MB8, S_NBK
    a.vm = []
    y_rot(a)
    a("v_lshlrev_b32 v10, 4, v0")
    a("v_add_u32 v11, 0x10000, v10")
    ACC = 16
    for r in range(48):
        a(f"v_mov_b32 v{ACC+r}, 0")
    a("s_waitcnt vmcnt(8)")
    if OPT['F2S']:
        NS1 = OPT['F2S']
        a("s_lshr_b32 s66, s74, 1")
        a("s_and_b32 s66, s66, 7")
        a(f"s_lshl_b32 s67, {(1 << NS1) - 1}, s66")
        a("s_lshr_b32 s75, s67, 8")
        a("s_or_b32 s67, s67, s75")
        a("s_and_b32 s67, s67, 0xff")
        a("s_lshl_b32 s75, s67, 8")
        a("s_or_b32 s67, s67, s75")
        poll_check_mask(a, 14, 12, "s68", 67, sleep=4)
    else:
        poll_check(a, [14], [12], "s68", sleep=6)
    a.stamp()
    a(f"s_mul_i32 s69, s{s_nbk}, {6*16*1024}")
    a(f"s_and_b32 s71, s{s_w}, 1")
    a("s_mul_i32 s71, s71, 49152")
    a("s_add_u32 s69, s69, s71")
    a(f"s_lshr_b32 s73, s{s_w}, 1")
    a("s_add_u32 s73, s73, s74")
    a(f"s_mul_i32 s72, s{s_w}, 3072")
    NG = 8
    def t_items(g):
        items = []
        for k in range(3):
            def f(k=k):
                if k == 0:
                    a(f"s_add_u32 s70, s73, {2*g}")
                    a("s_and_b32 s70, s70, 15")
                    a("s_lshl_b32 s70, s70, 10")
                    a("s_add_u32 s70, s70, s69")
                a(f"s_add_u32 m0, s72, {(12*g + k)*1024}")
                a(f"s_add_u32 s71, s70, {k*16384}")
                a.vmem(f"buffer_load_dwordx4 v10, {srd(S_TF)}, s71 offen{LDSC} lds", f"T{g}")
            items.append(f)
        return items
    PRE = OPT['TPRE']
    if OPT['F2S']:
        PRE = OPT['F2S']
    for g in range(PRE):
        for f in t_items(g): f()
    FA = 64
    def read_items(g):
        items = []
        for qq in range(2):
            q = 2*g + qq
            for j in range(6):
                r = FA + 48*(g & 1) + 24*qq + 4*j
                idx = q*6 + j
                if idx < 64:
                    items.append(lambda r=r, idx=idx: a(f"ds_read_b128 v[{r}:{r+3}], v10 offset:{idx*1024}"))
                else:
                    items.append(lambda r=r, idx=idx: a(f"ds_read_b128 v[{r}:{r+3}], v11 offset:{(idx-64)*1024}"))
        return items
    def mfma_items(g):
        items = []
        for qq in range(2):
            q = 2*g + qq
            for j in range(6):
                for i in range(2):
                    c = ACC + 8*j + 4*i
                    ra = FA + 48*(g & 1) + 24*qq + 4*j
                    rb_ = 8*q + 4*i
                    items.append(lambda c=c, ra=ra, rb_=rb_: a(f"v_mfma_f32_16x16x32_bf16 v[{c}:{c+3}], v[{ra}:{ra+3}], a[{rb_}:{rb_+3}], v[{c}:{c+3}]"))
        return items
    a.wait("T0")
    a("s_barrier")
    a.stamp()
    for f in read_items(0): f()
    for g in range(NG):
        if g + 1 < NG:
            a.wait(f"T{g+1}")
            a("s_waitcnt lgkmcnt(0)")
            a("s_barrier")
        else:
            a("s_waitcnt lgkmcnt(0)")
        side = read_items(g + 1) if g + 1 < NG else []
        if OPT['F2S']:
            G2 = OPT['F2G']
            dm = []
            if g == G2:
                a(f"buffer_load_dword v14, v12, {srd(S_FL)}, s68 offen sc1")
                a("s_waitcnt vmcnt(0)")
                a.vm = []
                poll_check(a, [14], [12], "s68", sleep=4)
                for gg in range(PRE, NG):
                    dm += t_items(gg)
        else:
            dm = t_items(g + PRE) if g + PRE < NG else []
        seq = interleave(mfma_items(g), side)
        seq = interleave(seq, dm)
        for f in seq: f()
    a("s_nop 7")
    a("s_nop 1")
    a.stamp()
    a("v_and_b32 v1, 15, v0")
    a("v_lshrrev_b32 v2, 4, v0")
    a("v_mul_u32_u24 v3, 2752, v1")
    a("v_lshl_add_u32 v3, v2, 4, v3")
    a(f"s_lshl_b32 s70, s{s_mb8}, 7")
    a(f"s_lshl_b32 s71, s{s_w}, 5")
    a("s_add_u32 s70, s70, s71")
    a("s_mul_i32 s70, s70, 2752")
    a(f"s_mul_i32 s71, s{s_nbk}, 192")
    a("s_add_u32 s70, s70, s71")
    a(f"s_add_u32 s71, s70, {16*2752}")
    for p in range(3):
        if p == 1:
            a(f"s_cmp_eq_u32 s{s_nbk}, 14")
            a("s_cbranch_scc1 Y_done")
        for i in range(2):
            t0 = ACC + 8*(2*p) + 4*i
            t1 = ACC + 8*(2*p+1) + 4*i
            o = 160 + 4*(2*p+i)
            a(f"v_cvt_pk_bf16_f32 v{o}, v{t0}, v{t0+1}")
            a(f"v_cvt_pk_bf16_f32 v{o+1}, v{t0+2}, v{t0+3}")
            a(f"v_cvt_pk_bf16_f32 v{o+2}, v{t1}, v{t1+1}")
            a(f"v_cvt_pk_bf16_f32 v{o+3}, v{t1+2}, v{t1+3}")
            a(f"buffer_store_dwordx4 v[{o}:{o+3}], v3, {srd(S_OUT)}, s{70+i} offen offset:{64*p}{['', ' sc1', ' nt', ' sc0 sc1'][OPT['OST']]}")
    a.lab("Y_done")

def kd(name, vgpr, accum, sgpr=102):
    return f""".p2align 6
.amdhsa_kernel {name}
  .amdhsa_next_free_vgpr {vgpr}
  .amdhsa_next_free_sgpr {sgpr}
  .amdhsa_accum_offset {accum}
  .amdhsa_group_segment_fixed_size 0
  .amdhsa_kernarg_size 72
  .amdhsa_user_sgpr_count 2
  .amdhsa_user_sgpr_kernarg_segment_ptr 1
  .amdhsa_system_sgpr_workgroup_id_x 1
.end_amdhsa_kernel
"""

HEADER = open("cdna_kernels/" + NAME + ".s.ref").read().split("; Override launch")[0]

def build():
    a = A()
    K = NAME + "_kernel"
    out = HEADER
    out += "; @launch grid=(256,1,1) block=(256,1,1) lds=163840\n"
    out += '.amdgcn_target "amdgcn-amd-amdhsa--gfx950"\n.text\n'
    a.l.append(f".globl {K}\n.p2align 8\n.type {K},@function\n{K}:")
    a("s_cmp_ge_u32 s2, 256")
    a("s_cbranch_scc1 K_end")
    if STAMPS:
        a("s_memrealtime s[94:95]")
        a("s_memtime s[96:97]")
    prologue(a)
    a(f"s_cmp_eq_u32 s2, {253 if OPT['MAP'] in (2, 3) else 250}")
    a("s_cbranch_scc0 K_np")
    a(f"s_cmp_eq_u32 s{S_W}, 0")
    a("s_cbranch_scc0 K_np")
    kwait(a)
    a("s_memrealtime s[62:63]")
    a("s_waitcnt lgkmcnt(0)")
    a("s_or_b32 s62, s62, 1")
    a("v_mov_b32 v2, s62")
    a("s_mov_b64 exec, 1")
    a(f"buffer_store_dword v2, off, {srd(S_DBG)}, 0 sc1")
    a("s_mov_b64 exec, -1")
    a.lab("K_np")
    if OPT['CPF']:
        a(f"s_cmp_eq_u32 s{S_W}, 3")
        a("s_cbranch_scc0 K_ncpf")
        a("s_getpc_b64 s[62:63]")
        a.lab("K_pc")
        a(f"s_sub_u32 s62, s62, K_pc-{K}")
        a("s_subb_u32 s63, s63, 0")
        a(f"s_mov_b32 s64, K_code_end-{K}-4")
        a("v_lshlrev_b32 v2, 7, v0")
        for k in range(4):
            a(f"v_add_u32 v3, {k*8192}, v2")
            a("v_min_u32 v3, s64, v3")
            a("global_load_dword v255, v3, s[62:63]")
        a.lab("K_ncpf")
    if STAMPS:
        a("s_mov_b32 s76, s94")
        a.nst = 1
    a.stamp()
    a("s_and_b32 s62, s2, 7")
    a("s_lshr_b32 s63, s2, 3")
    a("s_and_b32 s64, s62, 3")
    a("s_lshl_b32 s64, s64, 2")
    a("s_and_b32 s65, s63, 3")
    a(f"s_add_u32 s{S_MB8}, s64, s65")
    a("s_lshr_b32 s64, s62, 2")
    a("s_lshl_b32 s64, s64, 3")
    a("s_lshr_b32 s65, s63, 2")
    a(f"s_add_u32 s{S_NBK}, s64, s65")
    if OPT['MAP'] == 0:
        a("s_lshr_b32 s64, s62, 1")
        a("s_and_b32 s65, s64, 1")
        a("s_sub_u32 s65, 6, s65")
        a("s_lshl_b32 s65, s65, 2")
        a("s_cmp_lt_u32 s63, s65")
        a("s_cbranch_scc0 K_notT")
        a("s_and_b32 s66, s62, 1")
        a("s_lshl_b32 s66, s66, 2")
        a("s_and_b32 s67, s63, 3")
        a(f"s_add_u32 s{S_A}, s66, s67")
        a("s_mul_i32 s64, s64, 11")
        a("s_add_u32 s64, s64, 1")
        a("s_lshr_b32 s64, s64, 1")
        a("s_lshr_b32 s66, s63, 2")
        a(f"s_add_u32 s{S_B}, s64, s66")
        a("s_mul_i32 s67, s67, 11")
        a("s_lshr_b32 s67, s67, 2")
        a("s_lshl_b32 s66, s66, 1")
        a("s_add_u32 s94, s67, s66")
        if OPT['SKEW']:
            a("s_and_b32 s66, s62, 1")
            a("s_mul_i32 s66, s66, 5")
            a("s_add_u32 s94, s94, s66")
    elif OPT['MAP'] == 1:
        a("s_mov_b32 s65, 22")
        a("s_cmp_lt_u32 s63, s65")
        a("s_cbranch_scc0 K_notT")
        a("s_mul_i32 s64, s62, 22")
        a("s_add_u32 s64, s64, s63")
        a(f"s_lshr_b32 s{S_B}, s64, 3")
        a(f"s_and_b32 s{S_A}, s64, 7")
        a(f"s_mul_i32 s67, s{S_A}, 11")
        a("s_lshr_b32 s67, s67, 3")
        a(f"s_and_b32 s66, s{S_B}, 3")
        a("s_mul_i32 s66, s66, 3")
        a("s_add_u32 s94, s67, s66")
    elif OPT['MAP'] == 4:
        a("s_mov_b32 s65, 22")
        a("s_cmp_lt_u32 s63, s65")
        a("s_cbranch_scc0 K_notT")
        a("s_lshr_b32 s64, s62, 2")
        a("s_mul_i32 s64, s64, 11")
        a("s_bfe_u32 s66, s62, 0x10001")
        a("s_and_b32 s67, s62, 1")
        a("s_lshl_b32 s67, s67, 2")
        a("s_cmp_lt_u32 s63, 20")
        a("s_cbranch_scc0 K_T2")
        a("s_mul_i32 s66, s66, 6")
        a("s_add_u32 s64, s64, s66")
        a("s_lshr_b32 s66, s63, 2")
        a(f"s_add_u32 s{S_B}, s64, s66")
        a("s_and_b32 s70, s63, 3")
        a(f"s_add_u32 s{S_A}, s67, s70")
        a("s_branch K_T3")
        a.lab("K_T2")
        a(f"s_add_u32 s{S_B}, s64, 5")
        a("s_lshl_b32 s66, s66, 1")
        a("s_add_u32 s67, s67, s66")
        a("s_sub_u32 s70, s63, 20")
        a(f"s_add_u32 s{S_A}, s67, s70")
        a("s_mov_b32 s66, 5")
        a.lab("K_T3")
        a(f"s_and_b32 s67, s{S_A}, 3")
        a("s_mul_i32 s67, s67, 11")
        a("s_lshr_b32 s67, s67, 2")
        a("s_lshl_b32 s66, s66, 1")
        a("s_add_u32 s94, s67, s66")
        a("s_and_b32 s66, s62, 1")
        a("s_mul_i32 s66, s66, 5")
        a("s_add_u32 s94, s94, s66")
    elif OPT['MAP'] == 3:
        a("s_cmp_lt_u32 s62, 4")
        a("s_cselect_b32 s65, 16, 28")
        a("s_cmp_lt_u32 s63, s65")
        a("s_cbranch_scc0 K_notT")
        a("s_and_b32 s66, s62, 1")
        a("s_lshl_b32 s66, s66, 2")
        a("s_and_b32 s67, s63, 3")
        a(f"s_add_u32 s{S_A}, s66, s67")
        a("s_lshr_b32 s64, s62, 1")
        a("s_lshl_b32 s66, s64, 2")
        a("s_mul_i32 s65, s64, 7")
        a("s_sub_u32 s65, s65, 6")
        a("s_cmp_lt_u32 s62, 4")
        a("s_cselect_b32 s64, s66, s65")
        a("s_lshr_b32 s66, s63, 2")
        a(f"s_add_u32 s{S_B}, s64, s66")
        a("s_mul_i32 s67, s67, 11")
        a("s_lshr_b32 s67, s67, 2")
        a("s_mul_i32 s66, s66, 3")
        a("s_lshr_b32 s66, s66, 1")
        a("s_add_u32 s94, s67, s66")
        a("s_and_b32 s66, s62, 1")
        a("s_mul_i32 s66, s66, 5")
        a("s_add_u32 s94, s94, s66")
    else:
        a("s_cmp_ge_u32 s62, 6")
        a("s_cbranch_scc1 K_xr")
        a("s_cmp_lt_u32 s62, 2")
        a("s_cselect_b32 s65, 30, 29")
        a("s_cmp_lt_u32 s63, s65")
        a("s_cbranch_scc0 K_spare")
        a("s_min_u32 s66, s62, 2")
        a("s_mul_i32 s64, s62, 29")
        a("s_add_u32 s64, s64, s66")
        a("s_add_u32 s64, s64, s63")
        a(f"s_lshr_b32 s{S_B}, s64, 3")
        a(f"s_and_b32 s{S_A}, s64, 7")
        a(f"s_mul_i32 s67, s{S_A}, 11")
        a("s_lshr_b32 s67, s67, 3")
        a(f"s_and_b32 s66, s{S_B}, 3")
        a("s_mul_i32 s66, s66, 3")
        a("s_add_u32 s94, s67, s66")
    nst0 = a.nst
    if OPT['DIAG'] == 2:
        a("s_branch K_fin")
    role_T(a, S_A, S_B, 94)
    if OPT['DIAG']:
        a.nst = 10
    nstT = a.nst
    a.lab("K_y")
    a.nst = nstT
    a(f"s_cmp_ge_u32 s{S_NBK}, 15")
    a("s_cbranch_scc1 K_fin")
    role_y(a)
    a.lab("K_fin")
    if OPT['DBGSPAN']:
        a(f"s_cmp_eq_u32 s{S_W}, 0")
        a("s_cbranch_scc0 K_end")
        a("s_waitcnt vmcnt(0)")
        a("s_memrealtime s[62:63]")
        a("s_waitcnt lgkmcnt(0)")
        a(f"s_sub_u32 s62, s62, s{S_NONCE}")
        a("v_mov_b32 v2, s62")
        a("s_mov_b64 exec, 1")
        a(f"buffer_atomic_umax v2, off, {srd(S_DBG)}, 0 offset:4")
        a("s_waitcnt vmcnt(0)")
    stamp_flush(a)
    a.lab("K_end")
    a("s_endpgm")
    a.lab("K_notT")
    if OPT['MAP'] == 3:
        a("s_cmp_ge_u32 s62, 4")
        a("s_cbranch_scc1 K_spare")
        a("s_sub_u32 s63, s63, 16")
        a(f"s_and_b32 s{S_A}, s63, 3")
        a("s_lshr_b32 s65, s63, 2")
        a("s_lshl_b32 s64, s62, 2")
        a(f"s_add_u32 s{S_B}, s64, s65")
        a(f"s_lshl_b32 s73, s{S_A}, 1")
        a("s_lshl_b32 s65, s65, 1")
        a("s_add_u32 s73, s73, s65")
        a("s_add_u32 s73, s73, s62")
    elif OPT['MAP'] == 2:
        a.lab("K_xr")
        a(f"s_and_b32 s{S_A}, s63, 3")
        a("s_lshr_b32 s65, s63, 2")
        a("s_sub_u32 s64, s62, 6")
        a("s_lshl_b32 s64, s64, 3")
        a(f"s_add_u32 s{S_B}, s64, s65")
        a(f"s_lshl_b32 s73, s{S_A}, 1")
        a("s_add_u32 s73, s73, s65")
    else:
        a("s_sub_u32 s63, s63, s65")
        a("s_cmp_lt_u32 s63, 8")
        a("s_cbranch_scc0 K_spare")
        if OPT['XMAP'] == 1:
            a(f"s_and_b32 s{S_A}, s63, 3")
            a("s_lshl_b32 s64, s62, 1")
            a("s_lshr_b32 s65, s63, 2")
            a(f"s_add_u32 s{S_B}, s64, s65")
            a(f"s_lshl_b32 s73, s{S_A}, 1")
            a("s_add_u32 s73, s73, s65")
            a("s_add_u32 s73, s73, s62")
        else:
            a("s_and_b32 s64, s62, 1")
            a("s_lshl_b32 s64, s64, 1")
            a("s_and_b32 s65, s63, 1")
            a(f"s_add_u32 s{S_A}, s64, s65")
            a("s_lshr_b32 s64, s62, 1")
            a("s_lshl_b32 s64, s64, 2")
            a("s_lshr_b32 s65, s63, 1")
            a(f"s_add_u32 s{S_B}, s64, s65")
            a("s_and_b32 s64, s63, 1")
            a("s_lshl_b32 s64, s64, 2")
            a("s_lshr_b32 s65, s63, 1")
            a("s_lshl_b32 s65, s65, 1")
            a("s_add_u32 s73, s64, s65")
            a("s_and_b32 s64, s62, 1")
            a("s_add_u32 s73, s73, s64")
    a.vm = []
    a.nst = nst0
    if OPT['DIAG'] == 1:
        a("s_branch K_fin")
    role_xr(a, S_A, S_B, 73)
    if OPT['DIAG'] == 2:
        a("s_branch K_fin")
    a("s_branch K_pre")
    a.lab("K_spare")
    if OPT['DIAG']:
        a("s_branch K_fin")
    a.vm = []
    n2 = a.nst
    a.nst = nst0
    kwait(a)
    late_srds(a)
    nonce_get_all(a, 9)
    a("s_waitcnt vmcnt(0)")
    nonce_check_all(a, 9)
    while STAMPS and a.nst < n2:
        a.stamp()
    a.lab("K_pre")
    a.vm = []
    a(f"s_cmp_ge_u32 s{S_NBK}, 15")
    a("s_cbranch_scc1 K_fin")
    y_f3_addr(a, 18, 19)
    a("s_nop 0")
    wg_poll(a, 19, 18, "s67", sleep=8)
    y_xr_loads(a)
    y_f2_addr(a)
    wg_poll(a, 14, 12, "s68", sleep=4)
    a(f"v_mov_b32 v14, s{S_NONCE}")
    while STAMPS and a.nst < nstT:
        a.stamp()
    a("s_branch K_y")
    a.lab("K_code_end")
    out += a.text()
    out += '.section .rodata,"a"\n'
    out += kd(K, 512, 256)
    return out

if __name__ == "__main__":
    for arg in list(sys.argv):
        if arg.startswith("-O"):
            k, v = arg[2:].split("=")
            OPT[k] = int(v)
            sys.argv.remove(arg)
    if "--plain" in sys.argv:
        LDSC = ""
        sys.argv.remove("--plain")
    if "--stamps" in sys.argv:
        STAMPS = True
        sys.argv.remove("--stamps")
    dst = sys.argv[1] if len(sys.argv) > 1 else "cdna_kernels/" + NAME + ".s"
    open(dst, "w").write(build())
    print("wrote", dst)
```

```python
import sys

NAME = "standalone__weight_only_int_quip__prompt"
M, D, F = 2048, 512, 1376
WQF_OFF, WQF_SZ = 0x000000, 32 * 44 * 1024
XF_OFF, XF_SZ = 0x200000, 128 * 16 * 1024
TF_OFF, TF_SZ = 0x400000, 86 * 16 * 1024
FL_OFF, FL_SZ = 0x600000, 0x4000
F1_B, F2_B, F3_B = 0x0000, 0x1000, 0x2000
STAMPS = False
OPT = dict(NV0=0, NV1=3, WPRE=4, TPRE=4, XPRE=15, SKEW=1, DIAG=0, MAP=0, XMAP=0, CPF=1, OST=2, DBGSPAN=0, XQ=4, F1AT=9, F2S=0, F2G=1, PNT=0, VNT=0, SNT=0)
SPIN_MAX = 200000
LDSC = ' sc1'


class A:
    def __init__(s):
        s.l = []
        s.vm = []
        s.nst = 0
        s.uid = 0
    def __call__(s, x):
        s.l.append("  " + x)
    def lab(s, x):
        s.l.append(x + ":")
    def text(s):
        return "\n".join(s.l) + "\n"
    def vmem(s, x, tag):
        s(x); s.vm.append(tag)
    def wait(s, tag, extra=""):
        idx = [i for i, t in enumerate(s.vm) if t == tag]
        if not idx:
            return
        n = len(s.vm) - 1 - idx[-1]
        assert n <= 63, n
        s(f"s_waitcnt vmcnt({n}){extra}")
        s.vm = s.vm[idx[-1] + 1:]
    def waitall(s):
        s("s_waitcnt vmcnt(0)"); s.vm = []
    def new(s, p):
        s.uid += 1
        return f"{p}_{s.uid}"
    def stamp(s):
        if not STAMPS: return
        i = s.nst; s.nst += 1
        assert i < 24, i
        s("s_memrealtime s[100:101]")
        s("s_waitcnt lgkmcnt(0)")
        s(f"s_mov_b32 s{76+i}, s100")

S_X, S_QW, S_SC, S_ZR, S_U, S_V, S_OUT, S_WQF, S_XF, S_TF, S_FL, S_DBG = [8 + 4*i for i in range(12)]
S_W, S_NONCE, S_A, S_B, S_MB8, S_NBK = 56, 57, 58, 59, 60, 61
T0 = 62
def srd(i): return f"s[{i}:{i+3}]"

def prologue(a):
    tbl = [(S_QW, 8, D*F*4), (S_SC, 16, 4*F*2), (S_ZR, 24, 4*F*2), (S_U, 32, D*D*2), (S_X, 0, M*D*2),
           (S_V, 40, F*F*2), (S_OUT, 48, M*F*2), (S_DBG, 56, 256)]
    for r, off, sz in tbl:
        a(f"s_load_dwordx2 s[{r}:{r+1}], s[0:1], {off}")
    a("s_load_dwordx2 s[92:93], s[0:1], 64")
    a("v_lshrrev_b32 v1, 6, v0")
    a("v_and_b32 v0, 63, v0")
    a(f"v_readfirstlane_b32 s{S_W}, v1")
    for r, off, sz in tbl:
        a(f"s_mov_b32 s{r+2}, {sz}")
        a(f"s_mov_b32 s{r+3}, 0x20000")
    for r, off, sz in [(S_WQF, WQF_OFF, WQF_SZ), (S_XF, XF_OFF, XF_SZ), (S_TF, TF_OFF, TF_SZ), (S_FL, FL_OFF, FL_SZ)]:
        a(f"s_mov_b32 s{r+2}, {sz}")
        a(f"s_mov_b32 s{r+3}, 0x20000")

def kwait(a):
    a("s_waitcnt lgkmcnt(0)")

def late_srds(a):
    for r, off, sz in [(S_WQF, WQF_OFF, WQF_SZ), (S_FL, FL_OFF, FL_SZ), (S_XF, XF_OFF, XF_SZ), (S_TF, TF_OFF, TF_SZ)]:
        a(f"s_add_u32 s{r}, s92, {off}")
        a(f"s_addc_u32 s{r+1}, s93, 0")

def stamp_flush(a):
    if not STAMPS: return
    a.stamp()
    a("s_waitcnt vmcnt(0)")
    a.stamp()
    n = a.nst
    a("s_memtime s[98:99]")
    a("s_load_dwordx2 s[62:63], s[0:1], 64")
    a("s_waitcnt lgkmcnt(0)")
    a("s_add_u32 s8, s62, 0x800000")
    a("s_addc_u32 s9, s63, 0")
    a("s_and_b32 s9, s9, 0xffff")
    a("s_mov_b32 s10, 0x100000")
    a("s_mov_b32 s11, 0x20000")
    a("s_lshl_b32 s64, s2, 2")
    a(f"s_add_u32 s64, s64, s{S_W}")
    a("s_lshl_b32 s64, s64, 7")
    a("s_mov_b64 exec, 1")
    a("v_mov_b32 v3, 0")
    for i in range(n):
        a(f"v_mov_b32 v4, s{76+i}")
        a(f"buffer_store_dword v4, v3, s[8:11], s64 offen offset:{4*i}")
        a("s_nop 1")
    a("s_sub_u32 s98, s98, s96")
    a("v_mov_b32 v4, s98")
    a("buffer_store_dword v4, v3, s[8:11], s64 offen offset:120")

def nonce_get_all(a, vreg):
    a.vmem(f"buffer_load_dword v{vreg}, off, {srd(S_DBG)}, 0 sc1", "N")

def nonce_check_all(a, vreg):
    L, Dn = a.new("NC"), a.new("ND")
    a(f"v_readfirstlane_b32 s{S_NONCE}, v{vreg}")
    a(f"s_mov_b32 s{T0}, {SPIN_MAX}")
    a.lab(L)
    a(f"s_cmp_lg_u32 s{S_NONCE}, 0")
    a(f"s_cbranch_scc1 {Dn}")
    a(f"s_sub_u32 s{T0}, s{T0}, 1")
    a(f"s_cbranch_scc1 {Dn}")
    a("s_sleep 2")
    a(f"buffer_load_dword v{vreg}, off, {srd(S_DBG)}, 0 sc1")
    a("s_waitcnt vmcnt(0)")
    a(f"v_readfirstlane_b32 s{S_NONCE}, v{vreg}")
    a(f"s_branch {L}")
    a.lab(Dn)

def nonce_get(a, vreg, after_issue=None):
    sk = a.new("NG")
    a(f"s_cmp_eq_u32 s{S_W}, 0")
    a(f"s_cbranch_scc0 {sk}")
    a(f"buffer_load_dword v{vreg}, off, {srd(S_DBG)}, 0 sc1")
    a.lab(sk)

def nonce_check(a, vreg):
    L, Dn = a.new("NC"), a.new("ND")
    a(f"s_cmp_eq_u32 s{S_W}, 0")
    a(f"s_cbranch_scc0 {Dn}")
    a(f"v_readfirstlane_b32 s{S_NONCE}, v{vreg}")
    a(f"s_mov_b32 s{T0}, {SPIN_MAX}")
    a.lab(L)
    a(f"s_cmp_lg_u32 s{S_NONCE}, 0")
    a(f"s_cbranch_scc1 {Dn}")
    a(f"s_sub_u32 s{T0}, s{T0}, 1")
    a(f"s_cbranch_scc1 {Dn}")
    a("s_sleep 2")
    a(f"buffer_load_dword v{vreg}, off, {srd(S_DBG)}, 0 sc1")
    a("s_waitcnt vmcnt(0)")
    a(f"v_readfirstlane_b32 s{S_NONCE}, v{vreg}")
    a(f"s_branch {L}")
    a.lab(Dn)

def poll_issue(a, vreg, voff, soff, tag):
    a.vmem(f"buffer_load_dword v{vreg}, v{voff}, {srd(S_FL)}, {soff} offen sc1", tag)

def poll_check(a, regs, voffs, soff, sleep=4):
    L, Dn = a.new("PL"), a.new("PD")
    a(f"s_mov_b32 s{T0}, {SPIN_MAX}")
    a.lab(L)
    a(f"v_cmp_ne_u32 s[{T0+2}:{T0+3}], s{S_NONCE}, v{regs[0]}")
    for r in regs[1:]:
        a(f"v_cmp_ne_u32 s[{T0+4}:{T0+5}], s{S_NONCE}, v{r}")
        a(f"s_or_b64 s[{T0+2}:{T0+3}], s[{T0+2}:{T0+3}], s[{T0+4}:{T0+5}]")
    a(f"s_cmp_eq_u64 s[{T0+2}:{T0+3}], 0")
    a(f"s_cbranch_scc1 {Dn}")
    a(f"s_sub_u32 s{T0}, s{T0}, 1")
    a(f"s_cbranch_scc1 {Dn}")
    a(f"s_sleep {sleep}")
    for r, vo in zip(regs, voffs):
        a(f"buffer_load_dword v{r}, v{vo}, {srd(S_FL)}, {soff} offen sc1")
    a("s_waitcnt vmcnt(0)")
    a(f"s_branch {L}")
    a.lab(Dn)

def wg_flag(a, soff, vtmp):
    sk = a.new("WF")
    a("s_barrier")
    a(f"s_cmp_eq_u32 s{S_W}, 0")
    a(f"s_cbranch_scc0 {sk}")
    a(f"v_mov_b32 v{vtmp}, s{S_NONCE}")
    a("s_mov_b64 exec, 1")
    a(f"buffer_store_dword v{vtmp}, off, {srd(S_FL)}, {soff} sc1")
    a("s_mov_b64 exec, -1")
    a.lab(sk)

def wg_poll(a, reg, voff, soff, sleep=4, reg2=None, voff2=None):
    L, Dn, sk = a.new("PL"), a.new("PD"), a.new("PS")
    a(f"s_cmp_eq_u32 s{S_W}, 0")
    a(f"s_cbranch_scc0 {sk}")
    a(f"s_mov_b32 s{T0}, {SPIN_MAX}")
    a.lab(L)
    a(f"buffer_load_dword v{reg}, v{voff}, {srd(S_FL)}, {soff} offen sc1")
    if reg2 is not None:
        a(f"buffer_load_dword v{reg2}, v{voff2}, {srd(S_FL)}, {soff} offen sc1")
    a("s_waitcnt vmcnt(0)")
    a(f"v_cmp_ne_u32 s[{T0+2}:{T0+3}], s{S_NONCE}, v{reg}")
    if reg2 is not None:
        a(f"v_cmp_ne_u32 s[{T0+4}:{T0+5}], s{S_NONCE}, v{reg2}")
        a(f"s_or_b64 s[{T0+2}:{T0+3}], s[{T0+2}:{T0+3}], s[{T0+4}:{T0+5}]")
    a(f"s_cmp_eq_u64 s[{T0+2}:{T0+3}], 0")
    a(f"s_cbranch_scc1 {Dn}")
    a(f"s_sub_u32 s{T0}, s{T0}, 1")
    a(f"s_cbranch_scc1 {Dn}")
    a(f"s_sleep {sleep}")
    a(f"s_branch {L}")
    a.lab(Dn)
    a.lab(sk)
    a("s_barrier")

def poll_check_mask(a, reg, voff, soff, smask, sleep=4):
    L, Dn = a.new("PM"), a.new("PN")
    a(f"s_mov_b32 s{T0}, {SPIN_MAX}")
    a.lab(L)
    a(f"v_cmp_ne_u32 s[{T0+2}:{T0+3}], s{S_NONCE}, v{reg}")
    a(f"s_and_b32 s{T0+2}, s{T0+2}, s{smask}")
    a(f"s_cbranch_scc0 {Dn}")
    a(f"s_sub_u32 s{T0}, s{T0}, 1")
    a(f"s_cbranch_scc1 {Dn}")
    a(f"s_sleep {sleep}")
    a(f"buffer_load_dword v{reg}, v{voff}, {srd(S_FL)}, {soff} offen sc1")
    a("s_waitcnt vmcnt(0)")
    a(f"s_branch {L}")
    a.lab(Dn)

def flag_store(a, soff, vtmp, vzero):
    a(f"v_mov_b32 v{vtmp}, s{S_NONCE}")
    a("s_mov_b64 exec, 1")
    a.vmem(f"buffer_store_dword v{vtmp}, off, {srd(S_FL)}, {soff} sc1", "F")
    a("s_mov_b64 exec, -1")

def prep_issue(a, s_db, s_kb, V):
    t = T0
    a(f"v_lshrrev_b32 v{V+1}, 3, v0")
    a(f"v_and_b32 v{V+2}, 7, v0")
    a(f"v_mul_u32_u24 v{V+3}, 5504, v{V+1}")
    a(f"v_lshl_add_u32 v{V+3}, v{V+2}, 4, v{V+3}")
    a(f"v_lshlrev_b32 v{V+4}, 3, v{V+2}")
    a(f"s_cmp_eq_u32 s{s_kb}, 21")
    a(f"s_cselect_b32 s{t}, 0x40000000, 128")
    a(f"s_cselect_b32 s{t+1}, 0x40000000, 64")
    a(f"v_add_u32 v{V+5}, s{t}, v{V+3}")
    a(f"v_add_u32 v{V+6}, s{t+1}, v{V+4}")
    a(f"s_mul_i32 s{t+2}, s{s_db}, 88064")
    a(f"s_lshl_b32 s{t+3}, s{s_kb}, 8")
    a(f"s_add_u32 s{t+2}, s{t+2}, s{t+3}")
    a(f"s_add_u32 s{t+3}, s{t+2}, 44032")
    a(f"s_lshr_b32 s{t+4}, s{s_db}, 3")
    a(f"s_mul_i32 s{t+4}, s{t+4}, 2752")
    a(f"s_lshl_b32 s{t+5}, s{s_kb}, 7")
    a(f"s_add_u32 s{t+4}, s{t+4}, s{t+5}")
    kwait(a)
    a.vmem(f"buffer_load_dwordx4 v[{V+8}:{V+11}], v{V+3}, {srd(S_QW)}, s{t+2} offen{' nt' if OPT['PNT'] else ''}", "P")
    a.vmem(f"buffer_load_dwordx4 v[{V+12}:{V+15}], v{V+5}, {srd(S_QW)}, s{t+2} offen{' nt' if OPT['PNT'] else ''}", "P")
    a.vmem(f"buffer_load_dwordx4 v[{V+16}:{V+19}], v{V+3}, {srd(S_QW)}, s{t+3} offen{' nt' if OPT['PNT'] else ''}", "P")
    a.vmem(f"buffer_load_dwordx4 v[{V+20}:{V+23}], v{V+5}, {srd(S_QW)}, s{t+3} offen{' nt' if OPT['PNT'] else ''}", "P")
    a.vmem(f"buffer_load_dwordx2 v[{V+24}:{V+25}], v{V+4}, {srd(S_SC)}, s{t+4} offen", "P")
    a.vmem(f"buffer_load_dwordx2 v[{V+26}:{V+27}], v{V+6}, {srd(S_SC)}, s{t+4} offen", "P")
    a.vmem(f"buffer_load_dwordx2 v[{V+28}:{V+29}], v{V+4}, {srd(S_ZR)}, s{t+4} offen", "P")
    a.vmem(f"buffer_load_dwordx2 v[{V+30}:{V+31}], v{V+6}, {srd(S_ZR)}, s{t+4} offen", "P")
    late_srds(a)
    a(f"v_lshrrev_b32 v{V+7}, 2, v{V+2}")
    a(f"v_lshlrev_b32 v{V+7}, 10, v{V+7}")
    a(f"v_and_b32 v{V+32}, 3, v{V+2}")
    a(f"v_lshl_add_u32 v{V+7}, v{V+32}, 8, v{V+7}")
    a(f"v_lshl_add_u32 v{V+7}, v{V+1}, 4, v{V+7}")

def prep_finish(a, s_db, s_kb, V):
    t = T0
    a(f"s_mul_i32 s{t}, s{s_db}, 44")
    a(f"s_lshl_b32 s{t+1}, s{s_kb}, 1")
    a(f"s_add_u32 s{t}, s{t}, s{t+1}")
    a(f"s_lshl_b32 s{t}, s{t}, 10")
    a(f"s_mov_b32 s{t+1}, 0xffff0000")
    for i in range(4):
        a(f"v_lshlrev_b32 v{V+32+2*i}, 16, v{V+24+i}")
        a(f"v_and_b32 v{V+33+2*i}, s{t+1}, v{V+24+i}")
        a(f"v_lshlrev_b32 v{V+40+2*i}, 16, v{V+28+i}")
        a(f"v_and_b32 v{V+41+2*i}, s{t+1}, v{V+28+i}")
    for rh in range(2):
        q = V + 8 + 8 * rh
        for i in range(8):
            a(f"v_cvt_f32_i32 v{q+i}, v{q+i}")
        for i in range(8):
            a(f"v_sub_f32 v{q+i}, v{q+i}, v{V+40+i}")
        for i in range(4):
            a(f"v_cvt_pk_bf16_f32 v{V+48+i}, v{q+2*i}, v{q+2*i+1}")
        for i in range(4):
            a(f"v_lshlrev_b32 v{q+2*i}, 16, v{V+48+i}")
            a(f"v_and_b32 v{q+2*i+1}, s{t+1}, v{V+48+i}")
        for i in range(8):
            a(f"v_mul_f32 v{q+i}, v{q+i}, v{V+32+i}")
        o = V + 52 + 4 * rh
        for i in range(4):
            a(f"v_cvt_pk_bf16_f32 v{o+i}, v{q+2*i}, v{q+2*i+1}")
        a.vmem(f"buffer_store_dwordx4 v[{o}:{o+3}], v{V+7}, {srd(S_WQF)}, s{t} offen offset:{128*rh} sc1", "S")

def interleave(main, side):
    out = []
    n, m = len(main), len(side)
    k = 0
    for i, x in enumerate(main):
        out.append(x)
        while k < m and (k + 1) * n <= (i + 1) * m + (n - 1) * 0:
            out.append(side[k]); k += 1
    out.extend(side[k:])
    return out

def role_xr(a, s_eb, s_mb8, s_rot):
    s_w = S_W
    SWE, SWM, UB, XB, LB, TT = 64, 65, 66, 67, 68, 69
    a(f"s_and_b32 s{SWE}, s{s_w}, 1")
    a(f"s_lshr_b32 s{SWM}, s{s_w}, 1")
    a("v_lshrrev_b32 v1, 4, v0")
    a("v_and_b32 v2, 15, v0")
    a("v_lshlrev_b32 v3, 1, v1")
    a("v_xor_b32 v4, v2, v3")
    a("v_xor_b32 v5, 8, v4")
    a("v_lshlrev_b32 v6, 10, v1")
    a("v_lshl_add_u32 v10, v4, 4, v6")
    a("v_lshl_add_u32 v11, v5, 4, v6")
    a("v_lshrrev_b32 v1, 3, v0")
    a("v_and_b32 v2, 7, v0")
    a("v_lshrrev_b32 v3, 1, v1")
    a("v_xor_b32 v4, v2, v3")
    a("v_xor_b32 v5, 4, v4")
    a("v_lshlrev_b32 v6, 10, v1")
    a("v_lshl_add_u32 v12, v4, 4, v6")
    a("v_lshl_add_u32 v13, v5, 4, v6")
    a(f"s_lshl_b32 s{UB}, s{s_w}, 14")
    a(f"s_lshl_b32 s{TT}, s{s_eb}, 8")
    a(f"s_add_u32 s{UB}, s{UB}, s{TT}")
    a(f"s_lshl_b32 s{XB}, s{s_mb8}, 17")
    a(f"s_lshl_b32 s{TT}, s{s_w}, 15")
    a(f"s_add_u32 s{XB}, s{XB}, s{TT}")
    a(f"s_lshl_b32 s{LB}, s{s_w}, 12")
    NSL = 4
    def dma_items(st):
        slot = st % NSL
        items = []
        def setup():
            a(f"s_add_u32 s70, s{s_rot}, {st}")
            a("s_and_b32 s70, s70, 7")
            a("s_lshl_b32 s71, s70, 16")
            a(f"s_add_u32 s71, s71, s{UB}")
            a("s_lshl_b32 s72, s70, 7")
            a(f"s_add_u32 s72, s72, s{XB}")
        for aa in range(4):
            def f(aa=aa):
                if aa == 0: setup()
                a(f"s_add_u32 m0, s{LB}, {slot*32768 + aa*1024}")
                a(f"s_add_u32 s{TT}, s71, {aa*4096}")
                a.vmem(f"buffer_load_dwordx4 v{10 + (aa>>1)}, {srd(S_U)}, s{TT} offen lds", f"X{st}")
            items.append(f)
        for bb in range(4):
            def f(bb=bb):
                a(f"s_add_u32 m0, s{LB}, {slot*32768 + 16384 + bb*1024}")
                a(f"s_add_u32 s{TT}, s72, {bb*8192}")
                a.vmem(f"buffer_load_dwordx4 v{12 + (bb&1)}, {srd(S_X)}, s{TT} offen lds", f"X{st}")
            items.append(f)
        return items
    XPRE = OPT['XPRE']
    kwait(a)
    if XPRE == 15:
        for f in dma_items(0): f()
        d1 = dma_items(1)
        for f in d1[:4]: f()
    else:
        for st in range(XPRE):
            for f in dma_items(st): f()
    late_srds(a)
    a.stamp()
    a("v_lshrrev_b32 v1, 4, v0")
    a("v_bfe_u32 v2, v0, 2, 2")
    a("v_and_b32 v3, 3, v0")
    a("v_lshl_add_u32 v4, v1, 3, v2")
    a("v_lshlrev_b32 v4, 8, v4")
    a("v_and_b32 v5, 1, v1")
    a("v_lshlrev_b32 v5, 3, v5")
    a("v_lshl_add_u32 v5, v2, 1, v5")
    a("v_lshrrev_b32 v6, 1, v3")
    a(f"s_lshl_b32 s{TT}, s{SWE}, 3")
    a(f"v_or_b32 v6, s{TT}, v6")
    a("v_xor_b32 v5, v5, v6")
    a("v_lshl_add_u32 v4, v5, 4, v4")
    a("v_and_b32 v6, 1, v3")
    a("v_lshl_add_u32 v4, v6, 3, v4")
    for i in range(4):
        a(f"v_xor_b32 v{16+i}, {i<<5}, v4")
        a(f"v_add_u32 v{20+i}, 0x10000, v{16+i}")
    a("v_and_b32 v2, 15, v0")
    a("v_lshrrev_b32 v3, 1, v2")
    a("v_xor_b32 v3, v3, v1")
    a("v_lshlrev_b32 v4, 7, v2")
    a("v_lshl_add_u32 v4, v3, 4, v4")
    a(f"s_lshl_b32 s{TT}, s{SWM}, 13")
    a(f"s_add_u32 s{TT}, s{TT}, 16384")
    a(f"v_add_u32 v24, s{TT}, v4")
    a("v_xor_b32 v25, 64, v24")
    a("v_add_u32 v26, 0x10000, v24")
    a("v_add_u32 v27, 0x10000, v25")
    ACC = 64
    for r in range(64):
        a(f"v_mov_b32 v{ACC+r}, 0")
    def read_items(hh):
        st, h2, buf = hh >> 1, hh & 1, hh & 1
        slot = st % NSL
        hi = slot >> 1
        so = (slot & 1) * 32768
        FA = 128 + 32 * buf
        FB = 144 + 32 * buf
        items = []
        for j in range(4):
            items.append(lambda j=j: a(f"ds_read_b128 v[{FB+4*j}:{FB+4*j+3}], v{24+2*hi+h2} offset:{so + j*2048}"))
        for i in range(4):
            for q in range(2):
                items.append(lambda i=i, q=q: a(f"ds_read_b64_tr_b16 v[{FA+4*i+2*q}:{FA+4*i+2*q+1}], v{16+4*hi+i} offset:{so + h2*8192 + q*1024}"))
        return items
    def mfma_items(buf):
        FA = 128 + 32 * buf
        FB = 144 + 32 * buf
        items = []
        for i in range(4):
            for j in range(4):
                c = ACC + 16*i + 4*j
                items.append(lambda c=c, i=i, j=j: a(f"v_mfma_f32_16x16x32_bf16 v[{c}:{c+3}], v[{FA+4*i}:{FA+4*i+3}], v[{FB+4*j}:{FB+4*j+3}], v[{c}:{c+3}]"))
        return items
    a.wait("X0")
    a("s_barrier")
    a.stamp()
    for f in read_items(0): f()
    for hh in range(16):
        st = hh >> 1
        a("s_waitcnt lgkmcnt(0)")
        if (hh & 1) and st + 1 < 8:
            a.wait(f"X{st+1}")
            a("s_barrier")
        side = []
        if hh + 1 < 16:
            side += read_items(hh + 1)
        dm = []
        if XPRE == 15 and hh < 2:
            if hh == 0:
                dm = d1[4:] + dma_items(2)
            else:
                dm = dma_items(3)[:4]
        elif XPRE == 3 or XPRE == 15:
            if hh & 1:
                S = st + 3
                if S < 8: dm = dma_items(S)[:4]
            else:
                S = st + 2
                if st >= 1 and S < 8: dm = dma_items(S)[4:]
        else:
            S = st + 2
            if S < 8:
                dm = dma_items(S)[:4] if (hh & 1) == 0 else dma_items(S)[4:]
        if hh == 9:
            dm = dm + [lambda: nonce_get_all(a, 28)]
        m = mfma_items(hh & 1)
        seq = interleave(m, side)
        seq = interleave(seq, dm)
        for f in seq: f()
    a("s_nop 7")
    a("s_nop 1")
    a.stamp()
    a("v_lshlrev_b32 v1, 4, v0")
    a(f"s_lshl_b32 s70, s{s_mb8}, 7")
    a(f"s_lshl_b32 s71, s{SWM}, 6")
    a("s_add_u32 s70, s70, s71")
    a(f"s_lshl_b32 s71, s{s_eb}, 2")
    a("s_add_u32 s70, s70, s71")
    a(f"s_lshl_b32 s71, s{SWE}, 1")
    a("s_add_u32 s70, s70, s71")
    a("s_lshl_b32 s70, s70, 10")
    for j in range(4):
        a(f"s_add_u32 s71, s70, {j*16*1024}")
        for sh in range(2):
            t0 = ACC + 16*(2*sh) + 4*j
            t1 = ACC + 16*(2*sh+1) + 4*j
            o = 128 + 4*(2*j+sh)
            a(f"v_cvt_pk_bf16_f32 v{o}, v{t0}, v{t0+1}")
            a(f"v_cvt_pk_bf16_f32 v{o+1}, v{t0+2}, v{t0+3}")
            a(f"v_cvt_pk_bf16_f32 v{o+2}, v{t1}, v{t1+1}")
            a(f"v_cvt_pk_bf16_f32 v{o+3}, v{t1+2}, v{t1+3}")
            a.vmem(f"buffer_store_dwordx4 v[{o}:{o+3}], v1, {srd(S_XF)}, s71 offen offset:{sh*1024} sc1", "S")
    a.wait("S")
    nonce_check_all(a, 28)
    a(f"s_lshl_b32 s70, s{s_mb8}, 7")
    a(f"s_lshl_b32 s71, s{s_eb}, 2")
    a("s_add_u32 s70, s70, s71")
    a(f"s_add_u32 s70, s70, {F3_B}")
    wg_flag(a, "s70", 2)
    a.stamp()

def role_T(a, s_rb, s_cb, s_rot):
    s_w = S_W
    NSL = 10
    DBS, DBS2 = 68, 95
    TB, CBO, LB, WBASE = 69, 70, 71, 72
    a("v_lshrrev_b32 v1, 3, v0")
    a("v_and_b32 v2, 7, v0")
    a("v_bfe_u32 v3, v1, 1, 1")
    a("v_lshlrev_b32 v3, 2, v3")
    a("v_xor_b32 v2, v2, v3")
    a("v_mul_u32_u24 v10, 2752, v1")
    a("v_lshl_add_u32 v10, v2, 4, v10")
    a(f"s_mul_i32 s73, s{s_w}, 11")
    a(f"s_add_u32 s{TB}, s{s_rot}, s73")
    a(f"s_lshl_b32 s{CBO}, s{s_cb}, 7")
    a(f"s_mul_i32 s{LB}, s{s_w}, {NSL*4096}")
    def step_t(i, dst):
        a(f"s_add_u32 s{dst}, s{TB}, {i}")
        a(f"s_cmp_ge_u32 s{dst}, 44")
        a(f"s_cselect_b32 s75, 44, 0")
        a(f"s_sub_u32 s{dst}, s{dst}, s75")
    def issueV(i):
        slot = i % NSL
        step_t(i, 73)
        a("s_lshr_b32 s74, s73, 1")
        a("s_lshl_b32 s74, s74, 6")
        a("s_and_b32 s73, s73, 1")
        a("s_lshl_b32 s73, s73, 4")
        a("s_add_u32 s73, s73, s74")
        a("s_mul_i32 s73, s73, 2752")
        a(f"s_add_u32 s73, s73, s{CBO}")
        for p, ro in enumerate((0, 8, 32, 40)):
            a(f"s_add_u32 m0, s{LB}, {slot*4096 + p*1024}")
            a(f"s_add_u32 s74, s73, {ro*2752}")
            a.vmem(f"buffer_load_dwordx4 v10, {srd(S_V)}, s74 offen{' nt' if OPT['VNT'] else ''} lds", f"V{i}")
    def addr_setup():
        a("v_lshrrev_b32 v1, 4, v0")
        a("v_bfe_u32 v2, v0, 2, 2")
        a("v_and_b32 v3, 3, v0")
        a("v_lshl_add_u32 v4, v1, 2, v2")
        a("v_lshlrev_b32 v4, 7, v4")
        a("v_lshl_add_u32 v4, v3, 4, v4")
        a("v_lshrrev_b32 v5, 1, v2")
        a("v_lshl_add_u32 v4, v5, 6, v4")
        a(f"v_add_u32 v11, s{LB}, v4")
        a("v_xor_b32 v12, 64, v11")
        a("v_lshlrev_b32 v13, 4, v0")
        a("v_lshlrev_b32 v14, 2, v0")
        a("v_add_u32 v15, 64, v0")
        a("v_min_u32 v15, 87, v15")
        a("v_lshlrev_b32 v15, 2, v15")
    NV0, NV1 = OPT['NV0'], OPT['NV1']
    a(f"s_lshl_b32 s{DBS}, s{s_rb}, 2")
    a(f"s_add_u32 s{DBS}, s{DBS}, s{s_w}")
    PVA = 160
    prep_issue(a, DBS, s_cb, PVA)
    for i in range(NV0):
        issueV(i)
    a.stamp()
    addr_setup()
    a.wait("P")
    a.stamp()
    nonce_get_all(a, 9)
    prep_finish(a, DBS, s_cb, PVA)
    for i in range(NV0, NV1):
        issueV(i)
    a.wait("S")
    a.stamp()
    nonce_check_all(a, 9)
    a(f"s_lshl_b32 s73, s{s_rb}, 9")
    a(f"s_lshl_b32 s74, s{s_cb}, 4")
    a("s_add_u32 s73, s73, s74")
    a(f"s_lshl_b32 s74, s{s_w}, 2")
    a("s_add_u32 s73, s73, s74")
    a(f"s_add_u32 s73, s73, {F1_B}")
    flag_store(a, "s73", 2, None)
    for i in range(NV1, NSL):
        issueV(i)
    def trreads(i):
        slot = i % NSL
        for j in range(4):
            pp, ab = j >> 1, j & 1
            for q in range(2):
                r = 16*i + 4*j + 2*q
                a(f"ds_read_b64_tr_b16 a[{r}:{r+1}], v{11+pp} offset:{slot*4096 + q*2048 + ab*8}")
    a.wait("V0")
    trreads(0)
    a("s_waitcnt lgkmcnt(0)")
    issueV(10)
    a(f"s_lshl_b32 s68, s{s_rb}, 9")
    a(f"s_add_u32 s68, s68, {F1_B}")
    ACC = 176
    for i in range(1, NSL):
        a.wait(f"V{i}")
        trreads(i)
        if i <= 4:
            for r in range(16*(i-1), 16*i):
                a(f"v_accvgpr_write_b32 a{ACC+r}, 0")
        if i == OPT['F1AT']:
            poll_issue(a, 16, 14, "s68", "Q")
            poll_issue(a, 17, 15, "s68", "Q")
    a.wait("V10")
    trreads(10)
    a.wait("Q")
    a.stamp()
    poll_check(a, [16, 17], [14, 15], "s68", sleep=6)
    a.stamp()
    a(f"s_mul_i32 s{WBASE}, s{s_rb}, {4*44}")
    WB = 64
    def w_items(i):
        items = []
        for d in range(4):
            def f(d=d):
                if d == 0:
                    step_t(i, 73)
                    a(f"s_add_u32 s73, s73, s{WBASE}")
                    a("s_lshl_b32 s73, s73, 10")
                    a("s_mov_b32 s74, s73")
                else:
                    a(f"s_add_u32 s74, s73, {d*44*1024}")
                r = WB + 16*i + 4*d
                a.vmem(f"buffer_load_dwordx4 v[{r}:{r+3}], v13, {srd(S_WQF)}, s74 offen{LDSC}", f"W{i}")
            items.append(f)
        return items
    PRE = OPT['WPRE']
    for i in range(PRE):
        for f in w_items(i): f()
    y_f3_addr(a, 18, 19)
    a("s_waitcnt lgkmcnt(0)")
    a("s_barrier")
    for i in range(11):
        a.wait(f"W{i}")
        m = []
        for d in range(4):
            for j in range(4):
                c = ACC + 16*d + 4*j
                ra = WB + 16*i + 4*d
                rb_ = 16*i + 4*j
                m.append(lambda c=c, ra=ra, rb_=rb_: a(f"v_mfma_f32_16x16x32_bf16 a[{c}:{c+3}], v[{ra}:{ra+3}], a[{rb_}:{rb_+3}], a[{c}:{c+3}]"))
        side = w_items(i + PRE) if i + PRE < 11 else []
        if i == 8:
            side = side + [lambda: poll_issue(a, 19, 18, "s67", "Q3")]
        for f in interleave(m, side): f()
    a("s_nop 7")
    a.stamp()
    a("v_lshlrev_b32 v14, 4, v0")
    for w in range(4):
        sk = a.new("TR")
        a(f"s_cmp_eq_u32 s{s_w}, {w}")
        a(f"s_cbranch_scc0 {sk}")
        for o in range(4):
            if o == w: continue
            rank = (w - o - 1) % 4
            sh, jh = o >> 1, o & 1
            tl = 0
            for d in (2*sh, 2*sh+1):
                for j in (2*jh, 2*jh+1):
                    c = ACC + 16*d + 4*j
                    a(f"ds_write_b128 v14, a[{c}:{c+3}] offset:{o*12288 + (rank*4+tl)*1024}")
                    tl += 1
        sh, jh = w >> 1, w & 1
        tl = 0
        for d in (2*sh, 2*sh+1):
            for j in (2*jh, 2*jh+1):
                c = ACC + 16*d + 4*j
                for r in range(4):
                    a(f"v_accvgpr_read_b32 v{20+4*tl+r}, a{c+r}")
                tl += 1
        a.lab(sk)
    a("s_waitcnt lgkmcnt(0)")
    a("s_barrier")
    a(f"s_mul_i32 s73, s{s_w}, 12288")
    a("v_add_u32 v15, s73, v14")
    for k in range(12):
        a(f"ds_read_b128 v[{36+4*k}:{36+4*k+3}], v15 offset:{k*1024}")
    a(f"s_lshr_b32 s62, s{s_w}, 1")
    a(f"s_and_b32 s63, s{s_w}, 1")
    a(f"s_lshl_b32 s64, s{s_cb}, 1")
    a("s_add_u32 s64, s64, s63")
    a(f"s_lshl_b32 s65, s{s_rb}, 1")
    a("s_add_u32 s65, s65, s62")
    a("s_lshl_b32 s70, s64, 5")
    a("s_add_u32 s70, s70, s65")
    a("s_lshl_b32 s70, s70, 10")
    a("s_add_u32 s71, s70, 16384")
    a(f"s_lshl_b32 s64, s{s_cb}, 7")
    a(f"s_lshl_b32 s65, s{s_rb}, 2")
    a("s_add_u32 s64, s64, s65")
    a(f"s_add_u32 s72, s64, {F2_B}")
    for rank in range(3):
        a(f"s_waitcnt lgkmcnt({8-4*rank})")
        for r in range(16):
            a(f"v_add_f32 v{20+r}, v{20+r}, v{36+16*rank+r}")
    for jj in range(2):
        t0, t1, o = 20 + 4*jj, 20 + 4*(2+jj), 88 + 4*jj
        a(f"v_cvt_pk_bf16_f32 v{o}, v{t0}, v{t0+1}")
        a(f"v_cvt_pk_bf16_f32 v{o+1}, v{t0+2}, v{t0+3}")
        a(f"v_cvt_pk_bf16_f32 v{o+2}, v{t1}, v{t1+1}")
        a(f"v_cvt_pk_bf16_f32 v{o+3}, v{t1+2}, v{t1+3}")
        a.vmem(f"buffer_store_dwordx4 v[{o}:{o+3}], v14, {srd(S_TF)}, s{70+jj} offen sc1", "S2")
    a.stamp()
    poll_check(a, [19], [18], "s67")
    a.wait("S2")
    wg_flag(a, "s72", 2)
    y_f2_addr(a)
    y_xr_loads(a, 0, 12)
    a(f"buffer_load_dword v14, v12, {srd(S_FL)}, s68 offen sc1")
    y_xr_loads(a, 12, 16)
    a.stamp()

def y_f2_addr(a):
    a("v_and_b32 v12, 7, v0")
    a("v_lshlrev_b32 v12, 2, v12")
    a("v_bfe_u32 v13, v0, 3, 1")
    a(f"s_cmp_eq_u32 s{S_NBK}, 14")
    a("s_cselect_b32 s63, 0, 128")
    a("v_mul_u32_u24 v13, s63, v13")
    a("v_add_u32 v12, v12, v13")
    a(f"s_min_u32 s68, s{S_NBK}, 14")
    a("s_mul_i32 s68, s68, 3")
    a("s_lshr_b32 s68, s68, 1")
    a("s_lshl_b32 s68, s68, 7")
    a(f"s_add_u32 s68, s68, {F2_B}")

def y_f3_addr(a, vo, vt):
    a(f"v_and_b32 v{vo}, 3, v0")
    a(f"v_lshlrev_b32 v{vo}, 2, v{vo}")
    a(f"s_lshl_b32 s67, s{S_MB8}, 7")
    a(f"s_add_u32 s67, s67, {F3_B}")

def y_rot(a):
    a(f"s_and_b32 s74, s{S_MB8}, 3")
    a("s_lshl_b32 s74, s74, 2")
    a(f"s_and_b32 s75, s{S_NBK}, 7")
    a("s_lshl_b32 s75, s75, 1")
    a("s_add_u32 s74, s74, s75")

def y_xr_loads(a, q0=0, q1=16):
    sk = a.new("YX")
    a(f"s_cmp_ge_u32 s{S_NBK}, 15")
    a(f"s_cbranch_scc1 {sk}")
    y_rot(a)
    a("v_lshlrev_b32 v10, 4, v0")
    a(f"s_lshl_b32 s69, s{S_MB8}, 17")
    a(f"s_lshl_b32 s75, s{S_W}, 15")
    a("s_add_u32 s69, s69, s75")
    for q in range(q0, q1):
        a(f"s_add_u32 s75, s74, {q}")
        a("s_and_b32 s75, s75, 15")
        a("s_lshl_b32 s75, s75, 10")
        a("s_add_u32 s75, s75, s69")
        for i in range(2):
            reg = 8*q + 4*i
            a.vmem(f"buffer_load_dwordx4 a[{reg}:{reg+3}], v10, {srd(S_XF)}, s75 offen{LDSC}", "XR")
            if i == 0:
                a("s_add_u32 s75, s75, 16384")
    a.lab(sk)

def role_y(a):
    s_w, s_mb8, s_nbk = S_W, S_MB8, S_NBK
    a.vm = []
    y_rot(a)
    a("v_lshlrev_b32 v10, 4, v0")
    a("v_add_u32 v11, 0x10000, v10")
    ACC = 16
    for r in range(48):
        a(f"v_mov_b32 v{ACC+r}, 0")
    a("s_waitcnt vmcnt(8)")
    if OPT['F2S']:
        NS1 = OPT['F2S']
        a("s_lshr_b32 s66, s74, 1")
        a("s_and_b32 s66, s66, 7")
        a(f"s_lshl_b32 s67, {(1 << NS1) - 1}, s66")
        a("s_lshr_b32 s75, s67, 8")
        a("s_or_b32 s67, s67, s75")
        a("s_and_b32 s67, s67, 0xff")
        a("s_lshl_b32 s75, s67, 8")
        a("s_or_b32 s67, s67, s75")
        poll_check_mask(a, 14, 12, "s68", 67, sleep=4)
    else:
        poll_check(a, [14], [12], "s68", sleep=6)
    a.stamp()
    a(f"s_mul_i32 s69, s{s_nbk}, {6*16*1024}")
    a(f"s_and_b32 s71, s{s_w}, 1")
    a("s_mul_i32 s71, s71, 49152")
    a("s_add_u32 s69, s69, s71")
    a(f"s_lshr_b32 s73, s{s_w}, 1")
    a("s_add_u32 s73, s73, s74")
    a(f"s_mul_i32 s72, s{s_w}, 3072")
    NG = 8
    def t_items(g):
        items = []
        for k in range(3):
            def f(k=k):
                if k == 0:
                    a(f"s_add_u32 s70, s73, {2*g}")
                    a("s_and_b32 s70, s70, 15")
                    a("s_lshl_b32 s70, s70, 10")
                    a("s_add_u32 s70, s70, s69")
                a(f"s_add_u32 m0, s72, {(12*g + k)*1024}")
                a(f"s_add_u32 s71, s70, {k*16384}")
                a.vmem(f"buffer_load_dwordx4 v10, {srd(S_TF)}, s71 offen{LDSC} lds", f"T{g}")
            items.append(f)
        return items
    PRE = OPT['TPRE']
    if OPT['F2S']:
        PRE = OPT['F2S']
    for g in range(PRE):
        for f in t_items(g): f()
    FA = 64
    def read_items(g):
        items = []
        for qq in range(2):
            q = 2*g + qq
            for j in range(6):
                r = FA + 48*(g & 1) + 24*qq + 4*j
                idx = q*6 + j
                if idx < 64:
                    items.append(lambda r=r, idx=idx: a(f"ds_read_b128 v[{r}:{r+3}], v10 offset:{idx*1024}"))
                else:
                    items.append(lambda r=r, idx=idx: a(f"ds_read_b128 v[{r}:{r+3}], v11 offset:{(idx-64)*1024}"))
        return items
    def mfma_items(g):
        items = []
        for qq in range(2):
            q = 2*g + qq
            for j in range(6):
                for i in range(2):
                    c = ACC + 8*j + 4*i
                    ra = FA + 48*(g & 1) + 24*qq + 4*j
                    rb_ = 8*q + 4*i
                    items.append(lambda c=c, ra=ra, rb_=rb_: a(f"v_mfma_f32_16x16x32_bf16 v[{c}:{c+3}], v[{ra}:{ra+3}], a[{rb_}:{rb_+3}], v[{c}:{c+3}]"))
        return items
    a.wait("T0")
    a("s_barrier")
    a.stamp()
    for f in read_items(0): f()
    for g in range(NG):
        if g + 1 < NG:
            a.wait(f"T{g+1}")
            a("s_waitcnt lgkmcnt(0)")
            a("s_barrier")
        else:
            a("s_waitcnt lgkmcnt(0)")
        side = read_items(g + 1) if g + 1 < NG else []
        if OPT['F2S']:
            G2 = OPT['F2G']
            dm = []
            if g == G2:
                a(f"buffer_load_dword v14, v12, {srd(S_FL)}, s68 offen sc1")
                a("s_waitcnt vmcnt(0)")
                a.vm = []
                poll_check(a, [14], [12], "s68", sleep=4)
                for gg in range(PRE, NG):
                    dm += t_items(gg)
        else:
            dm = t_items(g + PRE) if g + PRE < NG else []
        seq = interleave(mfma_items(g), side)
        seq = interleave(seq, dm)
        for f in seq: f()
    a("s_nop 7")
    a("s_nop 1")
    a.stamp()
    a("v_and_b32 v1, 15, v0")
    a("v_lshrrev_b32 v2, 4, v0")
    a("v_mul_u32_u24 v3, 2752, v1")
    a("v_lshl_add_u32 v3, v2, 4, v3")
    a(f"s_lshl_b32 s70, s{s_mb8}, 7")
    a(f"s_lshl_b32 s71, s{s_w}, 5")
    a("s_add_u32 s70, s70, s71")
    a("s_mul_i32 s70, s70, 2752")
    a(f"s_mul_i32 s71, s{s_nbk}, 192")
    a("s_add_u32 s70, s70, s71")
    a(f"s_add_u32 s71, s70, {16*2752}")
    for p in range(3):
        if p == 1:
            a(f"s_cmp_eq_u32 s{s_nbk}, 14")
            a("s_cbranch_scc1 Y_done")
        for i in range(2):
            t0 = ACC + 8*(2*p) + 4*i
            t1 = ACC + 8*(2*p+1) + 4*i
            o = 160 + 4*(2*p+i)
            a(f"v_cvt_pk_bf16_f32 v{o}, v{t0}, v{t0+1}")
            a(f"v_cvt_pk_bf16_f32 v{o+1}, v{t0+2}, v{t0+3}")
            a(f"v_cvt_pk_bf16_f32 v{o+2}, v{t1}, v{t1+1}")
            a(f"v_cvt_pk_bf16_f32 v{o+3}, v{t1+2}, v{t1+3}")
            a(f"buffer_store_dwordx4 v[{o}:{o+3}], v3, {srd(S_OUT)}, s{70+i} offen offset:{64*p}{['', ' sc1', ' nt', ' sc0 sc1'][OPT['OST']]}")
    a.lab("Y_done")

def kd(name, vgpr, accum, sgpr=102):
    return f""".p2align 6
.amdhsa_kernel {name}
  .amdhsa_next_free_vgpr {vgpr}
  .amdhsa_next_free_sgpr {sgpr}
  .amdhsa_accum_offset {accum}
  .amdhsa_group_segment_fixed_size 0
  .amdhsa_kernarg_size 72
  .amdhsa_user_sgpr_count 2
  .amdhsa_user_sgpr_kernarg_segment_ptr 1
  .amdhsa_system_sgpr_workgroup_id_x 1
.end_amdhsa_kernel
"""

HEADER = open("cdna_kernels/" + NAME + ".s.ref").read().split("; Override launch")[0]

DESC = """;
"""

def build():
    a = A()
    K = NAME + "_kernel"
    out = HEADER
    out += "; @launch grid=(256,1,1) block=(256,1,1) lds=163840\n"
    out += DESC
    out += '.amdgcn_target "amdgcn-amd-amdhsa--gfx950"\n.text\n'
    a.l.append(f".globl {K}\n.p2align 8\n.type {K},@function\n{K}:")
    a("s_cmp_ge_u32 s2, 256")
    a("s_cbranch_scc1 K_end")
    if STAMPS:
        a("s_memrealtime s[94:95]")
        a("s_memtime s[96:97]")
    prologue(a)
    a(f"s_cmp_eq_u32 s2, {253 if OPT['MAP'] in (2, 3) else 250}")
    a("s_cbranch_scc0 K_np")
    a(f"s_cmp_eq_u32 s{S_W}, 0")
    a("s_cbranch_scc0 K_np")
    kwait(a)
    a("s_memrealtime s[62:63]")
    a("s_waitcnt lgkmcnt(0)")
    a("s_or_b32 s62, s62, 1")
    a("v_mov_b32 v2, s62")
    a("s_mov_b64 exec, 1")
    a(f"buffer_store_dword v2, off, {srd(S_DBG)}, 0 sc1")
    a("s_mov_b64 exec, -1")
    a.lab("K_np")
    if OPT['CPF']:
        a(f"s_cmp_eq_u32 s{S_W}, 3")
        a("s_cbranch_scc0 K_ncpf")
        a("s_getpc_b64 s[62:63]")
        a.lab("K_pc")
        a(f"s_sub_u32 s62, s62, K_pc-{K}")
        a("s_subb_u32 s63, s63, 0")
        a(f"s_mov_b32 s64, K_code_end-{K}-4")
        a("v_lshlrev_b32 v2, 7, v0")
        for k in range(4):
            a(f"v_add_u32 v3, {k*8192}, v2")
            a("v_min_u32 v3, s64, v3")
            a("global_load_dword v255, v3, s[62:63]")
        a.lab("K_ncpf")
    if STAMPS:
        a("s_mov_b32 s76, s94")
        a.nst = 1
    a.stamp()
    a("s_and_b32 s62, s2, 7")
    a("s_lshr_b32 s63, s2, 3")
    a("s_and_b32 s64, s62, 3")
    a("s_lshl_b32 s64, s64, 2")
    a("s_and_b32 s65, s63, 3")
    a(f"s_add_u32 s{S_MB8}, s64, s65")
    a("s_lshr_b32 s64, s62, 2")
    a("s_lshl_b32 s64, s64, 3")
    a("s_lshr_b32 s65, s63, 2")
    a(f"s_add_u32 s{S_NBK}, s64, s65")
    if OPT['MAP'] == 0:
        a("s_lshr_b32 s64, s62, 1")
        a("s_and_b32 s65, s64, 1")
        a("s_sub_u32 s65, 6, s65")
        a("s_lshl_b32 s65, s65, 2")
        a("s_cmp_lt_u32 s63, s65")
        a("s_cbranch_scc0 K_notT")
        a("s_and_b32 s66, s62, 1")
        a("s_lshl_b32 s66, s66, 2")
        a("s_and_b32 s67, s63, 3")
        a(f"s_add_u32 s{S_A}, s66, s67")
        a("s_mul_i32 s64, s64, 11")
        a("s_add_u32 s64, s64, 1")
        a("s_lshr_b32 s64, s64, 1")
        a("s_lshr_b32 s66, s63, 2")
        a(f"s_add_u32 s{S_B}, s64, s66")
        a("s_mul_i32 s67, s67, 11")
        a("s_lshr_b32 s67, s67, 2")
        a("s_lshl_b32 s66, s66, 1")
        a("s_add_u32 s94, s67, s66")
        if OPT['SKEW']:
            a("s_and_b32 s66, s62, 1")
            a("s_mul_i32 s66, s66, 5")
            a("s_add_u32 s94, s94, s66")
    elif OPT['MAP'] == 1:
        a("s_mov_b32 s65, 22")
        a("s_cmp_lt_u32 s63, s65")
        a("s_cbranch_scc0 K_notT")
        a("s_mul_i32 s64, s62, 22")
        a("s_add_u32 s64, s64, s63")
        a(f"s_lshr_b32 s{S_B}, s64, 3")
        a(f"s_and_b32 s{S_A}, s64, 7")
        a(f"s_mul_i32 s67, s{S_A}, 11")
        a("s_lshr_b32 s67, s67, 3")
        a(f"s_and_b32 s66, s{S_B}, 3")
        a("s_mul_i32 s66, s66, 3")
        a("s_add_u32 s94, s67, s66")
    elif OPT['MAP'] == 4:
        a("s_mov_b32 s65, 22")
        a("s_cmp_lt_u32 s63, s65")
        a("s_cbranch_scc0 K_notT")
        a("s_lshr_b32 s64, s62, 2")
        a("s_mul_i32 s64, s64, 11")
        a("s_bfe_u32 s66, s62, 0x10001")
        a("s_and_b32 s67, s62, 1")
        a("s_lshl_b32 s67, s67, 2")
        a("s_cmp_lt_u32 s63, 20")
        a("s_cbranch_scc0 K_T2")
        a("s_mul_i32 s66, s66, 6")
        a("s_add_u32 s64, s64, s66")
        a("s_lshr_b32 s66, s63, 2")
        a(f"s_add_u32 s{S_B}, s64, s66")
        a("s_and_b32 s70, s63, 3")
        a(f"s_add_u32 s{S_A}, s67, s70")
        a("s_branch K_T3")
        a.lab("K_T2")
        a(f"s_add_u32 s{S_B}, s64, 5")
        a("s_lshl_b32 s66, s66, 1")
        a("s_add_u32 s67, s67, s66")
        a("s_sub_u32 s70, s63, 20")
        a(f"s_add_u32 s{S_A}, s67, s70")
        a("s_mov_b32 s66, 5")
        a.lab("K_T3")
        a(f"s_and_b32 s67, s{S_A}, 3")
        a("s_mul_i32 s67, s67, 11")
        a("s_lshr_b32 s67, s67, 2")
        a("s_lshl_b32 s66, s66, 1")
        a("s_add_u32 s94, s67, s66")
        a("s_and_b32 s66, s62, 1")
        a("s_mul_i32 s66, s66, 5")
        a("s_add_u32 s94, s94, s66")
    elif OPT['MAP'] == 3:
        a("s_cmp_lt_u32 s62, 4")
        a("s_cselect_b32 s65, 16, 28")
        a("s_cmp_lt_u32 s63, s65")
        a("s_cbranch_scc0 K_notT")
        a("s_and_b32 s66, s62, 1")
        a("s_lshl_b32 s66, s66, 2")
        a("s_and_b32 s67, s63, 3")
        a(f"s_add_u32 s{S_A}, s66, s67")
        a("s_lshr_b32 s64, s62, 1")
        a("s_lshl_b32 s66, s64, 2")
        a("s_mul_i32 s65, s64, 7")
        a("s_sub_u32 s65, s65, 6")
        a("s_cmp_lt_u32 s62, 4")
        a("s_cselect_b32 s64, s66, s65")
        a("s_lshr_b32 s66, s63, 2")
        a(f"s_add_u32 s{S_B}, s64, s66")
        a("s_mul_i32 s67, s67, 11")
        a("s_lshr_b32 s67, s67, 2")
        a("s_mul_i32 s66, s66, 3")
        a("s_lshr_b32 s66, s66, 1")
        a("s_add_u32 s94, s67, s66")
        a("s_and_b32 s66, s62, 1")
        a("s_mul_i32 s66, s66, 5")
        a("s_add_u32 s94, s94, s66")
    else:
        a("s_cmp_ge_u32 s62, 6")
        a("s_cbranch_scc1 K_xr")
        a("s_cmp_lt_u32 s62, 2")
        a("s_cselect_b32 s65, 30, 29")
        a("s_cmp_lt_u32 s63, s65")
        a("s_cbranch_scc0 K_spare")
        a("s_min_u32 s66, s62, 2")
        a("s_mul_i32 s64, s62, 29")
        a("s_add_u32 s64, s64, s66")
        a("s_add_u32 s64, s64, s63")
        a(f"s_lshr_b32 s{S_B}, s64, 3")
        a(f"s_and_b32 s{S_A}, s64, 7")
        a(f"s_mul_i32 s67, s{S_A}, 11")
        a("s_lshr_b32 s67, s67, 3")
        a(f"s_and_b32 s66, s{S_B}, 3")
        a("s_mul_i32 s66, s66, 3")
        a("s_add_u32 s94, s67, s66")
    nst0 = a.nst
    if OPT['DIAG'] == 2:
        a("s_branch K_fin")
    role_T(a, S_A, S_B, 94)
    if OPT['DIAG']:
        a.nst = 10
    nstT = a.nst
    a.lab("K_y")
    a.nst = nstT
    a(f"s_cmp_ge_u32 s{S_NBK}, 15")
    a("s_cbranch_scc1 K_fin")
    role_y(a)
    a.lab("K_fin")
    if OPT['DBGSPAN']:
        a(f"s_cmp_eq_u32 s{S_W}, 0")
        a("s_cbranch_scc0 K_end")
        a("s_waitcnt vmcnt(0)")
        a("s_memrealtime s[62:63]")
        a("s_waitcnt lgkmcnt(0)")
        a(f"s_sub_u32 s62, s62, s{S_NONCE}")
        a("v_mov_b32 v2, s62")
        a("s_mov_b64 exec, 1")
        a(f"buffer_atomic_umax v2, off, {srd(S_DBG)}, 0 offset:4")
        a("s_waitcnt vmcnt(0)")
    stamp_flush(a)
    a.lab("K_end")
    a("s_endpgm")
    a.lab("K_notT")
    if OPT['MAP'] == 3:
        a("s_cmp_ge_u32 s62, 4")
        a("s_cbranch_scc1 K_spare")
        a("s_sub_u32 s63, s63, 16")
        a(f"s_and_b32 s{S_A}, s63, 3")
        a("s_lshr_b32 s65, s63, 2")
        a("s_lshl_b32 s64, s62, 2")
        a(f"s_add_u32 s{S_B}, s64, s65")
        a(f"s_lshl_b32 s73, s{S_A}, 1")
        a("s_lshl_b32 s65, s65, 1")
        a("s_add_u32 s73, s73, s65")
        a("s_add_u32 s73, s73, s62")
    elif OPT['MAP'] == 2:
        a.lab("K_xr")
        a(f"s_and_b32 s{S_A}, s63, 3")
        a("s_lshr_b32 s65, s63, 2")
        a("s_sub_u32 s64, s62, 6")
        a("s_lshl_b32 s64, s64, 3")
        a(f"s_add_u32 s{S_B}, s64, s65")
        a(f"s_lshl_b32 s73, s{S_A}, 1")
        a("s_add_u32 s73, s73, s65")
    else:
        a("s_sub_u32 s63, s63, s65")
        a("s_cmp_lt_u32 s63, 8")
        a("s_cbranch_scc0 K_spare")
        if OPT['XMAP'] == 1:
            a(f"s_and_b32 s{S_A}, s63, 3")
            a("s_lshl_b32 s64, s62, 1")
            a("s_lshr_b32 s65, s63, 2")
            a(f"s_add_u32 s{S_B}, s64, s65")
            a(f"s_lshl_b32 s73, s{S_A}, 1")
            a("s_add_u32 s73, s73, s65")
            a("s_add_u32 s73, s73, s62")
        else:
            a("s_and_b32 s64, s62, 1")
            a("s_lshl_b32 s64, s64, 1")
            a("s_and_b32 s65, s63, 1")
            a(f"s_add_u32 s{S_A}, s64, s65")
            a("s_lshr_b32 s64, s62, 1")
            a("s_lshl_b32 s64, s64, 2")
            a("s_lshr_b32 s65, s63, 1")
            a(f"s_add_u32 s{S_B}, s64, s65")
            a("s_and_b32 s64, s63, 1")
            a("s_lshl_b32 s64, s64, 2")
            a("s_lshr_b32 s65, s63, 1")
            a("s_lshl_b32 s65, s65, 1")
            a("s_add_u32 s73, s64, s65")
            a("s_and_b32 s64, s62, 1")
            a("s_add_u32 s73, s73, s64")
    a.vm = []
    a.nst = nst0
    if OPT['DIAG'] == 1:
        a("s_branch K_fin")
    role_xr(a, S_A, S_B, 73)
    if OPT['DIAG'] == 2:
        a("s_branch K_fin")
    a("s_branch K_pre")
    a.lab("K_spare")
    if OPT['DIAG']:
        a("s_branch K_fin")
    a.vm = []
    n2 = a.nst
    a.nst = nst0
    kwait(a)
    late_srds(a)
    nonce_get_all(a, 9)
    a("s_waitcnt vmcnt(0)")
    nonce_check_all(a, 9)
    while STAMPS and a.nst < n2:
        a.stamp()
    a.lab("K_pre")
    a.vm = []
    a(f"s_cmp_ge_u32 s{S_NBK}, 15")
    a("s_cbranch_scc1 K_fin")
    y_f3_addr(a, 18, 19)
    a("s_nop 0")
    wg_poll(a, 19, 18, "s67", sleep=8)
    y_xr_loads(a)
    y_f2_addr(a)
    wg_poll(a, 14, 12, "s68", sleep=4)
    a(f"v_mov_b32 v14, s{S_NONCE}")
    while STAMPS and a.nst < nstT:
        a.stamp()
    a("s_branch K_y")
    a.lab("K_code_end")
    out += a.text()
    out += '.section .rodata,"a"\n'
    out += kd(K, 512, 256)
    return out

if __name__ == "__main__":
    for arg in list(sys.argv):
        if arg.startswith("-O"):
            k, v = arg[2:].split("=")
            OPT[k] = int(v)
            sys.argv.remove(arg)
    if "--plain" in sys.argv:
        LDSC = ""
        sys.argv.remove("--plain")
    if "--stamps" in sys.argv:
        STAMPS = True
        sys.argv.remove("--stamps")
    dst = sys.argv[1] if len(sys.argv) > 1 else "cdna_kernels/" + NAME + ".s"
    open(dst, "w").write(build())
    print("wrote", dst)
```
